```python
import torch

def _softmax(x, axis=-1):
    return torch.softmax(x, dim=axis)
def _gelu(x):
    return torch.nn.functional.gelu(x, approximate="tanh")
def _silu(x):
    return torch.nn.functional.silu(x)
def _sigmoid(x):
    return torch.sigmoid(x)
def _layernorm(x, axis=-1, eps=1e-5):
    m = x.mean(dim=axis, keepdim=True)
    v = x.var(dim=axis, keepdim=True, unbiased=False)
    return (x - m) / torch.sqrt(v + eps)
def _scatter_add(tgt, idx, src, axis=0):
    return tgt.clone().index_add_(axis, idx, src)
def _segment_sum(src, seg, n):
    out = torch.zeros((n,) + src.shape[1:], dtype=src.dtype)
    return out.index_add_(0, seg, src)
def _pad(x, pw):
    flat = tuple(v for pair in reversed(pw) for v in pair)
    return torch.nn.functional.pad(x, flat)

kernel_name = 'parallel_sum__ssm_conv_s5__glu_gated_bilinear__prompt'

def setup_inputs():

    _w = (lambda a: (lambda t: t.to(torch.bfloat16) if t.is_floating_point() else t)(torch.as_tensor(a)))
    def _A_setup():
        B, S, D = 1, 2048, 576
        P = D
        Lambda_re = -0.5 * (lambda _x: torch.exp(torch.as_tensor(_x)))((lambda *s: torch.randn(*s, dtype=torch.bfloat16) * 0.2)(P))
        Lambda_im = (lambda *s: torch.randn(*s, dtype=torch.bfloat16) * 0.8)(P) * 1.0
        B_re = (lambda *s: torch.randn(*s, dtype=torch.bfloat16) * 0.2)(P, D) * (D ** -0.5)
        B_im = (lambda *s: torch.randn(*s, dtype=torch.bfloat16) * 0.2)(P, D) * (D ** -0.5)
        C_re = (lambda *s: torch.randn(*s, dtype=torch.bfloat16) * 0.2)(D, P) * (P ** -0.5)
        C_im = (lambda *s: torch.randn(*s, dtype=torch.bfloat16) * 0.2)(D, P) * (P ** -0.5)
        log_dt = (lambda *s: torch.randn(*s, dtype=torch.bfloat16) * 0.2)(P) * 0.3 - 2.0
        Dskip = (lambda *s: torch.randn(*s, dtype=torch.bfloat16) * 0.05)(D)
        return {
            "x": _w((lambda *s: torch.randn(*s, dtype=torch.bfloat16) * 0.05)(B, S, D)),
            "Lambda_re": _w(Lambda_re),
            "Lambda_im": _w(Lambda_im),
            "B_re": _w(B_re),
            "B_im": _w(B_im),
            "C_re": _w(C_re),
            "C_im": _w(C_im),
            "log_dt": _w(log_dt),
            "Dskip": _w(Dskip),
        }
    _A_in = _A_setup()

    def _B_setup():
        B, S, D, F = 1, 2048, 576, 4608
        return {
            "x": _w((lambda *s: torch.randn(*s, dtype=torch.bfloat16) * 0.05)(B, S, D)),
            "w_gate": _w((lambda *s: torch.randn(*s, dtype=torch.bfloat16) * 0.4)(D, F) * (D ** -0.5)),
            "w_up": _w((lambda *s: torch.randn(*s, dtype=torch.bfloat16) * 0.4)(D, F) * (D ** -0.5)),
            "w_down": _w((lambda *s: torch.randn(*s, dtype=torch.bfloat16) * 0.4)(F, D) * (F ** -0.5)),
        }
    _B_in = _B_setup()

    return {
        "A_x": _A_in["x"],
        "A_Lambda_re": _A_in["Lambda_re"],
        "A_Lambda_im": _A_in["Lambda_im"],
        "A_B_re": _A_in["B_re"],
        "A_B_im": _A_in["B_im"],
        "A_C_re": _A_in["C_re"],
        "A_C_im": _A_in["C_im"],
        "A_log_dt": _A_in["log_dt"],
        "A_Dskip": _A_in["Dskip"],
        "B_x": _B_in["x"],
        "B_w_gate": _B_in["w_gate"],
        "B_w_up": _B_in["w_up"],
        "B_w_down": _B_in["w_down"],
    }

def reference(A_x, A_Lambda_re, A_Lambda_im, A_B_re, A_B_im, A_C_re, A_C_im, A_log_dt, A_Dskip, B_x, B_w_gate, B_w_up, B_w_down):
    def _A_ref(x, Lambda_re, Lambda_im, B_re, B_im, C_re, C_im, log_dt, Dskip):
        Bsz, L, H = x.shape
        Lam = Lambda_re + 1j * Lambda_im
        Bmat = B_re + 1j * B_im
        Cmat = C_re + 1j * C_im
        dt = torch.exp(log_dt)
        Lam_bar = torch.exp(dt * Lam)
        B_bar = ((Lam_bar - 1.0) / Lam)[:, None] * Bmat
        Bu = torch.einsum("bld,pd->blp", x + 0j, B_bar)
        h = torch.zeros_like(Bu[:, 0, :])
        hs = []
        for t in range(L):
            h = Lam_bar[None, :] * h + Bu[:, t, :]
            hs.append(h)
        hseq = torch.stack(hs, 1)
        y = 2.0 * torch.einsum("blp,dp->bld", hseq, Cmat).real + x * Dskip[None, None, :]
        return y

    def _B_ref(x, w_gate, w_up, w_down):
        g = torch.einsum("bsd,df->bsf", x, w_gate)
        u = torch.einsum("bsd,df->bsf", x, w_up)
        h = g * u
        return torch.einsum("bsf,fd->bsd", h, w_down)

    x = A_x
    xn = _layernorm(x, axis=-1)
    return x + _A_ref(xn, A_Lambda_re, A_Lambda_im, A_B_re, A_B_im, A_C_re, A_C_im, A_log_dt, A_Dskip) + _B_ref(xn, B_w_gate, B_w_up, B_w_down)
```

```python
class Asm:
    def __init__(self):
        self.lines = []
        self.nlab = 0
    def __call__(self, s):
        for l in s.strip("\n").split("\n"):
            self.lines.append("    " + l.strip() if not l.strip().endswith(":") else l.strip())
    def label(self, name):
        self.lines.append(name + ":")
    def newlabel(self, p="L"):
        Asm.gl = getattr(Asm, "gl", 0) + 1
        return f"{p}_{Asm.gl}"
    def text(self):
        return "\n".join(self.lines) + "\n"

def kernel_header(name):
    return f".globl {name}\n.p2align 8\n.type {name},@function\n{name}:\n"

def kernel_desc(name, vgpr, sgpr=102, accum=None, lds=0):
    if accum is None:
        accum = min(256, (vgpr + 3) // 4 * 4)
    return f""".p2align 6
.amdhsa_kernel {name}
  .amdhsa_next_free_vgpr {vgpr}
  .amdhsa_next_free_sgpr {sgpr}
  .amdhsa_accum_offset {accum}
  .amdhsa_group_segment_fixed_size {lds}
  .amdhsa_kernarg_size 128
  .amdhsa_user_sgpr_count 2
  .amdhsa_user_sgpr_kernarg_segment_ptr 1
  .amdhsa_system_sgpr_workgroup_id_x 1
  .amdhsa_float_denorm_mode_32 3
  .amdhsa_float_denorm_mode_16_64 3
.end_amdhsa_kernel
"""

def build_file(kernels):
    s = ""
    for (name, grid, block, lds, body, vgpr, sgpr, accum) in kernels:
        s += f"; @launch kernel={name} grid=({grid},1,1) block=({block},1,1) lds={lds}\n"
    s += '.amdgcn_target "amdgcn-amd-amdhsa--gfx950"\n.text\n'
    seen = set()
    for (name, grid, block, lds, body, vgpr, sgpr, accum) in kernels:
        if name in seen: continue
        seen.add(name)
        s += kernel_header(name) + body
    s += '.section .rodata,"a"\n'
    seen = set()
    for (name, grid, block, lds, body, vgpr, sgpr, accum) in kernels:
        if name in seen: continue
        seen.add(name)
        s += kernel_desc(name, vgpr, sgpr, accum)
    return s
```

```python
import sys
from asmlib import *

WS_X = 0
WS_H = 128 * 18 * 1024
WS_BASE = WS_H + 128 * 180 * 1024
WS_CONST = WS_BASE + 2048 * 576 * 4
WS_E = WS_CONST + 576 * 64
WS_PART = WS_E + 36 * 8 * 256
WS_SIZE = 0x10000000
H_STORE_FLAGS = "sc1"

def vr(b, n=1):
    return f"v{b}" if n == 1 else f"v[{b}:{b+n-1}]"
def sr(b, n=1):
    return f"s{b}" if n == 1 else f"s[{b}:{b+n-1}]"

def srd(a, d, ptr, size):
    a(f"s_mov_b32 s{d}, s{ptr}\ns_mov_b32 s{d+1}, s{ptr+1}\ns_mov_b32 s{d+2}, {size}\ns_mov_b32 s{d+3}, 0x20000")

MFMA = "v_mfma_f32_16x16x32_bf16"

def gen_k0():
    a = Asm()
    a("""
    s_load_dwordx2 s[4:5], s[0:1], 0
    s_load_dwordx2 s[6:7], s[0:1], 64
    s_load_dwordx2 s[8:9], s[0:1], 120
    s_cmp_ge_u32 s2, 256
    s_cbranch_scc1 K0_const
    """)
    a("""
    v_and_b32 v1, 31, v0                 ; c
    v_lshrrev_b32 v2, 5, v0              ; 2w+hw
    s_and_b32 s3, s2, 1
    s_lshl_b32 s3, s3, 3
    v_add_u32 v2, s3, v2
    s_lshr_b32 s20, s2, 1                ; mb
    s_lshr_b32 s21, s20, 1
    s_lshl_b32 s21, s21, 5               ; 32*(mb>>1)
    s_and_b32 s22, s20, 1
    s_lshl_b32 s22, s22, 2
    s_add_u32 s21, s21, s22              ; + 4*(mb&1)
    v_lshrrev_b32 v3, 2, v2
    v_lshlrev_b32 v3, 3, v3
    v_and_b32 v4, 3, v2
    v_add3_u32 v3, v3, v4, s21           ; t
    v_mul_u32_u24 v4, 1152, v3
    v_lshlrev_b32 v5, 4, v1              ; c*16
    v_add_u32 v4, v4, v5                 ; x offset
    v_cmp_gt_u32 vcc, 24, v1
    v_mov_b32 v6, 0x7ffffff0
    s_nop 1
    v_cndmask_b32 v4, v6, v4, vcc
    v_cndmask_b32 v5, v6, v5, vcc
    s_waitcnt lgkmcnt(0)
    """)
    srd(a, 12, 4, 2048 * 1152)
    srd(a, 16, 6, 1152)
    srd(a, 24, 8, WS_SIZE)
    for k in range(3):
        a(f"buffer_load_dwordx4 v[{16+4*k}:{19+4*k}], v4, s[12:15], 0 offen offset:{384*k}")
    for k in range(3):
        a(f"buffer_load_dwordx4 v[{28+4*k}:{31+4*k}], v5, s[16:19], 0 offen offset:{384*k}")
    a(f"""
    v_lshrrev_b32 v7, 2, v1
    v_lshlrev_b32 v7, 10, v7
    v_and_b32 v8, 3, v1
    v_lshlrev_b32 v8, 8, v8
    v_lshlrev_b32 v9, 4, v2
    v_add3_u32 v7, v7, v8, v9
    v_cndmask_b32 v7, v6, v7, vcc
    s_mul_i32 s23, s20, {18*1024}
    v_mul_u32_u24 v8, 2304, v3
    v_lshlrev_b32 v9, 5, v1
    v_add_u32 v8, v8, v9
    v_cndmask_b32 v8, v6, v8, vcc
    v_mov_b32 v10, 0xffff0000
    s_waitcnt vmcnt(3)
    """)
    X = 40
    for k in range(12):
        a(f"v_lshlrev_b32 v{X+2*k}, 16, v{16+k}")
        a(f"v_and_b32 v{X+2*k+1}, v10, v{16+k}")
    def reduce32(r, t):
        a(f"""
        s_nop 1
        v_add_f32_dpp v{t}, v{r}, v{r} quad_perm:[1,0,3,2] row_mask:0xf bank_mask:0xf
        s_nop 1
        v_add_f32_dpp v{r}, v{t}, v{t} quad_perm:[2,3,0,1] row_mask:0xf bank_mask:0xf
        s_nop 1
        v_add_f32_dpp v{t}, v{r}, v{r} row_half_mirror row_mask:0xf bank_mask:0xf
        s_nop 1
        v_add_f32_dpp v{r}, v{t}, v{t} row_mirror row_mask:0xf bank_mask:0xf
        s_nop 0
        v_mov_b32 v{t}, v{r}
        s_nop 1
        v_permlane16_swap_b32 v{r}, v{t}
        s_nop 1
        v_add_f32 v{r}, v{r}, v{t}
        """)
    for c in range(4):
        a(f"v_add_f32 v{64+c}, v{X+c}, v{X+4+c}")
    for k in range(2, 6):
        for c in range(4):
            a(f"v_add_f32 v{64+c}, v{64+c}, v{X+4*k+c}")
    a("v_add_f32 v64, v64, v65\nv_add_f32 v66, v66, v67\nv_add_f32 v64, v64, v66")
    reduce32(64, 65)
    a(f"v_mul_f32 v64, {1.0/576!r}, v64".replace(repr(1.0/576), "0x3ae38e39"))
    for c in range(4):
        a(f"v_sub_f32 v{72+c}, v{X+c}, v64")
        a(f"v_mul_f32 v{68+c}, v{72+c}, v{72+c}")
    for k in range(1, 6):
        for c in range(4):
            a(f"v_sub_f32 v{72+c}, v{X+4*k+c}, v64")
            a(f"v_fmac_f32 v{68+c}, v{72+c}, v{72+c}")
    a("v_add_f32 v68, v68, v69\nv_add_f32 v70, v70, v71\nv_add_f32 v68, v68, v70")
    a("v_cndmask_b32 v68, 0, v68, vcc")
    reduce32(68, 69)
    a("""
    v_mul_f32 v68, 0x3ae38e39, v68       ; var
    v_cvt_pk_bf16_f32 v66, v64, v68
    v_lshlrev_b32 v64, 16, v66
    v_and_b32 v68, v10, v66
    v_add_f32 v68, 0x3727c5ac, v68       ; + 1e-5
    v_cvt_pk_bf16_f32 v68, v68, v68
    v_and_b32 v68, v10, v68
    v_sqrt_f32 v68, v68
    s_nop 0
    v_cvt_pk_bf16_f32 v68, v68, v68
    v_and_b32 v68, v10, v68
    v_rcp_f32 v68, v68
    s_waitcnt vmcnt(0)
    """)
    for k in range(12):
        x0, x1 = X + 2 * k, X + 2 * k + 1
        a(f"""
        v_sub_f32 v72, v{x0}, v64
        v_sub_f32 v73, v{x1}, v64
        v_cvt_pk_bf16_f32 v74, v72, v73
        v_lshlrev_b32 v72, 16, v74
        v_and_b32 v73, v10, v74
        v_mul_f32 v72, v72, v68
        v_mul_f32 v73, v73, v68
        v_cvt_pk_bf16_f32 v{16+k}, v72, v73
        v_lshlrev_b32 v75, 16, v{28+k}
        v_and_b32 v76, v10, v{28+k}
        v_lshlrev_b32 v72, 16, v{16+k}
        v_and_b32 v73, v10, v{16+k}
        v_fmac_f32 v{x0}, v72, v75
        v_fmac_f32 v{x1}, v73, v76
        """)
        if k % 4 == 3:
            kk = k // 4
            a(f"s_add_u32 s28, s23, {WS_X + kk*6*1024}")
            a(f"buffer_store_dwordx4 v[{16+4*kk}:{19+4*kk}], v7, s[24:27], s28 offen")
            a(f"s_mov_b32 s29, {WS_BASE}")
            a(f"buffer_store_dwordx4 v[{X+8*kk}:{X+8*kk+3}], v8, s[24:27], s29 offen offset:{768*kk}")
            a(f"buffer_store_dwordx4 v[{X+8*kk+4}:{X+8*kk+7}], v8, s[24:27], s29 offen offset:{768*kk+16}")
    a("s_endpgm")
    a.label("K0_const")
    a("""
    s_cmp_ge_u32 s2, 265
    s_cbranch_scc1 K0_end
    s_load_dwordx4 s[12:15], s[0:1], 8
    s_load_dwordx2 s[16:17], s[0:1], 56    ; log_dt
    s_sub_u32 s3, s2, 256
    s_waitcnt lgkmcnt(0)
    """)
    srd(a, 24, 8, WS_SIZE)
    a(f"""
    s_lshl_b32 s20, s3, 13
    s_add_u32 s20, s20, {WS_E}
    v_lshlrev_b32 v1, 5, v0
    v_mov_b32 v4, 0
    v_mov_b32 v5, 0
    v_mov_b32 v6, 0
    v_mov_b32 v7, 0
    buffer_store_dwordx4 v[4:7], v1, s[24:27], s20 offen
    buffer_store_dwordx4 v[4:7], v1, s[24:27], s20 offen offset:16
    v_readfirstlane_b32 s21, v0
    s_nop 3
    s_cmp_ge_u32 s21, 64
    s_cbranch_scc1 K0_end
    """)
    srd(a, 28, 12, 1152)
    srd(a, 32, 14, 1152)
    srd(a, 36, 16, 1152)
    a("""
    s_lshl_b32 s20, s3, 6
    v_add_u32 v1, s20, v0                ; p
    v_lshlrev_b32 v2, 1, v1
    buffer_load_ushort v3, v2, s[28:31], 0 offen
    buffer_load_ushort v4, v2, s[32:35], 0 offen
    buffer_load_ushort v5, v2, s[36:39], 0 offen
    s_waitcnt vmcnt(0)
    v_lshlrev_b32 v3, 16, v3             ; lre
    v_lshlrev_b32 v4, 16, v4             ; lim
    v_lshlrev_b32 v5, 16, v5
    v_mul_f32 v5, 0x3fb8aa3b, v5
    v_exp_f32 v5, v5
    s_nop 0
    v_cvt_pk_bf16_f32 v5, v5, v5
    v_and_b32 v5, 0xffff0000, v5         ; dt (bf16)
    v_mul_f32 v6, v5, v3                 ; a
    v_mul_f32 v7, v5, v4                 ; b
    v_mul_f32 v6, 0x3fb8aa3b, v6
    v_exp_f32 v6, v6
    v_mul_f32 v7, 0.15915494, v7
    v_fract_f32 v7, v7
    v_cos_f32 v8, v7
    v_sin_f32 v9, v7
    s_nop 0
    v_mul_f32 v16, v6, v8                ; Lr
    v_mul_f32 v17, v6, v9                ; Li
    ; c2 = 2*(L-1)*conj(lam)/|lam|^2
    v_add_f32 v10, -1.0, v16
    v_mul_f32 v11, v3, v3
    v_fmac_f32 v11, v4, v4
    v_rcp_f32 v11, v11
    v_mul_f32 v12, v10, v3
    v_fmac_f32 v12, v17, v4              ; re = (Lr-1)*lre + Li*lim
    v_mul_f32 v13, v17, v3
    v_fma_f32 v13, -v10, v4, v13         ; im = Li*lre - (Lr-1)*lim
    v_add_f32 v11, v11, v11
    v_mul_f32 v18, v12, v11
    v_mul_f32 v19, v13, v11
    """.replace("0.15915494", "0x3e22f983"))
    def csq(d, s):
        a(f"""
        v_mul_f32 v14, v{s+1}, v{s+1}
        v_mul_f32 v15, v{s}, v{s+1}
        v_fma_f32 v{d}, v{s}, v{s}, -v14
        v_add_f32 v{d+1}, v15, v15
        """)
    csq(40, 16); csq(42, 40); csq(26, 42)
    csq(28, 26)
    a("""
    v_mul_f32 v14, v29, v27
    v_fma_f32 v30, v28, v26, -v14
    v_mul_f32 v14, v28, v27
    v_fma_f32 v31, v29, v26, v14
    v_mov_b32 v24, 1.0
    v_mov_b32 v25, 0
    """)
    csq(20, 28)
    csq(40, 20); csq(42, 40); csq(22, 42)
    a(f"""
    v_lshlrev_b32 v2, 6, v1
    s_mov_b32 s20, {WS_CONST}
    buffer_store_dwordx4 v[16:19], v2, s[24:27], s20 offen
    buffer_store_dwordx4 v[20:23], v2, s[24:27], s20 offen offset:16
    buffer_store_dwordx4 v[24:27], v2, s[24:27], s20 offen offset:32
    buffer_store_dwordx4 v[28:31], v2, s[24:27], s20 offen offset:48
    """)
    a.label("K0_end")
    a("s_endpgm")
    return ("k0_kernel", 265, 256, 0, a.text(), 80, 48, 80)

XR = 112
def xreg(j, s):
    return XR + (s * 2 + j) * 4

def gen_k1():
    a = Asm()
    a("""
    s_cmp_ge_u32 s2, 256
    s_cbranch_scc1 K1_end
    s_load_dwordx2 s[20:21], s[0:1], 120
    s_load_dwordx4 s[24:27], s[0:1], 80
    s_load_dwordx4 s[28:31], s[0:1], 24
    v_lshrrev_b32 v1, 6, v0
    v_and_b32 v0, 63, v0                     ; lane
    v_readfirstlane_b32 s16, v1              ; wave
    s_and_b32 s3, s2, 7                      ; xcd
    s_lshr_b32 s18, s2, 3
    s_and_b32 s17, s18, 7                    ; mt
    s_lshr_b32 s18, s18, 3                   ; k4
    v_lshlrev_b32 v1, 4, v0                  ; lane*16
    s_lshl_b32 s19, s17, 3
    s_add_u32 s19, s19, s16                  ; 8mt + w
    s_mul_i32 s32, s19, 36864
    s_add_u32 s33, s32, 18432
    s_mul_i32 s34, s19, 368640
    """)
    a(f"s_add_u32 s34, s34, {WS_H}")
    a("s_lshl_b32 s35, s16, 10                  ; w*1024")
    a("s_waitcnt lgkmcnt(0)")
    srd(a, 4, 20, WS_SIZE)
    a("s_cmp_eq_u32 s18, 3\ns_cbranch_scc1 K1_ssm")

    def xload(st):
        for j in range(2):
            a(f"s_add_u32 s36, s{32+j}, {WS_X + st*2048}")
            for e in range(2):
                r = xreg(j, 2 * st + e)
                a(f"buffer_load_dwordx4 v[{r}:{r+3}], v1, s[4:7], s36 offen offset:{1024*e}")

    WSZ = 576 * 9216
    srd(a, 8, 24, WSZ)
    srd(a, 12, 26, WSZ)
    ACC = 48; FR = 24; VA = 2; VD = 14; VS0 = 15; T0 = 16
    a(f"""
    s_mul_i32 s37, s3, 9
    s_mul_i32 s38, s18, 3
    s_add_u32 s37, s37, s38
    s_lshl_b32 s38, s37, 7
    s_lshl_b32 s39, s37, 11
    s_add_u32 s39, s39, s34
    v_lshrrev_b32 v16, 3, v0
    s_lshl_b32 s40, s16, 3
    v_add_u32 v16, s40, v16
    v_mul_u32_u24 v16, 9216, v16
    v_bfe_u32 v17, v0, 4, 1
    s_and_b32 s40, s16, 1
    s_lshl_b32 s40, s40, 1
    v_or_b32 v17, s40, v17
    v_lshlrev_b32 v17, 1, v17
    v_and_b32 v18, 7, v0
    v_xor_b32 v17, v17, v18
    v_lshl_add_u32 v{VD}, v17, 4, v16
    """)
    def dma(slot, st_soff):
        for m in range(2):
            a(f"s_add_u32 m0, s35, {slot*16384 + m*8192}")
            a("s_nop 0")
            a(f"buffer_load_dwordx4 v{VD}, s[{8+4*m}:{11+4*m}], s{st_soff} offen lds")
    for st in range(8):
        xload(st)
        a(f"s_add_u32 s41, s38, {st*589824}")
        dma(st, 41)
    xload(8)
    a(f"""
    v_lshrrev_b32 v16, 4, v0
    v_lshlrev_b32 v16, 10, v16
    v_bfe_u32 v17, v0, 2, 2
    v_lshl_add_u32 v16, v17, 7, v16
    v_bfe_u32 v17, v0, 3, 2
    v_lshl_add_u32 v16, v17, 5, v16
    v_and_b32 v17, 3, v0
    v_lshl_add_u32 v16, v17, 3, v16
    """)
    for b in range(4):
        a(f"v_xor_b32 v{VA+b}, {b*32}, v16")
        a(f"v_add_u32 v{VA+4+b}, 49152, v{VA+b}")
        a(f"v_add_u32 v{VA+8+b}, 98304, v{VA+b}")
    a(f"""
    s_mov_b32 s42, 0
    s_mov_b32 s43, 0x7ff00000
    s_mov_b32 s44, {WSZ}
    """)
    def rd(gblk, k):
        gblk %= 72
        st, blk = divmod(gblk, 8)
        u, m = divmod(blk, 2)
        s, e = divmod(k, 2)
        buf = FR + (gblk % 3) * 8 + s * 4 + e * 2
        reg = VA + (st // 3) * 4 + u
        off = (st % 3) * 16384 + m * 8192 + s * 4096 + e * 512
        a(f"ds_read_b64_tr_b16 v[{buf}:{buf+1}], v{reg} offset:{off}")
    def acc(blk, j):
        return ACC + (blk * 2 + j) * 4
    def epi_ops(v, soff_sgpr_expr):
        ops = []
        for j in range(2):
            T = T0 + 4 * j
            for uu in range(2):
                g = acc(4 * v + 2 * uu, j); u = acc(4 * v + 2 * uu + 1, j)
                for r in range(4):
                    ops.append(f"v_mul_f32 v{g+r}, v{g+r}, v{u+r}")
                ops.append(f"v_cvt_pk_bf16_f32 v{T+2*uu}, v{g}, v{g+1}")
                ops.append(f"v_cvt_pk_bf16_f32 v{T+2*uu+1}, v{g+2}, v{g+3}")
            ops.append(f"s_add_u32 s45, s{soff_sgpr_expr}, {j*184320}")
            ops.append(f"buffer_store_dwordx4 v[{T}:{T+3}], v1, s[4:7], s45 offen offset:{1024*v} {H_STORE_FLAGS}")
        return ops
    a("s_waitcnt vmcnt(46)\ns_barrier")
    for k in range(4): rd(0, k)
    for k in range(4): rd(1, k)
    a.label("K1_floop")
    for st in range(9):
        extra = []
        if st == 0: extra = epi_ops(1, 43); erange = (0, 4)
        if st == 8: extra = epi_ops(0, 39); erange = (5, 8)
        for blk in range(8):
            g = st * 8 + blk
            if blk == 6:
                if st <= 6:
                    lab = a.newlabel("K1_w")
                    a(f"s_waitcnt vmcnt({40-4*st})\ns_cmp_eq_u32 s42, 0\ns_cbranch_scc1 {lab}\ns_waitcnt vmcnt(12)")
                    a.label(lab)
                else:
                    a("s_waitcnt vmcnt(12)")
                a("s_barrier")
            a("s_waitcnt lgkmcnt(4)")
            buf = FR + (g % 3) * 8
            slot_ops = []
            if extra and erange[0] <= blk < erange[1]:
                n = erange[1] - erange[0]; i = blk - erange[0]
                lo = len(extra) * i // n; hi = len(extra) * (i + 1) // n
                slot_ops = extra[lo:hi]
            k = 0
            for j in range(2):
                for s in range(2):
                    c = acc(blk, j)
                    src2 = "0" if (st == 0 and s == 0) else f"v[{c}:{c+3}]"
                    x = xreg(j, 2 * st + s)
                    a(f"{MFMA} v[{c}:{c+3}], v[{buf+4*s}:{buf+4*s+3}], v[{x}:{x+3}], {src2}")
                    rd(g + 2, k)
                    lo = len(slot_ops) * k // 4; hi = len(slot_ops) * (k + 1) // 4
                    for o in slot_ops[lo:hi]: a(o)
                    k += 1
            if blk == 6:
                if st == 0:
                    a(f"s_add_u32 s41, s38, {8*589824}")
                    dma(8, 41)
                else:
                    if st == 1:
                        a("s_mov_b32 s10, s44\ns_mov_b32 s14, s44")
                    a(f"s_add_u32 s41, s38, {128 + (st-1)*589824}")
                    dma(st - 1, 41)
    a(f"""
    s_mov_b32 s43, s39
    s_add_u32 s39, s39, 2048
    s_add_u32 s38, s38, 128
    s_add_u32 s42, s42, 1
    s_cmp_eq_u32 s42, 2
    s_cselect_b32 s44, 0, s44
    s_cmp_lt_u32 s42, 3
    s_cbranch_scc1 K1_floop
    s_nop 7
    """)
    for o in epi_ops(1, 43): a(o)
    a("s_endpgm")

    a.label("K1_ssm")
    NU = 5
    ACC = 32; FR = 8; VA = 2
    BSZ = 576 * 1152
    a(f"""
    s_cmp_lt_u32 s16, 4
    s_cselect_b32 s22, s28, s30
    s_cselect_b32 s23, s29, s31
    """)
    srd(a, 8, 22, BSZ)
    a(f"""
    s_mul_i32 s37, s3, 5
    s_min_u32 s37, s37, 31                   ; ustart
    s_and_b32 s40, s16, 3
    s_lshl_b32 s41, s40, 3
    s_lshl_b32 s38, s37, 4
    s_add_u32 s41, s41, s38                  ; 16*ustart + 8*(w&3)
    v_lshrrev_b32 v8, 3, v0
    v_add_u32 v8, s41, v8
    v_mul_u32_u24 v8, 1152, v8
    s_and_b32 s41, s16, 1
    s_lshl_b32 s41, s41, 2
    v_lshrrev_b32 v9, 4, v0
    v_add_u32 v9, s41, v9
    v_and_b32 v10, 7, v0
    v_xor_b32 v9, v9, v10
    v_and_b32 v10, 15, v0
    v_lshrrev_b32 v11, 1, v10
    v_lshrrev_b32 v12, 4, v0
    v_xor_b32 v11, v11, v12
    v_lshlrev_b32 v11, 4, v11
    v_lshl_add_u32 v{VA}, v10, 7, v11
    v_xor_b32 v{VA+1}, 64, v{VA}
    v_add_u32 v{VA+2}, 49152, v{VA}
    v_add_u32 v{VA+3}, 49152, v{VA+1}
    v_add_u32 v{VA+4}, 98304, v{VA}
    v_add_u32 v{VA+5}, 98304, v{VA+1}
    v_lshl_add_u32 v0, v9, 4, v8
    s_lshr_b32 s41, s16, 2
    s_mul_i32 s41, s41, 12288
    s_lshl_b32 s35, s40, 10
    s_add_u32 s35, s35, s41
    """)
    def sdma(st):
        slot = st % 6
        for t in range(3):
            a(f"s_add_u32 m0, s35, {slot*24576 + t*4096}")
            a(f"s_mov_b32 s41, {st*128 + t*36864}")
            a(f"buffer_load_dwordx4 v0, s[8:11], s41 offen lds")
    for st in range(6):
        xload(st); sdma(st)
    for st in range(6, 9):
        xload(st)
    NB = 2 * NU
    def srd_(gblk, s):
        if gblk >= 9 * NB: return
        st, blk = divmod(gblk, NB)
        u, comp = divmod(blk, 2)
        slot = st % 6
        buf = FR + (gblk % 3) * 8 + s * 4
        reg = VA + (slot // 2) * 2 + s
        off = (slot % 2) * 24576 + comp * 12288 + u * 2048
        a(f"ds_read_b128 v[{buf}:{buf+3}], v{reg} offset:{off}")
    def sacc(u, comp, j):
        return ACC + ((u * 2 + comp) * 2 + j) * 4
    order = []
    for st in range(6): order += [("X", st)] * 4 + [("D", st)] * 3
    for st in range(6, 9): order += [("X", st)] * 4
    def need(st):
        last = max(i for i, o in enumerate(order) if o[1] == st)
        return len(order) - 1 - last
    a(f"s_waitcnt vmcnt({need(0)})\ns_barrier")
    for g in range(2):
        for s in range(2): srd_(g, s)
    CN = XR
    for st in range(9):
        for blk in range(NB):
            g = st * NB + blk
            if blk == NB - 2 and st < 8:
                a(f"s_waitcnt vmcnt({need(st+1)})\ns_barrier")
            a(f"s_waitcnt lgkmcnt({2 if g + 1 < 9*NB else 0})")
            buf = FR + (g % 3) * 8
            u, comp = divmod(blk, 2)
            k = 0
            for j in range(2):
                for s in range(2):
                    c = sacc(u, comp, j)
                    src2 = "0" if (st == 0 and s == 0) else f"v[{c}:{c+3}]"
                    x = xreg(j, 2 * st + s)
                    a(f"{MFMA} v[{c}:{c+3}], v[{x}:{x+3}], v[{buf+4*s}:{buf+4*s+3}], {src2}")
                    if k % 2 == 0: srd_(g + 2, k // 2)
                    k += 1
            if blk == NB - 2 and 1 <= st <= 3:
                sdma(st + 5); order += [("D", st + 5)] * 3
            if blk == NB - 2 and st == 7:
                a(f"""
                v_mbcnt_lo_u32_b32 v0, -1, 0
                v_mbcnt_hi_u32_b32 v0, -1, v0
                v_and_b32 v{CN+44}, 15, v0
                v_lshlrev_b32 v{CN+44}, 6, v{CN+44}
                v_lshrrev_b32 v{CN+45}, 4, v0
                v_lshl_add_u32 v{CN+45}, v{CN+45}, 3, v{CN+44}
                s_lshl_b32 s40, s37, 10
                s_add_u32 s40, s40, {WS_CONST}
                """)
                for u2 in range(NU):
                    b = CN + 8 * u2
                    a(f"s_add_u32 s41, s40, {u2*1024}")
                    a(f"buffer_load_dwordx4 v[{b}:{b+3}], v{CN+44}, s[4:7], s41 offen")
                    a(f"buffer_load_dwordx2 v[{b+4}:{b+5}], v{CN+44}, s[4:7], s41 offen offset:40")
                    a(f"buffer_load_dwordx2 v[{b+6}:{b+7}], v{CN+45}, s[4:7], s41 offen offset:32")
                a("s_min_u32 s46, s16, 4\ns_lshl_b32 s41, s46, 10\ns_add_u32 s41, s41, s40")
                a(f"buffer_load_dwordx4 v[{CN+40}:{CN+43}], v{CN+44}, s[4:7], s41 offen offset:16")
    TP = XR + 48
    EQ, TT, SW, TR = 0, 20480, 25600, 32768
    P = TP
    E = TP + 10
    t0 = TP + 20
    a("s_waitcnt vmcnt(0)\ns_barrier\ns_nop 7")
    def breg(u, comp, i):
        return sacc(u, comp, i // 4) + (i % 4)
    def cmadd(dr, di, lr, li, xr, xi, br, bi, t):
        a(f"v_fma_f32 v{t}, v{lr}, v{xr}, v{br}")
        a(f"v_fma_f32 v{t+1}, v{lr}, v{xi}, v{bi}")
        a(f"v_fma_f32 v{t+1}, v{li}, v{xr}, v{t+1}")
        a(f"v_fma_f32 v{dr}, -v{li}, v{xi}, v{t}")
        a(f"v_mov_b32 v{di}, v{t+1}")
    def cmadd4(dr, di, lr, li, xr, xi, br, bi):
        a(f"v_fma_f32 v{dr}, v{lr}, v{xr}, v{br}")
        a(f"v_fma_f32 v{di}, v{lr}, v{xi}, v{bi}")
        a(f"v_fma_f32 v{dr}, -v{li}, v{xi}, v{dr}")
        a(f"v_fma_f32 v{di}, v{li}, v{xr}, v{di}")
    for u in range(NU):
        cr, ci = CN + 8 * u + 2, CN + 8 * u + 3
        for i in range(8):
            br, bi = breg(u, 0, i), breg(u, 1, i)
            t = t0 + 2 * (i % 4)
            a(f"v_mul_f32 v{t}, v{ci}, v{bi}")
            a(f"v_mul_f32 v{t+1}, v{ci}, v{br}")
            a(f"v_fma_f32 v{br}, v{cr}, v{br}, -v{t}")
            a(f"v_fma_f32 v{bi}, v{cr}, v{bi}, v{t+1}")
    E2 = t0 + 8
    for i in range(1, 8):
        for u in range(NU):
            lr, li = CN + 8 * u, CN + 8 * u + 1
            if i == 1: xr, xi = breg(u, 0, 0), breg(u, 1, 0)
            else:
                src = (E if (i - 1) % 2 == 1 else E2) + 2 * u
                xr, xi = src, src + 1
            dst = (E if i % 2 == 1 else E2) + 2 * u
            cmadd4(dst, dst + 1, lr, li, xr, xi, breg(u, 0, i), breg(u, 1, i))
    A0 = t0 + 18; A1 = t0 + 19; A2 = t0 + 20; A3 = t0 + 21
    a(f"""
    v_and_b32 v{A2}, 15, v0
    v_lshrrev_b32 v{A3}, 4, v0
    s_lshl_b32 s40, s16, 9
    v_lshl_add_u32 v{A0}, v{A2}, 5, s40          ; w*512 + p*32
    v_lshl_add_u32 v{A1}, v{A3}, 3, v{A0}        ; + q*8
    v_cmp_eq_u32 s[50:51], 1, v{A3}
    v_cmp_eq_u32 s[52:53], 2, v{A3}
    v_cmp_eq_u32 s[54:55], 3, v{A3}
    """)
    for u in range(NU):
        a(f"ds_write_b64 v{A1}, v[{E+2*u}:{E+2*u+1}] offset:{EQ + u*4096}")
    Q = t0 + 24
    a("s_waitcnt lgkmcnt(0)")
    for u in range(NU):
        a(f"ds_read_b128 v[{Q+8*u}:{Q+8*u+3}], v{A0} offset:{EQ + u*4096}")
        a(f"ds_read_b128 v[{Q+8*u+4}:{Q+8*u+7}], v{A0} offset:{EQ + u*4096 + 16}")
    a(f"s_lshl_b32 s40, s16, 3\nv_lshl_add_u32 v{A1}, v{A2}, 6, s40")
    a("s_waitcnt lgkmcnt(0)")
    for step in range(1, 4):
        for u in range(NU):
            q = Q + 8 * u
            lr, li = CN + 8 * u + 4, CN + 8 * u + 5
            cmadd4(q + 2 * step, q + 2 * step + 1, lr, li, q + 2 * step - 2, q + 2 * step - 1, q + 2 * step, q + 2 * step + 1)
    for u in range(NU):
        q = Q + 8 * u
        a(f"ds_write_b64 v{A1}, v[{q+6}:{q+7}] offset:{TT + u*1024}")
        for c in range(2):
            a(f"v_cndmask_b32 v{P+2*u+c}, 0, v{q+c}, s[50:51]")
            a(f"v_cndmask_b32 v{P+2*u+c}, v{P+2*u+c}, v{q+2+c}, s[52:53]")
            a(f"v_cndmask_b32 v{P+2*u+c}, v{P+2*u+c}, v{q+4+c}, s[54:55]")
    a("s_waitcnt lgkmcnt(0)\ns_barrier")
    a("s_cmp_ge_u32 s16, 5\ns_cbranch_scc1 K1_join")
    L32r, L32i, L256r, L256i = CN + 40, CN + 41, CN + 42, CN + 43
    TW = Q
    G = Q + 16
    S = t0
    a(f"""
    s_lshl_b32 s40, s16, 10
    v_lshl_add_u32 v{A1}, v{A2}, 6, s40          ; u*1024 + p*64
    """)
    for k in range(4):
        a(f"ds_read_b128 v[{TW+4*k}:{TW+4*k+3}], v{A1} offset:{TT + 16*k}")
    a(f"""
    s_add_u32 s40, s37, s16
    s_lshl_b32 s40, s40, 11
    s_add_u32 s40, s40, {WS_E}
    v_lshlrev_b32 v{A0}, 4, v{A2}
    s_waitcnt lgkmcnt(0)
    """)
    cur = (TW, TW + 1)
    for w in range(1, 8):
        d = S + 2 * (w % 2)
        cmadd4(d, d + 1, L32r, L32i, cur[0], cur[1], TW + 2 * w, TW + 2 * w + 1)
        cur = (d, d + 1)
    a(f"""
    v_mov_b32 v{G}, v{cur[0]}
    v_mov_b32 v{G+1}, 1
    v_mov_b32 v{G+2}, v{cur[1]}
    v_mov_b32 v{G+3}, 1
    s_lshl_b32 s41, s17, 8
    s_add_u32 s41, s41, s40
    s_mov_b64 exec, 0xffff
    buffer_store_dwordx4 v[{G}:{G+3}], v{A0}, s[4:7], s41 offen sc1
    s_mov_b64 exec, -1
    v_mov_b32 v{S}, 0
    v_mov_b32 v{S+1}, 0
    s_mov_b32 s47, 0
    s_cmp_eq_u32 s17, 0
    s_cbranch_scc1 K1_lbdone
    s_nop 1
    """)
    a.label("K1_lbloop")
    for k in range(7):
        a(f"buffer_load_dwordx4 v[{G+4*k}:{G+4*k+3}], v{A0}, s[4:7], s40 offen offset:{256*k} sc1")
    a(f"""
    v_mov_b32 v{S}, 0
    v_mov_b32 v{S+1}, 0
    v_mov_b32 v{S+4}, 1
    s_waitcnt vmcnt(0)
    """)
    for k in range(7):
        a(f"v_and_b32 v{S+4}, v{S+4}, v{G+4*k+1}")
        a(f"v_and_b32 v{S+4}, v{S+4}, v{G+4*k+3}")
        cmadd(S, S + 1, L256r, L256i, S, S + 1, G + 4 * k, G + 4 * k + 2, S + 2)
        if k < 6:
            a(f"s_cmp_eq_u32 s17, {k+1}\ns_cbranch_scc1 K1_lbchk")
    a.label("K1_lbchk")
    a(f"""
    v_cmp_ne_u32 vcc, 1, v{S+4}
    s_cbranch_vccz K1_lbdone
    s_sleep 2
    s_add_u32 s47, s47, 1
    s_cmp_lt_u32 s47, 0x40000
    s_cbranch_scc1 K1_lbloop
    """)
    a.label("K1_lbdone")
    a(f"""
    s_lshl_b32 s40, s16, 10
    v_lshl_add_u32 v{A1}, v{A2}, 3, s40
    ds_write_b64 v{A1}, v[{S}:{S+1}] offset:{SW}
    """)
    cur = (S, S + 1)
    for w in range(7):
        cmadd4(TW + 2 * w, TW + 2 * w + 1, L32r, L32i, cur[0], cur[1], TW + 2 * w, TW + 2 * w + 1)
        cur = (TW + 2 * w, TW + 2 * w + 1)
        a(f"ds_write_b64 v{A1}, v[{cur[0]}:{cur[1]}] offset:{SW + 128*(w+1)}")
    a.label("K1_join")
    a("s_waitcnt lgkmcnt(0)\ns_barrier")
    a(f"""
    s_lshl_b32 s40, s16, 7
    v_lshl_add_u32 v{A1}, v{A2}, 3, s40
    """)
    for u in range(NU):
        a(f"ds_read_b64 v[{E+2*u}:{E+2*u+1}], v{A1} offset:{SW + u*1024}")
    a(f"""
    s_mul_i32 s40, s16, 10240
    s_add_u32 s40, s40, {TR}
    v_lshl_add_u32 v{A0}, v{A2}, 6, s40
    v_lshl_add_u32 v{A0}, v{A3}, 4, v{A0}
    v_lshl_add_u32 v{A1}, v{A3}, 9, s40
    v_bfe_u32 v{A2}, v0, 2, 2
    v_lshl_add_u32 v{A1}, v{A2}, 6, v{A1}
    v_and_b32 v{A2}, 3, v0
    v_lshl_add_u32 v{A1}, v{A2}, 4, v{A1}
    v_lshrrev_b32 v{A2}, 5, v0
    v_lshlrev_b32 v{A2}, 11, v{A2}
    v_and_b32 v{A3}, 31, v0
    v_lshl_add_u32 v{A2}, v{A3}, 4, v{A2}
    s_waitcnt lgkmcnt(0)
    """)
    for u in range(NU):
        cmadd4(P + 2 * u, P + 2 * u + 1, CN + 8 * u + 6, CN + 8 * u + 7, E + 2 * u, E + 2 * u + 1, P + 2 * u, P + 2 * u + 1)
    for i in range(8):
        for u in range(NU):
            lr, li = CN + 8 * u, CN + 8 * u + 1
            if i == 0: xr, xi = P + 2 * u, P + 2 * u + 1
            else: xr, xi = breg(u, 0, i - 1), breg(u, 1, i - 1)
            cmadd4(breg(u, 0, i), breg(u, 1, i), lr, li, xr, xi, breg(u, 0, i), breg(u, 1, i))
    for u in range(NU):
        q = Q + 8 * u
        for k in range(4):
            a(f"v_cvt_pk_bf16_f32 v{q+k}, v{breg(u,0,2*k)}, v{breg(u,0,2*k+1)}")
            a(f"v_cvt_pk_bf16_f32 v{q+4+k}, -v{breg(u,1,2*k)}, -v{breg(u,1,2*k+1)}")
        a(f"ds_write_b128 v{A0}, v[{q}:{q+3}] offset:{u*2048}")
        a(f"ds_write_b128 v{A0}, v[{q+4}:{q+7}] offset:{u*2048+1024}")
    a("s_waitcnt lgkmcnt(0)")
    for u in range(NU):
        for j in range(2):
            o = ACC + (u * 2 + j) * 4
            for e in range(2):
                a(f"ds_read_b64_tr_b16 v[{o+2*e}:{o+2*e+1}], v{A1} offset:{u*2048 + e*256 + j*8}")
    for u in range(NU):
        a(f"""
        s_add_u32 s40, s37, {u}
        s_lshr_b32 s41, s40, 2
        s_lshl_b32 s41, s41, 12
        s_and_b32 s42, s40, 3
        s_lshl_b32 s42, s42, 9
        s_add_u32 s41, s41, s42
        s_add_u32 s41, s41, s34
        s_add_u32 s41, s41, {144*1024}
        s_add_u32 s42, s41, 184320
        s_waitcnt lgkmcnt({min(15, 4*(NU-1-u))})
        """)
        for j in range(2):
            o = ACC + (u * 2 + j) * 4
            a(f"buffer_store_dwordx4 v[{o}:{o+3}], v{A2}, s[4:7], s{41+j} offen {H_STORE_FLAGS}")
    a.label("K1_end")
    a("s_endpgm")
    return ("k1_kernel", 256, 512, 147456, a.text(), 256, 64, 256)

def gen_k2():
    a = Asm()
    a("""
    s_cmp_ge_u32 s2, 240
    s_cbranch_scc1 K2_end
    s_load_dwordx2 s[20:21], s[0:1], 120
    s_load_dwordx2 s[24:25], s[0:1], 96      ; w_down
    s_load_dwordx4 s[28:31], s[0:1], 40
    v_lshrrev_b32 v1, 6, v0
    v_and_b32 v0, 63, v0
    v_readfirstlane_b32 s16, v1              ; wave8
    ; item = (id&7)*30 + (id>>3) ; split = item/48 ; tile = item%48 ; mt2 = tile/3 ; nt = tile%3
    s_and_b32 s3, s2, 7
    s_mul_i32 s3, s3, 30
    s_lshr_b32 s17, s2, 3
    s_add_u32 s3, s3, s17                    ; item
    s_mul_i32 s17, s3, 1366
    s_lshr_b32 s17, s17, 16                  ; split
    s_mul_i32 s18, s17, 48
    s_sub_u32 s18, s3, s18                   ; tile
    s_mul_i32 s19, s18, 21846
    s_lshr_b32 s19, s19, 16                  ; mt2
    s_mul_i32 s22, s19, 3
    s_sub_u32 s22, s18, s22                  ; nt
    s_and_b32 s23, s16, 3                    ; wm
    s_lshr_b32 s26, s16, 2                   ; h
    v_lshlrev_b32 v1, 4, v0
    s_lshl_b32 s32, s19, 2
    s_add_u32 s32, s32, s23
    s_mul_i32 s32, s32, 360
    s_mul_i32 s33, s17, 36
    s_add_u32 s32, s32, s33
    s_add_u32 s32, s32, s26
    s_lshl_b32 s32, s32, 10
    """)
    a(f"s_add_u32 s32, s32, {WS_H}\ns_add_u32 s33, s32, 184320")
    a("s_lshl_b32 s35, s16, 10\ns_waitcnt lgkmcnt(0)")
    srd(a, 4, 20, WS_SIZE)
    srd(a, 56, 20, WS_SIZE)
    ACC = 32; HF = 128; FR = 176; VA = 2; VD = 14
    def acc(nb, j): return ACC + (nb * 2 + j) * 4
    def hload(setn):
        for j in range(2):
            r = HF + setn * 8 + j * 4
            a(f"buffer_load_dwordx4 v[{r}:{r+3}], v1, s[56:59], s{32+j} offen")
        a("s_add_u32 s32, s32, 2048\ns_add_u32 s33, s33, 2048")
    a("s_cmp_eq_u32 s17, 4\ns_cbranch_scc1 K2_ssm")
    for kind in ("ffn", "ssm"):
        if kind == "ffn":
            srd(a, 8, 24, 4608 * 1152)
            a(f"""
            v_lshrrev_b32 v16, 3, v0
            s_lshl_b32 s40, s16, 3
            v_add_u32 v16, s40, v16
            v_mul_u32_u24 v16, 1152, v16
            v_lshrrev_b32 v17, 4, v0
            v_lshlrev_b32 v17, 1, v17
            v_and_b32 v18, 7, v0
            v_xor_b32 v17, v17, v18
            v_lshl_add_u32 v{VD}, v17, 4, v16
            s_mul_i32 s38, s17, {1152*1152}
            s_mul_i32 s40, s22, 384
            s_add_u32 s38, s38, s40                ; soffset
            v_lshrrev_b32 v16, 2, v0
            v_lshlrev_b32 v16, 7, v16
            v_bfe_u32 v17, v0, 3, 2
            v_lshl_add_u32 v16, v17, 5, v16
            v_and_b32 v17, 3, v0
            v_lshl_add_u32 v16, v17, 3, v16
            s_lshl_b32 s40, s26, 12
            v_add_u32 v16, s40, v16
            """)
            for b in range(4):
                a(f"v_xor_b32 v{VA+b}, {b*32}, v16")
                a(f"v_add_u32 v{VA+4+b}, 49152, v{VA+b}")
                a(f"v_add_u32 v{VA+8+b}, 98304, v{VA+b}")
            def dma(slot):
                for pn in range(3):
                    a(f"s_add_u32 m0, s35, {slot*24576 + pn*8192 - pn*128}")
                    a("s_nop 0")
                    a(f"buffer_load_dwordx4 v{VD}, s[8:11], s38 offen offset:{pn*128} lds")
                a(f"s_add_u32 s38, s38, {64*1152}")
            def rd(g, k):
                g %= 72
                slot, nb = divmod(g, 12)
                buf = FR + (g % 6) * 4 + 2 * k
                reg = VA + (slot // 2) * 4 + (nb & 3)
                off = (slot % 2) * 24576 + (nb >> 2) * 8192 + k * 2048
                a(f"ds_read_b64_tr_b16 v[{buf}:{buf+1}], v{reg} offset:{off}")
            nrd = 2
            def disable():
                a("s_cselect_b32 s10, 0, s10\ns_cselect_b32 s58, 0, s58")
        else:
            a.label("K2_ssm")
            srd(a, 8, 28, 576 * 1152)
            srd(a, 12, 30, 576 * 1152)
            a(f"""
            s_mul_i32 s40, s22, 192
            s_lshl_b32 s41, s16, 3
            s_add_u32 s40, s40, s41
            v_lshrrev_b32 v16, 3, v0
            v_add_u32 v16, s40, v16
            v_mul_u32_u24 v16, 1152, v16
            s_and_b32 s41, s16, 1
            s_lshl_b32 s41, s41, 2
            v_lshrrev_b32 v17, 4, v0
            v_add_u32 v17, s41, v17
            v_and_b32 v18, 7, v0
            v_xor_b32 v17, v17, v18
            v_lshl_add_u32 v{VD}, v17, 4, v16
            s_mov_b32 s38, 0
            v_and_b32 v16, 15, v0
            v_lshrrev_b32 v17, 1, v16
            v_lshrrev_b32 v18, 4, v0
            s_lshl_b32 s40, s26, 2
            v_add_u32 v18, s40, v18
            v_xor_b32 v17, v17, v18
            v_lshlrev_b32 v17, 4, v17
            v_lshl_add_u32 v{VA}, v16, 7, v17
            v_add_u32 v{VA+1}, 49152, v{VA}
            v_add_u32 v{VA+2}, 98304, v{VA}
            """)
            def dma(slot):
                comp = slot & 1
                for t in range(3):
                    a(f"s_add_u32 m0, s35, {slot*24576 + t*8192}")
                    a(f"s_add_u32 s41, s38, {t*64*1152}")
                    a(f"buffer_load_dwordx4 v{VD}, s[{8+4*comp}:{11+4*comp}], s41 offen lds")
                if comp: a("s_add_u32 s38, s38, 128")
            def rd(g, k):
                if k: return
                g %= 72
                slot, nb = divmod(g, 12)
                buf = FR + (g % 6) * 4
                reg = VA + (slot // 2)
                off = (slot % 2) * 24576 + nb * 2048
                a(f"ds_read_b128 v[{buf}:{buf+3}], v{reg} offset:{off}")
            nrd = 1
            def disable():
                a("s_cselect_b32 s10, 0, s10\ns_cselect_b32 s14, 0, s14\ns_cselect_b32 s58, 0, s58")
        for st in range(5):
            hload(st); dma(st)
        for r in range(96):
            a(f"v_mov_b32 v{ACC+r}, 0")
        a("s_mov_b32 s42, 0")
        a("s_waitcnt vmcnt(20)\ns_barrier")
        for g in range(4):
            for k in range(2): rd(g, k)
        lab = f"K2_loop_{kind}"
        a.label(lab)
        for slot in range(6):
            for nb in range(12):
                g = slot * 12 + nb
                if nb == 8:
                    a("s_waitcnt vmcnt(15)\ns_barrier")
                a(f"s_waitcnt lgkmcnt({3*nrd})")
                buf = FR + (g % 6) * 4
                for j in range(2):
                    c = acc(nb, j); hreg = HF + slot * 8 + j * 4
                    a(f"{MFMA} v[{c}:{c+3}], v[{buf}:{buf+3}], v[{hreg}:{hreg+3}], v[{c}:{c+3}]")
                    rd(g + 4, j)
                if nb == 8:
                    if slot == 1:
                        a("s_cmp_eq_u32 s42, 2")
                        disable()
                    hload((slot + 5) % 6); dma((slot + 5) % 6)
        a(f"s_add_u32 s42, s42, 1\ns_cmp_lt_u32 s42, 3\ns_cbranch_scc1 {lab}")
        if kind == "ffn":
            a("s_branch K2_epi")
    a.label("K2_epi")
    a(f"""
    s_waitcnt vmcnt(0) lgkmcnt(0)
    s_barrier
    s_mul_i32 s40, s16, 12288
    v_add_u32 v2, s40, v1
    s_xor_b32 s41, s16, 4
    s_mul_i32 s41, s41, 12288
    v_add_u32 v3, s41, v1
    s_cmp_eq_u32 s26, 0
    s_cbranch_scc1 K2_lo
    """)
    for h in (1, 0):
        if h == 0: a.label("K2_lo")
        keep = ACC + 48 * h; send = ACC + 48 * (1 - h)
        for k in range(12):
            a(f"ds_write_b128 v2, v[{send+4*k}:{send+4*k+3}] offset:{k*1024}")
        a("s_waitcnt lgkmcnt(0)\ns_barrier")
        for k in range(12):
            a(f"ds_read_b128 v[{HF+4*k}:{HF+4*k+3}], v3 offset:{k*1024}")
        for k in range(12):
            a(f"s_waitcnt lgkmcnt({11-k})")
            for r in range(4):
                a(f"v_add_f32 v{HF+4*k+r}, v{HF+4*k+r}, v{keep+4*k+r}")
        if h == 1: a("s_branch K2_out")
    a.label("K2_out")
    a(f"""
    s_lshl_b32 s40, s3, 3
    s_add_u32 s40, s40, s16
    s_mul_i32 s40, s40, 6144
    s_add_u32 s40, s40, {WS_PART}
    s_add_u32 s41, s40, 3072
    """)
    for nbp in range(3):
        for j in range(2):
            un = nbp * 2 + j
            T = ACC + un * 4
            for x in range(2):
                s = HF + ((2 * nbp + x) * 2 + j) * 4
                a(f"v_cvt_pk_bf16_f32 v{T+2*x}, v{s}, v{s+1}")
                a(f"v_cvt_pk_bf16_f32 v{T+2*x+1}, v{s+2}, v{s+3}")
            a(f"buffer_store_dwordx4 v[{T}:{T+3}], v1, s[4:7], s{40 + un//3} offen offset:{(un%3)*1024}")
    a.label("K2_end")
    a("s_endpgm")
    return ("k2_kernel", 240, 512, 147456, a.text(), 200, 64, 200)

def gen_k3():
    a = Asm()
    a(f"""
    s_cmp_ge_u32 s2, 576
    s_cbranch_scc1 K3_end
    s_load_dwordx2 s[20:21], s[0:1], 120
    s_load_dwordx2 s[22:23], s[0:1], 104
    v_lshrrev_b32 v1, 6, v0
    v_and_b32 v0, 63, v0
    v_readfirstlane_b32 s16, v1
    s_lshl_b32 s3, s2, 2
    s_add_u32 s3, s3, s16
    s_mul_i32 s17, s3, 43691
    s_lshr_b32 s17, s17, 21                  ; tile
    s_mul_i32 s18, s17, 48
    s_sub_u32 s18, s3, s18                   ; wave8*6+un
    s_mul_i32 s19, s18, 10923
    s_lshr_b32 s19, s19, 16                  ; wave8
    s_mul_i32 s24, s19, 6
    s_sub_u32 s24, s18, s24
    s_mul_i32 s25, s17, 21846
    s_lshr_b32 s25, s25, 16                  ; mt2
    s_mul_i32 s26, s25, 3
    s_sub_u32 s26, s17, s26                  ; nt
    s_lshl_b32 s27, s25, 7
    s_and_b32 s28, s19, 3
    s_lshl_b32 s28, s28, 5
    s_add_u32 s27, s27, s28
    s_and_b32 s28, s24, 1
    s_lshl_b32 s28, s28, 2
    s_add_u32 s27, s27, s28
    s_mul_i32 s27, s27, 2304
    s_mul_i32 s28, s26, 768
    s_add_u32 s27, s27, s28
    s_lshr_b32 s28, s19, 2
    s_mul_i32 s28, s28, 384
    s_add_u32 s27, s27, s28
    s_lshr_b32 s28, s24, 1
    s_lshl_b32 s28, s28, 7
    s_add_u32 s27, s27, s28
    v_bfe_u32 v2, v0, 2, 2
    v_lshlrev_b32 v2, 3, v2
    v_and_b32 v3, 3, v0
    v_add_u32 v2, v2, v3
    v_mul_u32_u24 v2, 2304, v2
    v_lshrrev_b32 v3, 4, v0
    v_lshl_add_u32 v2, v3, 4, v2
    v_lshlrev_b32 v1, 4, v0
    s_lshl_b32 s29, s3, 10
    s_add_u32 s29, s29, {WS_PART}
    s_add_u32 s30, s27, {WS_BASE}
    s_waitcnt lgkmcnt(0)
    """)
    srd(a, 4, 20, WS_SIZE)
    srd(a, 8, 22, 2048 * 2304)
    a("buffer_load_dwordx4 v[4:7], v2, s[4:7], s30 offen")
    a("buffer_load_dwordx4 v[8:11], v2, s[4:7], s30 offen offset:64")
    for s in range(5):
        a(f"buffer_load_dwordx4 v[{12+4*s}:{15+4*s}], v1, s[4:7], s29 offen")
        a(f"s_add_u32 s29, s29, {48*48*1024}")
    a("v_mov_b32 v3, 0xffff0000")
    for s in range(5):
        a(f"s_waitcnt vmcnt({4-s})")
        for k in range(4):
            a(f"v_lshlrev_b32 v32, 16, v{12+4*s+k}")
            a(f"v_and_b32 v33, v3, v{12+4*s+k}")
            a(f"v_add_f32 v{4+2*k}, v{4+2*k}, v32")
            a(f"v_add_f32 v{5+2*k}, v{5+2*k}, v33")
    a("buffer_store_dwordx4 v[4:7], v2, s[8:11], s27 offen")
    a("buffer_store_dwordx4 v[8:11], v2, s[8:11], s27 offen offset:64")
    a.label("K3_end")
    a("s_endpgm")
    return ("k3_kernel", 576, 256, 0, a.text(), 40, 48, 40)

if __name__ == "__main__":
    out = sys.argv[1] if len(sys.argv) > 1 else "out.s"
    ks = [gen_k0(), gen_k1(), gen_k2(), gen_k3()]
    open(out, "w").write(build_file(ks))
```

```python
import sys
from asmlib import *

WS_X = 0
WS_H = 128 * 18 * 1024
WS_BASE = WS_H + 128 * 180 * 1024
WS_CONST = WS_BASE + 2048 * 576 * 4
WS_E = WS_CONST + 576 * 64
WS_PART = WS_E + 40 * 8 * 256
WS_SIZE = 0x10000000
import os
H_STORE_FLAGS = os.environ.get("HST", "sc1")

def vr(b, n=1):
    return f"v{b}" if n == 1 else f"v[{b}:{b+n-1}]"
def sr(b, n=1):
    return f"s{b}" if n == 1 else f"s[{b}:{b+n-1}]"

def srd(a, d, ptr, size):
    a(f"s_mov_b32 s{d}, s{ptr}\ns_mov_b32 s{d+1}, s{ptr+1}\ns_mov_b32 s{d+2}, {size}\ns_mov_b32 s{d+3}, 0x20000")

MFMA = "v_mfma_f32_16x16x32_bf16"
import os
def P(name, default):
    return int(os.environ.get(name, str(default)))
LD = P("LD", 4)
LX = P("LX", 2)
PD0 = P("PD0", 2)
LH = P("LH", 3)
LW = P("LW", 3)
CODEPF = P("CODEPF", 1)
W2PF = P("W2PF", 1)
POLLSLEEP = P("POLLSLEEP", 2)
W2G = P("W2G", 1)
PRIO = P("PRIO", 1)
PFALL = P("PFALL", 0)
WS_FLAG = WS_PART + 5 * 48 * 48 * 1024

class VM:
    def __init__(self):
        self.ops = []
        self.sites = {}
    def op(self, tag, n=1):
        self.ops += [tag] * n
    def need(self, tags):
        idx = [i for i, t in enumerate(self.ops) if t in tags]
        if not idx: return 63
        return min(63, len(self.ops) - 1 - max(idx))
class Null:
    def __call__(self, s): pass
    def label(self, n): pass
    def newlabel(self, p="L"): return "X"
STAMP = int(os.environ.get("STAMP", "0"))
WS_DBG = 0x4000000
ST0 = 64
def stamp(a, i):
    if STAMP: a(f"{'s_memtime' if STAMP == 2 else 's_memrealtime'} s[{ST0+2*i}:{ST0+2*i+1}]")
def stamp_init(a):
    if STAMP:
        for i in range(32): a(f"s_mov_b32 s{ST0+i}, 0")
def stamp_dyn(a, base, sreg, n):
    if STAMP:
        for k in range(n):
            lab = a.newlabel("ST")
            a(f"s_cmp_lg_u32 s{sreg}, {k}\ns_cbranch_scc1 {lab}")
            stamp(a, base + k)
            a(f"s_memtime s[{ST0+2*(base+k+8)}:{ST0+2*(base+k+8)+1}]")
            a.label(lab)
def stamp_out(a, kidx, wave_sreg, srd_base=4):
    if STAMP:
        a("s_waitcnt lgkmcnt(0)")
        a("s_mov_b64 exec, -1")
        for i in range(16): a(f"v_mov_b32 v{i}, s{ST0+2*i}")
        a(f"s_lshl_b32 s96, s2, 3\ns_add_u32 s96, s96, s{wave_sreg}\ns_lshl_b32 s96, s96, 6\ns_add_u32 s96, s96, {WS_DBG + kidx*0x100000}")
        a("v_mov_b32 v16, 0\ns_mov_b64 exec, 1")
        for i in range(4): a(f"buffer_store_dwordx4 v[{4*i}:{4*i+3}], v16, s[{srd_base}:{srd_base+3}], s96 offen offset:{16*i}")

def gen_k0():
    a = Asm()
    a("""
    s_load_dwordx2 s[4:5], s[0:1], 0
    s_load_dwordx2 s[6:7], s[0:1], 64
    s_load_dwordx2 s[8:9], s[0:1], 120
    s_load_dwordx4 s[40:43], s[0:1], 80
    s_load_dwordx4 s[44:47], s[0:1], 24
    s_cmp_ge_u32 s2, 256
    s_cbranch_scc1 K0_const
    """)
    a("""
    v_and_b32 v1, 31, v0                 ; c
    v_lshrrev_b32 v2, 5, v0              ; 2w+hw
    s_and_b32 s3, s2, 1
    s_lshl_b32 s3, s3, 3
    v_add_u32 v2, s3, v2
    s_lshr_b32 s20, s2, 1                ; mb
    s_lshr_b32 s21, s20, 1
    s_lshl_b32 s21, s21, 5               ; 32*(mb>>1)
    s_and_b32 s22, s20, 1
    s_lshl_b32 s22, s22, 2
    s_add_u32 s21, s21, s22              ; + 4*(mb&1)
    v_lshrrev_b32 v3, 2, v2
    v_lshlrev_b32 v3, 3, v3
    v_and_b32 v4, 3, v2
    v_add3_u32 v3, v3, v4, s21           ; t
    v_mul_u32_u24 v4, 1152, v3
    v_lshlrev_b32 v5, 4, v1              ; c*16
    v_add_u32 v4, v4, v5                 ; x offset
    v_cmp_gt_u32 vcc, 24, v1
    v_mov_b32 v6, 0x7ffffff0
    s_nop 1
    v_cndmask_b32 v4, v6, v4, vcc
    v_cndmask_b32 v5, v6, v5, vcc
    s_waitcnt lgkmcnt(0)
    """)
    srd(a, 12, 4, 2048 * 1152)
    srd(a, 16, 6, 1152)
    srd(a, 24, 8, WS_SIZE)
    for k in range(3):
        a(f"buffer_load_dwordx4 v[{16+4*k}:{19+4*k}], v4, s[12:15], 0 offen offset:{384*k}")
    for k in range(3):
        a(f"buffer_load_dwordx4 v[{28+4*k}:{31+4*k}], v5, s[16:19], 0 offen offset:{384*k}")
    npf = 3 if PFALL else 1
    a(f"""
    v_readfirstlane_b32 s30, v0
    v_and_b32 v11, 63, v0
    s_and_b32 s31, s2, 7
    s_lshr_b32 s32, s2, 3
    s_lshr_b32 s30, s30, 6
    s_cmp_eq_u32 s30, 1
    s_cselect_b32 s36, s42, s40
    s_cselect_b32 s37, s43, s41
    s_cmp_eq_u32 s30, 2
    s_cselect_b32 s36, s44, s36
    s_cselect_b32 s37, s45, s37
    s_cmp_eq_u32 s30, 3
    s_cselect_b32 s36, s46, s36
    s_cselect_b32 s37, s47, s37
    s_cmp_lt_u32 s30, 2
    s_mov_b32 s38, {576*1152}
    s_cselect_b32 s38, {576*9216}, s38
    s_mov_b32 s39, 0x20000
    s_cbranch_scc0 K0_pfb
    ; row = 18a + lane/3 ; line = 9j + 3*(lane%3) (+k)
    v_mul_u32_u24 v12, 86, v11
    v_lshrrev_b32 v12, 8, v12
    v_mul_u32_u24 v13, 3, v12
    v_sub_u32 v13, v11, v13
    v_mul_u32_u24 v12, 9216, v12
    v_mul_u32_u24 v13, 384, v13
    v_add_u32 v12, v12, v13
    s_mul_i32 s33, s32, {18*9216}
    s_mul_i32 s34, s31, 1152
    s_add_u32 s33, s33, s34
    v_cmp_gt_u32 s[34:35], 54, v11
    s_branch K0_pfgo
    """)
    a.label("K0_pfb")
    a(f"""
    s_mul_i32 s33, s31, 5
    s_min_u32 s33, s33, 31
    s_lshl_b32 s33, s33, 4
    s_mul_i32 s34, s32, 3
    s_add_u32 s33, s33, s34
    s_mul_i32 s33, s33, 1152
    v_lshlrev_b32 v12, 7, v11
    v_cmp_gt_u32 s[34:35], 27, v11
    """)
    a.label("K0_pfgo")
    a("s_nop 1\nv_cndmask_b32 v12, v6, v12, s[34:35]")
    for k in range(npf):
        a(f"buffer_load_dword v{13+k}, v12, s[36:39], s33 offen offset:{128*k}")
    if CODEPF:
        a(f"""
        s_getpc_b64 s[48:49]
        K0_pc:
        s_add_u32 s48, s48, k1_kernel-K0_pc
        s_addc_u32 s49, s49, 0
        s_mov_b32 s50, CODE_END-k1_kernel
        s_mov_b32 s51, 0x20000
        s_lshl_b32 s33, s32, 2
        s_add_u32 s33, s33, s30
        s_lshl_b32 s33, s33, 9
        v_and_b32 v12, 3, v11
        v_lshlrev_b32 v12, 7, v12
        buffer_load_dword v77, v12, s[48:51], s33 offen
        """)
        npf += 1
    a(f"""
    v_lshrrev_b32 v7, 2, v1
    v_lshlrev_b32 v7, 10, v7
    v_and_b32 v8, 3, v1
    v_lshlrev_b32 v8, 8, v8
    v_lshlrev_b32 v9, 4, v2
    v_add3_u32 v7, v7, v8, v9
    v_cndmask_b32 v7, v6, v7, vcc
    s_mul_i32 s23, s20, {18*1024}
    v_mul_u32_u24 v8, 2304, v3
    v_lshlrev_b32 v9, 5, v1
    v_add_u32 v8, v8, v9
    v_cndmask_b32 v8, v6, v8, vcc
    v_mov_b32 v10, 0xffff0000
    s_waitcnt vmcnt({3+npf})
    """)
    X = 40
    for k in range(12):
        a(f"v_lshlrev_b32 v{X+2*k}, 16, v{16+k}")
        a(f"v_and_b32 v{X+2*k+1}, v10, v{16+k}")
    def reduce32(r, t):
        a(f"""
        s_nop 1
        v_add_f32_dpp v{t}, v{r}, v{r} quad_perm:[1,0,3,2] row_mask:0xf bank_mask:0xf
        s_nop 1
        v_add_f32_dpp v{r}, v{t}, v{t} quad_perm:[2,3,0,1] row_mask:0xf bank_mask:0xf
        s_nop 1
        v_add_f32_dpp v{t}, v{r}, v{r} row_half_mirror row_mask:0xf bank_mask:0xf
        s_nop 1
        v_add_f32_dpp v{r}, v{t}, v{t} row_mirror row_mask:0xf bank_mask:0xf
        s_nop 0
        v_mov_b32 v{t}, v{r}
        s_nop 1
        v_permlane16_swap_b32 v{r}, v{t}
        s_nop 1
        v_add_f32 v{r}, v{r}, v{t}
        """)
    for c in range(4):
        a(f"v_add_f32 v{64+c}, v{X+c}, v{X+4+c}")
    for k in range(2, 6):
        for c in range(4):
            a(f"v_add_f32 v{64+c}, v{64+c}, v{X+4*k+c}")
    a("v_add_f32 v64, v64, v65\nv_add_f32 v66, v66, v67\nv_add_f32 v64, v64, v66")
    reduce32(64, 65)
    a(f"v_mul_f32 v64, {1.0/576!r}, v64".replace(repr(1.0/576), "0x3ae38e39"))
    for c in range(4):
        a(f"v_sub_f32 v{72+c}, v{X+c}, v64")
        a(f"v_mul_f32 v{68+c}, v{72+c}, v{72+c}")
    for k in range(1, 6):
        for c in range(4):
            a(f"v_sub_f32 v{72+c}, v{X+4*k+c}, v64")
            a(f"v_fmac_f32 v{68+c}, v{72+c}, v{72+c}")
    a("v_add_f32 v68, v68, v69\nv_add_f32 v70, v70, v71\nv_add_f32 v68, v68, v70")
    a("v_cndmask_b32 v68, 0, v68, vcc")
    reduce32(68, 69)
    a("""
    v_mul_f32 v68, 0x3ae38e39, v68       ; var
    v_cvt_pk_bf16_f32 v66, v64, v68
    v_lshlrev_b32 v64, 16, v66
    v_and_b32 v68, v10, v66
    v_add_f32 v68, 0x3727c5ac, v68       ; + 1e-5
    v_cvt_pk_bf16_f32 v68, v68, v68
    v_and_b32 v68, v10, v68
    v_sqrt_f32 v68, v68
    s_nop 0
    v_cvt_pk_bf16_f32 v68, v68, v68
    v_and_b32 v68, v10, v68
    v_rcp_f32 v68, v68
    """)
    a(f"s_waitcnt vmcnt({npf})")
    for k in range(12):
        x0, x1 = X + 2 * k, X + 2 * k + 1
        a(f"""
        v_sub_f32 v72, v{x0}, v64
        v_sub_f32 v73, v{x1}, v64
        v_cvt_pk_bf16_f32 v74, v72, v73
        v_lshlrev_b32 v72, 16, v74
        v_and_b32 v73, v10, v74
        v_mul_f32 v72, v72, v68
        v_mul_f32 v73, v73, v68
        v_cvt_pk_bf16_f32 v{16+k}, v72, v73
        v_lshlrev_b32 v75, 16, v{28+k}
        v_and_b32 v76, v10, v{28+k}
        v_lshlrev_b32 v72, 16, v{16+k}
        v_and_b32 v73, v10, v{16+k}
        v_fmac_f32 v{x0}, v72, v75
        v_fmac_f32 v{x1}, v73, v76
        """)
        if k % 4 == 3:
            kk = k // 4
            a(f"s_add_u32 s28, s23, {WS_X + kk*6*1024}")
            a(f"buffer_store_dwordx4 v[{16+4*kk}:{19+4*kk}], v7, s[24:27], s28 offen")
            a(f"s_mov_b32 s29, {WS_BASE}")
            a(f"buffer_store_dwordx4 v[{X+8*kk}:{X+8*kk+3}], v8, s[24:27], s29 offen offset:{768*kk}")
            a(f"buffer_store_dwordx4 v[{X+8*kk+4}:{X+8*kk+7}], v8, s[24:27], s29 offen offset:{768*kk+16}")
    a("s_endpgm")
    a.label("K0_const")
    a("""
    s_cmp_ge_u32 s2, 265
    s_cbranch_scc1 K0_end
    s_load_dwordx4 s[12:15], s[0:1], 8
    s_load_dwordx2 s[16:17], s[0:1], 56    ; log_dt
    s_sub_u32 s3, s2, 256
    s_waitcnt lgkmcnt(0)
    """)
    srd(a, 24, 8, WS_SIZE)
    a(f"""
    s_lshl_b32 s20, s3, 13
    s_add_u32 s20, s20, {WS_E}
    v_lshlrev_b32 v1, 5, v0
    v_mov_b32 v4, 0
    v_mov_b32 v5, 0
    v_mov_b32 v6, 0
    v_mov_b32 v7, 0
    buffer_store_dwordx4 v[4:7], v1, s[24:27], s20 offen
    buffer_store_dwordx4 v[4:7], v1, s[24:27], s20 offen offset:16
    s_lshl_b32 s20, s3, 12
    s_add_u32 s20, s20, {WS_FLAG}
    v_lshlrev_b32 v2, 4, v0
    buffer_store_dwordx4 v[4:7], v2, s[24:27], s20 offen
    v_readfirstlane_b32 s21, v0
    s_nop 3
    s_cmp_ge_u32 s21, 64
    s_cbranch_scc1 K0_end
    """)
    srd(a, 28, 12, 1152)
    srd(a, 32, 14, 1152)
    srd(a, 36, 16, 1152)
    a("""
    s_lshl_b32 s20, s3, 6
    v_add_u32 v1, s20, v0                ; p
    v_lshlrev_b32 v2, 1, v1
    buffer_load_ushort v3, v2, s[28:31], 0 offen
    buffer_load_ushort v4, v2, s[32:35], 0 offen
    buffer_load_ushort v5, v2, s[36:39], 0 offen
    s_waitcnt vmcnt(0)
    v_lshlrev_b32 v3, 16, v3             ; lre
    v_lshlrev_b32 v4, 16, v4             ; lim
    v_lshlrev_b32 v5, 16, v5
    v_mul_f32 v5, 0x3fb8aa3b, v5
    v_exp_f32 v5, v5
    s_nop 0
    v_cvt_pk_bf16_f32 v5, v5, v5
    v_and_b32 v5, 0xffff0000, v5         ; dt (bf16)
    v_mul_f32 v6, v5, v3                 ; a
    v_mul_f32 v7, v5, v4                 ; b
    v_mul_f32 v6, 0x3fb8aa3b, v6
    v_exp_f32 v6, v6
    v_mul_f32 v7, 0.15915494, v7
    v_fract_f32 v7, v7
    v_cos_f32 v8, v7
    v_sin_f32 v9, v7
    s_nop 0
    v_mul_f32 v16, v6, v8                ; Lr
    v_mul_f32 v17, v6, v9                ; Li
    ; c2 = 2*(L-1)*conj(lam)/|lam|^2
    v_add_f32 v10, -1.0, v16
    v_mul_f32 v11, v3, v3
    v_fmac_f32 v11, v4, v4
    v_rcp_f32 v11, v11
    v_mul_f32 v12, v10, v3
    v_fmac_f32 v12, v17, v4              ; re = (Lr-1)*lre + Li*lim
    v_mul_f32 v13, v17, v3
    v_fma_f32 v13, -v10, v4, v13         ; im = Li*lre - (Lr-1)*lim
    v_add_f32 v11, v11, v11
    v_mul_f32 v18, v12, v11
    v_mul_f32 v19, v13, v11
    """.replace("0.15915494", "0x3e22f983"))
    def csq(d, s):
        a(f"""
        v_mul_f32 v14, v{s+1}, v{s+1}
        v_mul_f32 v15, v{s}, v{s+1}
        v_fma_f32 v{d}, v{s}, v{s}, -v14
        v_add_f32 v{d+1}, v15, v15
        """)
    csq(40, 16); csq(42, 40); csq(26, 42)
    csq(28, 26)
    a("""
    v_mul_f32 v14, v29, v27
    v_fma_f32 v30, v28, v26, -v14
    v_mul_f32 v14, v28, v27
    v_fma_f32 v31, v29, v26, v14
    v_mov_b32 v24, 1.0
    v_mov_b32 v25, 0
    """)
    csq(20, 28)
    csq(40, 20); csq(42, 40); csq(22, 42)
    a(f"""
    v_lshlrev_b32 v2, 6, v1
    s_mov_b32 s20, {WS_CONST}
    buffer_store_dwordx4 v[16:19], v2, s[24:27], s20 offen
    buffer_store_dwordx4 v[20:23], v2, s[24:27], s20 offen offset:16
    buffer_store_dwordx4 v[24:27], v2, s[24:27], s20 offen offset:32
    buffer_store_dwordx4 v[28:31], v2, s[24:27], s20 offen offset:48
    """)
    a.label("K0_end")
    a("s_endpgm")
    return ("k0_kernel", 265, 256, 0, a.text(), 80, 56, 80)

XR = 112
def xreg(j, s):
    return XR + (s * 2 + j) * 4

def gen_k1():
    a = Asm()
    stamp_init(a); stamp(a, 0)
    a("""
    s_cmp_ge_u32 s2, 256
    s_cbranch_scc1 K1_end
    s_load_dwordx2 s[20:21], s[0:1], 120
    s_load_dwordx4 s[24:27], s[0:1], 80
    s_load_dwordx4 s[28:31], s[0:1], 24
    v_lshrrev_b32 v1, 6, v0
    v_and_b32 v0, 63, v0                     ; lane
    v_readfirstlane_b32 s16, v1              ; wave
    s_and_b32 s3, s2, 7                      ; xcd
    s_lshr_b32 s18, s2, 3
    s_and_b32 s17, s18, 7                    ; mt
    s_lshr_b32 s18, s18, 3                   ; k4
    v_lshlrev_b32 v1, 4, v0                  ; lane*16
    s_lshl_b32 s19, s17, 3
    s_add_u32 s19, s19, s16                  ; 8mt + w
    s_mul_i32 s32, s19, 36864
    s_add_u32 s33, s32, 18432
    s_mul_i32 s34, s19, 368640
    """)
    a(f"s_add_u32 s34, s34, {WS_H}")
    a("s_lshl_b32 s35, s16, 10                  ; w*1024")
    a("s_waitcnt lgkmcnt(0)")
    srd(a, 4, 20, WS_SIZE)
    a("s_cmp_eq_u32 s18, 3\ns_cbranch_scc1 K1_ssm")

    def xload(st, a=a):
        for j in range(2):
            a(f"s_add_u32 s36, s{32+j}, {WS_X + st*2048}")
            for e in range(2):
                r = xreg(j, 2 * st + e)
                a(f"buffer_load_dwordx4 v[{r}:{r+3}], v1, s[4:7], s36 offen offset:{1024*e}")

    WSZ = 576 * 9216
    srd(a, 8, 24, WSZ)
    srd(a, 12, 26, WSZ)
    a("s_load_dwordx2 s[58:59], s[0:1], 96\ns_load_dwordx4 s[60:63], s[0:1], 40")
    ACC = 48; FR = 24; VA = 2; VD = 14; VS0 = 15; T0 = 16
    a(f"""
    s_mul_i32 s37, s3, 9
    s_mul_i32 s38, s18, 3
    s_add_u32 s37, s37, s38
    s_lshl_b32 s38, s37, 7
    s_lshl_b32 s39, s37, 11
    s_add_u32 s39, s39, s34
    v_lshrrev_b32 v16, 3, v0
    s_lshl_b32 s40, s16, 3
    v_add_u32 v16, s40, v16
    v_mul_u32_u24 v16, 9216, v16
    v_bfe_u32 v17, v0, 4, 1
    s_and_b32 s40, s16, 1
    s_lshl_b32 s40, s40, 1
    v_or_b32 v17, s40, v17
    v_lshlrev_b32 v17, 1, v17
    v_and_b32 v18, 7, v0
    v_xor_b32 v17, v17, v18
    v_lshl_add_u32 v{VD}, v17, 4, v16
    """)
    def dma(a, slot, st_soff):
        for m in range(2):
            a(f"s_add_u32 m0, s35, {slot*16384 + m*8192}")
            a("s_nop 0")
            a(f"buffer_load_dwordx4 v{VD}, s[{8+4*m}:{11+4*m}], s{st_soff} offen lds")
    def rd(a, gblk, k):
        gblk %= 72
        st, blk = divmod(gblk, 8)
        u, m = divmod(blk, 2)
        s, e = divmod(k, 2)
        buf = FR + (gblk % 3) * 8 + s * 4 + e * 2
        reg = VA + (st // 3) * 4 + u
        off = (st % 3) * 16384 + m * 8192 + s * 4096 + e * 512
        a(f"ds_read_b64_tr_b16 v[{buf}:{buf+1}], v{reg} offset:{off}")
    def acc(blk, j):
        return ACC + (blk * 2 + j) * 4
    def epi_ops(v, soff_sgpr_expr):
        ops = []
        for j in range(2):
            T = T0 + 4 * j
            for uu in range(2):
                g = acc(4 * v + 2 * uu, j); u = acc(4 * v + 2 * uu + 1, j)
                for r in range(4):
                    ops.append(f"v_mul_f32 v{g+r}, v{g+r}, v{u+r}")
                ops.append(f"v_cvt_pk_bf16_f32 v{T+2*uu}, v{g}, v{g+1}")
                ops.append(f"v_cvt_pk_bf16_f32 v{T+2*uu+1}, v{g+2}, v{g+3}")
            ops.append(f"s_add_u32 s45, s{soff_sgpr_expr}, {j*184320}")
            ops.append(f"buffer_store_dwordx4 v[{T}:{T+3}], v1, s[4:7], s45 offen offset:{1024*v} {H_STORE_FLAGS}")
        return ops
    vm = VM()
    def prologue(a):
        for st in range(max(LX, PD0)):
            if st < LX:
                xload(st, a); vm.op(("X", st), 4)
            if st < PD0:
                a(f"s_add_u32 s41, s38, {st*589824}")
                dma(a, st, 41); vm.op(("D", st), 2)
    waits = {}
    def body(a, G):
        for st in range(9):
            gs = 9 * G + st
            extra = []
            if st == 0: extra = epi_ops(1, 43); erange = (0, 4)
            if st == 8: extra = epi_ops(0, 39); erange = (5, 8)
            for blk in range(8):
                g = st * 8 + blk
                if blk == 6:
                    n = vm.need({("X", gs + 1), ("D", gs + 1)})
                    waits.setdefault(st, {})[G] = n
                    if isinstance(a, Asm):
                        nf = W[st][0]; nr = min(W[st][1], W[st][2])
                        if nf > nr:
                            lab = a.newlabel("K1_w")
                            a(f"s_waitcnt vmcnt({nf})\ns_cmp_eq_u32 s42, 0\ns_cbranch_scc1 {lab}\ns_waitcnt vmcnt({nr})")
                            a.label(lab)
                        else:
                            a(f"s_waitcnt vmcnt({nf})")
                    a("s_barrier")
                if PRIO and blk % 2 == 0:
                    a(f"s_setprio {3 - ((blk + 2) % 8) // 2}")
                a("s_waitcnt lgkmcnt(4)")
                buf = FR + (g % 3) * 8
                slot_ops = []
                if extra and erange[0] <= blk < erange[1]:
                    n = erange[1] - erange[0]; i = blk - erange[0]
                    lo = len(extra) * i // n; hi = len(extra) * (i + 1) // n
                    slot_ops = extra[lo:hi]
                k = 0
                for j in range(2):
                    for s in range(2):
                        c = acc(blk, j)
                        src2 = "0" if (st == 0 and s == 0) else f"v[{c}:{c+3}]"
                        x = xreg(j, 2 * st + s)
                        a(f"{MFMA} v[{c}:{c+3}], v[{buf+4*s}:{buf+4*s+3}], v[{x}:{x+3}], {src2}")
                        rd(a, g + 2, k)
                        lo = len(slot_ops) * k // 4; hi = len(slot_ops) * (k + 1) // 4
                        for o in slot_ops[lo:hi]:
                            a(o)
                            if o.startswith("buffer_store"): vm.op("S")
                        k += 1
                if blk == 0:
                    fx = st + LX <= 8
                    fd = [d for d in range(PD0, LD)] if st == 0 else []
                    if fx or fd:
                        lab = a.newlabel("K1_x")
                        a(f"s_cmp_lg_u32 s42, 0\ns_cbranch_scc1 {lab}")
                        if fx:
                            xload(st + LX, a)
                            if G == 0: vm.op(("X", st + LX), 4)
                        for d in fd:
                            a(f"s_add_u32 s41, s38, {d*589824}")
                            dma(a, d, 41)
                            if G == 0: vm.op(("D", d), 2)
                        a.label(lab)
                if blk == 4 and st < 8 and W2PF:
                    lab = a.newlabel("K1_p")
                    x = st & 1; qt = st >> 1
                    a(f"""
                    s_cmp_lg_u32 s42, {W2G}
                    s_cbranch_scc1 {lab}
                    s_mov_b32 m0, 147456
                    s_mov_b64 exec, 0xffff
                    buffer_load_dword v15, s[{48+4*x}:{51+4*x}], s{56+x} offen lds
                    s_mov_b64 exec, -1
                    s_add_u32 s{56+x}, s{56+x}, 2048
                    """)
                    a.label(lab)
                    if G == W2G: vm.op("P")
                if blk == 2:
                    t = st + LD
                    if t == 9:
                        a("s_mov_b32 s10, s44\ns_mov_b32 s14, s44")
                    a(f"s_add_u32 s41, s38, {(128 if t >= 9 else 0) + (t % 9)*589824}")
                    dma(a, t % 9, 41); vm.op(("D", gs + LD), 2)
    prologue(Null()); w0 = vm.need({("X", 0), ("D", 0)})
    for G in range(3): body(Null(), G)
    W = waits
    vm = VM()
    prologue(a)
    a(f"""
    v_lshrrev_b32 v16, 4, v0
    v_lshlrev_b32 v16, 10, v16
    v_bfe_u32 v17, v0, 2, 2
    v_lshl_add_u32 v16, v17, 7, v16
    v_bfe_u32 v17, v0, 3, 2
    v_lshl_add_u32 v16, v17, 5, v16
    v_and_b32 v17, 3, v0
    v_lshl_add_u32 v16, v17, 3, v16
    """)
    for b in range(4):
        a(f"v_xor_b32 v{VA+b}, {b*32}, v16")
        a(f"v_add_u32 v{VA+4+b}, 49152, v{VA+b}")
        a(f"v_add_u32 v{VA+8+b}, 98304, v{VA+b}")
    if W2PF:
        a(f"""
        s_lshl_b32 s40, s18, 3
        s_add_u32 s40, s40, s17
        s_lshl_b32 s40, s40, 3
        s_add_u32 s40, s40, s16
        s_min_u32 s40, s40, 161
        v_lshlrev_b32 v15, 7, v0
        s_waitcnt lgkmcnt(0)
        """)
        for x in range(2):
            a(f"""
            s_mul_i32 s41, s3, 30
            s_add_u32 s41, s41, {29*x}
            s_mul_i32 s41, s41, 1366
            s_lshr_b32 s41, s41, 16              ; split
            s_cmp_ge_u32 s40, 81
            s_cselect_b32 s22, s62, s60
            s_cselect_b32 s23, s63, s61
            s_cselect_b32 s46, 81, 0
            s_sub_u32 s46, s40, s46
            s_lshl_b32 s46, s46, 13
            s_mul_i32 s47, s41, {1152*1152}
            s_lshl_b32 s45, s40, 13
            s_add_u32 s47, s47, s45
            s_cmp_eq_u32 s41, 4
            s_cselect_b32 s{48+4*x}, s22, s58
            s_cselect_b32 s{49+4*x}, s23, s59
            s_cselect_b32 s{56+x}, s46, s47
            s_mov_b32 s{50+4*x}, {4608*1152}
            s_cselect_b32 s{50+4*x}, {576*1152}, s{50+4*x}
            s_mov_b32 s{51+4*x}, 0x20000
            """)
    a(f"""
    s_mov_b32 s42, 0
    s_mov_b32 s43, 0x7ff00000
    s_mov_b32 s44, {WSZ}
    """)
    stamp(a, 1)
    a(f"s_waitcnt vmcnt({w0})\ns_barrier")
    stamp(a, 2)
    for k in range(4): rd(a, 0, k)
    for k in range(4): rd(a, 1, k)
    a.label("K1_floop")
    waits = {}
    body(a, 0)
    stamp_dyn(a, 3, 42, 3)
    a(f"""
    s_mov_b32 s43, s39
    s_add_u32 s39, s39, 2048
    s_add_u32 s38, s38, 128
    s_add_u32 s42, s42, 1
    s_cmp_eq_u32 s42, 2
    s_cselect_b32 s44, 0, s44
    s_cmp_lt_u32 s42, 3
    s_cbranch_scc1 K1_floop
    s_nop 7
    """)
    for o in epi_ops(1, 43): a(o)
    if STAMP: a("s_waitcnt vmcnt(0)")
    stamp(a, 6); stamp_out(a, 1, 16)
    a("s_endpgm")

    a.label("K1_ssm")
    NU = 5
    ACC = 32; FR = 8; VA = 2
    BSZ = 576 * 1152
    a(f"""
    s_cmp_lt_u32 s16, 4
    s_cselect_b32 s22, s28, s30
    s_cselect_b32 s23, s29, s31
    """)
    srd(a, 8, 22, BSZ)
    a(f"""
    s_mul_i32 s37, s3, 5
    s_min_u32 s37, s37, 31                   ; ustart
    s_and_b32 s40, s16, 3
    s_lshl_b32 s41, s40, 3
    s_lshl_b32 s38, s37, 4
    s_add_u32 s41, s41, s38                  ; 16*ustart + 8*(w&3)
    v_lshrrev_b32 v8, 3, v0
    v_add_u32 v8, s41, v8
    v_mul_u32_u24 v8, 1152, v8
    s_and_b32 s41, s16, 1
    s_lshl_b32 s41, s41, 2
    v_lshrrev_b32 v9, 4, v0
    v_add_u32 v9, s41, v9
    v_and_b32 v10, 7, v0
    v_xor_b32 v9, v9, v10
    v_and_b32 v10, 15, v0
    v_lshrrev_b32 v11, 1, v10
    v_lshrrev_b32 v12, 4, v0
    v_xor_b32 v11, v11, v12
    v_lshlrev_b32 v11, 4, v11
    v_lshl_add_u32 v{VA}, v10, 7, v11
    v_xor_b32 v{VA+1}, 64, v{VA}
    v_add_u32 v{VA+2}, 49152, v{VA}
    v_add_u32 v{VA+3}, 49152, v{VA+1}
    v_add_u32 v{VA+4}, 98304, v{VA}
    v_add_u32 v{VA+5}, 98304, v{VA+1}
    v_lshl_add_u32 v0, v9, 4, v8
    s_lshr_b32 s41, s16, 2
    s_mul_i32 s41, s41, 12288
    s_lshl_b32 s35, s40, 10
    s_add_u32 s35, s35, s41
    """)
    def sdma(st):
        slot = st % 6
        for t in range(3):
            a(f"s_add_u32 m0, s35, {slot*24576 + t*4096}")
            a(f"s_mov_b32 s41, {st*128 + t*36864}")
            a(f"buffer_load_dwordx4 v0, s[8:11], s41 offen lds")
    SL = 3
    order = []
    for st in range(2):
        xload(st); sdma(st); order += [("X", st)] * 4 + [("D", st)] * 3
    if not PFALL:
        a(f"""
        s_cmp_lt_u32 s16, 4
        s_cselect_b32 s22, s24, s26
        s_cselect_b32 s23, s25, s27
        """)
        srd(a, 12, 22, 576 * 9216)
        a(f"""
        v_lshrrev_b32 v10, 4, v1
        v_mul_u32_u24 v8, 86, v10
        v_lshrrev_b32 v8, 8, v8
        v_mul_u32_u24 v9, 3, v8
        v_sub_u32 v9, v10, v9
        v_min_u32 v8, 17, v8
        v_mul_u32_u24 v8, 9216, v8
        v_mul_u32_u24 v9, 384, v9
        v_add_u32 v8, v8, v9
        s_lshl_b32 s40, s17, 2
        s_and_b32 s41, s16, 3
        s_add_u32 s40, s40, s41
        s_mul_i32 s40, s40, {18*9216}
        s_mul_i32 s41, s3, 1152
        s_add_u32 s40, s40, s41
        s_mov_b32 m0, 147456
        s_nop 0
        buffer_load_dword v8, s[12:15], s40 offen offset:128 lds
        buffer_load_dword v8, s[12:15], s40 offen offset:256 lds
        """)
        order += [("P", -1)] * 2
    NB = 2 * NU
    def srd_(gblk, s):
        if gblk >= 9 * NB: return
        st, blk = divmod(gblk, NB)
        u, comp = divmod(blk, 2)
        slot = st % 6
        buf = FR + (gblk % 3) * 8 + s * 4
        reg = VA + (slot // 2) * 2 + s
        off = (slot % 2) * 24576 + comp * 12288 + u * 2048
        a(f"ds_read_b128 v[{buf}:{buf+3}], v{reg} offset:{off}")
    def sacc(u, comp, j):
        return ACC + ((u * 2 + comp) * 2 + j) * 4
    def need(st):
        last = max(i for i, o in enumerate(order) if o[1] == st)
        return len(order) - 1 - last
    stamp(a, 1)
    a(f"s_waitcnt vmcnt({need(0)})\ns_barrier")
    stamp(a, 2)
    for g in range(2):
        for s in range(2): srd_(g, s)
    CN = XR
    for st in range(9):
        for blk in range(NB):
            g = st * NB + blk
            if blk == NB - 2 and st < 8:
                a(f"s_waitcnt vmcnt({need(st+1)})\ns_barrier")
            a(f"s_waitcnt lgkmcnt({2 if g + 1 < 9*NB else 0})")
            buf = FR + (g % 3) * 8
            u, comp = divmod(blk, 2)
            k = 0
            for j in range(2):
                for s in range(2):
                    c = sacc(u, comp, j)
                    src2 = "0" if (st == 0 and s == 0) else f"v[{c}:{c+3}]"
                    x = xreg(j, 2 * st + s)
                    a(f"{MFMA} v[{c}:{c+3}], v[{x}:{x+3}], v[{buf+4*s}:{buf+4*s+3}], {src2}")
                    if k % 2 == 0: srd_(g + 2, k // 2)
                    k += 1
            if blk == 0:
                for t in ([2, 3] if st == 0 else [st + SL]):
                    if t <= 8:
                        xload(t); sdma(t); order += [("X", t)] * 4 + [("D", t)] * 3
            if blk == 2 and st == 5:
                order += [("C", -1)] * (3 * NU + 1)
                a(f"""
                v_mbcnt_lo_u32_b32 v0, -1, 0
                v_mbcnt_hi_u32_b32 v0, -1, v0
                v_and_b32 v{CN+44}, 15, v0
                v_lshlrev_b32 v{CN+44}, 6, v{CN+44}
                v_lshrrev_b32 v{CN+45}, 4, v0
                v_lshl_add_u32 v{CN+45}, v{CN+45}, 3, v{CN+44}
                s_lshl_b32 s40, s37, 10
                s_add_u32 s40, s40, {WS_CONST}
                """)
                for u2 in range(NU):
                    b = CN + 8 * u2
                    a(f"s_add_u32 s41, s40, {u2*1024}")
                    a(f"buffer_load_dwordx4 v[{b}:{b+3}], v{CN+44}, s[4:7], s41 offen")
                    a(f"buffer_load_dwordx2 v[{b+4}:{b+5}], v{CN+44}, s[4:7], s41 offen offset:40")
                    a(f"buffer_load_dwordx2 v[{b+6}:{b+7}], v{CN+45}, s[4:7], s41 offen offset:32")
                a("s_min_u32 s46, s16, 4\ns_lshl_b32 s41, s46, 10\ns_add_u32 s41, s41, s40")
                a(f"buffer_load_dwordx4 v[{CN+40}:{CN+43}], v{CN+44}, s[4:7], s41 offen offset:16")
    TP = XR + 48
    EQ, TT, SW, TR = 0, 20480, 25600, 32768
    P = TP
    E = TP + 10
    t0 = TP + 20
    stamp(a, 3)
    a("s_waitcnt vmcnt(0)\ns_barrier\ns_nop 7")
    stamp(a, 4)
    def breg(u, comp, i):
        return sacc(u, comp, i // 4) + (i % 4)
    def cmadd(dr, di, lr, li, xr, xi, br, bi, t):
        a(f"v_fma_f32 v{t}, v{lr}, v{xr}, v{br}")
        a(f"v_fma_f32 v{t+1}, v{lr}, v{xi}, v{bi}")
        a(f"v_fma_f32 v{t+1}, v{li}, v{xr}, v{t+1}")
        a(f"v_fma_f32 v{dr}, -v{li}, v{xi}, v{t}")
        a(f"v_mov_b32 v{di}, v{t+1}")
    def cmadd4(dr, di, lr, li, xr, xi, br, bi):
        a(f"v_fma_f32 v{dr}, v{lr}, v{xr}, v{br}")
        a(f"v_fma_f32 v{di}, v{lr}, v{xi}, v{bi}")
        a(f"v_fma_f32 v{dr}, -v{li}, v{xi}, v{dr}")
        a(f"v_fma_f32 v{di}, v{li}, v{xr}, v{di}")
    for u in range(NU):
        cr, ci = CN + 8 * u + 2, CN + 8 * u + 3
        for i in range(8):
            br, bi = breg(u, 0, i), breg(u, 1, i)
            t = t0 + 2 * (i % 4)
            a(f"v_mul_f32 v{t}, v{ci}, v{bi}")
            a(f"v_mul_f32 v{t+1}, v{ci}, v{br}")
            a(f"v_fma_f32 v{br}, v{cr}, v{br}, -v{t}")
            a(f"v_fma_f32 v{bi}, v{cr}, v{bi}, v{t+1}")
    E2 = t0 + 8
    for i in range(1, 8):
        for u in range(NU):
            lr, li = CN + 8 * u, CN + 8 * u + 1
            if i == 1: xr, xi = breg(u, 0, 0), breg(u, 1, 0)
            else:
                src = (E if (i - 1) % 2 == 1 else E2) + 2 * u
                xr, xi = src, src + 1
            dst = (E if i % 2 == 1 else E2) + 2 * u
            cmadd4(dst, dst + 1, lr, li, xr, xi, breg(u, 0, i), breg(u, 1, i))
    A0 = t0 + 18; A1 = t0 + 19; A2 = t0 + 20; A3 = t0 + 21
    a(f"""
    v_and_b32 v{A2}, 15, v0
    v_lshrrev_b32 v{A3}, 4, v0
    s_lshl_b32 s40, s16, 9
    v_lshl_add_u32 v{A0}, v{A2}, 5, s40          ; w*512 + p*32
    v_lshl_add_u32 v{A1}, v{A3}, 3, v{A0}        ; + q*8
    v_cmp_eq_u32 s[50:51], 1, v{A3}
    v_cmp_eq_u32 s[52:53], 2, v{A3}
    v_cmp_eq_u32 s[54:55], 3, v{A3}
    """)
    for u in range(NU):
        a(f"ds_write_b64 v{A1}, v[{E+2*u}:{E+2*u+1}] offset:{EQ + u*4096}")
    Q = t0 + 24
    a("s_waitcnt lgkmcnt(0)")
    for u in range(NU):
        a(f"ds_read_b128 v[{Q+8*u}:{Q+8*u+3}], v{A0} offset:{EQ + u*4096}")
        a(f"ds_read_b128 v[{Q+8*u+4}:{Q+8*u+7}], v{A0} offset:{EQ + u*4096 + 16}")
    a(f"s_lshl_b32 s40, s16, 3\nv_lshl_add_u32 v{A1}, v{A2}, 6, s40")
    a("s_waitcnt lgkmcnt(0)")
    for step in range(1, 4):
        for u in range(NU):
            q = Q + 8 * u
            lr, li = CN + 8 * u + 4, CN + 8 * u + 5
            cmadd4(q + 2 * step, q + 2 * step + 1, lr, li, q + 2 * step - 2, q + 2 * step - 1, q + 2 * step, q + 2 * step + 1)
    for u in range(NU):
        q = Q + 8 * u
        a(f"ds_write_b64 v{A1}, v[{q+6}:{q+7}] offset:{TT + u*1024}")
        for c in range(2):
            a(f"v_cndmask_b32 v{P+2*u+c}, 0, v{q+c}, s[50:51]")
            a(f"v_cndmask_b32 v{P+2*u+c}, v{P+2*u+c}, v{q+2+c}, s[52:53]")
            a(f"v_cndmask_b32 v{P+2*u+c}, v{P+2*u+c}, v{q+4+c}, s[54:55]")
    a("s_waitcnt lgkmcnt(0)\ns_barrier")
    stamp(a, 5)
    a("s_cmp_ge_u32 s16, 5\ns_cbranch_scc1 K1_join")
    L32r, L32i, L256r, L256i = CN + 40, CN + 41, CN + 42, CN + 43
    TW = Q
    G = Q + 16
    S = t0
    a(f"""
    s_lshl_b32 s40, s16, 10
    v_lshl_add_u32 v{A1}, v{A2}, 6, s40          ; u*1024 + p*64
    """)
    for k in range(4):
        a(f"ds_read_b128 v[{TW+4*k}:{TW+4*k+3}], v{A1} offset:{TT + 16*k}")
    a(f"""
    s_add_u32 s40, s37, s16
    s_lshl_b32 s40, s40, 11
    s_add_u32 s40, s40, {WS_E}
    v_lshlrev_b32 v{A0}, 4, v{A2}
    s_waitcnt lgkmcnt(0)
    """)
    cur = (TW, TW + 1)
    for w in range(1, 8):
        d = S + 2 * (w % 2)
        cmadd4(d, d + 1, L32r, L32i, cur[0], cur[1], TW + 2 * w, TW + 2 * w + 1)
        cur = (d, d + 1)
    a(f"""
    v_mov_b32 v{G}, v{cur[0]}
    v_mov_b32 v{G+1}, 1
    v_mov_b32 v{G+2}, v{cur[1]}
    v_mov_b32 v{G+3}, 1
    s_lshl_b32 s41, s17, 8
    s_add_u32 s41, s41, s40
    s_mov_b64 exec, 0xffff
    buffer_store_dwordx4 v[{G}:{G+3}], v{A0}, s[4:7], s41 offen sc1
    s_mov_b64 exec, -1
    v_mov_b32 v{S}, 0
    v_mov_b32 v{S+1}, 0
    s_mov_b32 s47, 0
    s_cmp_eq_u32 s17, 0
    s_cbranch_scc1 K1_lbdone
    s_nop 1
    """)
    a.label("K1_lbloop")
    for k in range(7):
        a(f"buffer_load_dwordx4 v[{G+4*k}:{G+4*k+3}], v{A0}, s[4:7], s40 offen offset:{256*k} sc1")
    a(f"""
    v_mov_b32 v{S}, 0
    v_mov_b32 v{S+1}, 0
    v_mov_b32 v{S+4}, 1
    s_waitcnt vmcnt(0)
    """)
    for k in range(7):
        a(f"v_and_b32 v{S+4}, v{S+4}, v{G+4*k+1}")
        a(f"v_and_b32 v{S+4}, v{S+4}, v{G+4*k+3}")
        cmadd(S, S + 1, L256r, L256i, S, S + 1, G + 4 * k, G + 4 * k + 2, S + 2)
        if k < 6:
            a(f"s_cmp_eq_u32 s17, {k+1}\ns_cbranch_scc1 K1_lbchk")
    a.label("K1_lbchk")
    a(f"""
    v_cmp_ne_u32 vcc, 1, v{S+4}
    s_cbranch_vccz K1_lbdone
    s_sleep 2
    s_add_u32 s47, s47, 1
    s_cmp_lt_u32 s47, 0x40000
    s_cbranch_scc1 K1_lbloop
    """)
    a.label("K1_lbdone")
    a(f"""
    s_lshl_b32 s40, s16, 10
    v_lshl_add_u32 v{A1}, v{A2}, 3, s40
    ds_write_b64 v{A1}, v[{S}:{S+1}] offset:{SW}
    """)
    cur = (S, S + 1)
    for w in range(7):
        cmadd4(TW + 2 * w, TW + 2 * w + 1, L32r, L32i, cur[0], cur[1], TW + 2 * w, TW + 2 * w + 1)
        cur = (TW + 2 * w, TW + 2 * w + 1)
        a(f"ds_write_b64 v{A1}, v[{cur[0]}:{cur[1]}] offset:{SW + 128*(w+1)}")
    a.label("K1_join")
    a("s_waitcnt lgkmcnt(0)\ns_barrier")
    stamp(a, 6)
    a(f"""
    s_lshl_b32 s40, s16, 7
    v_lshl_add_u32 v{A1}, v{A2}, 3, s40
    """)
    for u in range(NU):
        a(f"ds_read_b64 v[{E+2*u}:{E+2*u+1}], v{A1} offset:{SW + u*1024}")
    a(f"""
    s_mul_i32 s40, s16, 10240
    s_add_u32 s40, s40, {TR}
    v_lshl_add_u32 v{A0}, v{A2}, 6, s40
    v_lshl_add_u32 v{A0}, v{A3}, 4, v{A0}
    v_lshl_add_u32 v{A1}, v{A3}, 9, s40
    v_bfe_u32 v{A2}, v0, 2, 2
    v_lshl_add_u32 v{A1}, v{A2}, 6, v{A1}
    v_and_b32 v{A2}, 3, v0
    v_lshl_add_u32 v{A1}, v{A2}, 4, v{A1}
    v_lshrrev_b32 v{A2}, 5, v0
    v_lshlrev_b32 v{A2}, 11, v{A2}
    v_and_b32 v{A3}, 31, v0
    v_lshl_add_u32 v{A2}, v{A3}, 4, v{A2}
    s_waitcnt lgkmcnt(0)
    """)
    for u in range(NU):
        cmadd4(P + 2 * u, P + 2 * u + 1, CN + 8 * u + 6, CN + 8 * u + 7, E + 2 * u, E + 2 * u + 1, P + 2 * u, P + 2 * u + 1)
    for i in range(8):
        for u in range(NU):
            lr, li = CN + 8 * u, CN + 8 * u + 1
            if i == 0: xr, xi = P + 2 * u, P + 2 * u + 1
            else: xr, xi = breg(u, 0, i - 1), breg(u, 1, i - 1)
            cmadd4(breg(u, 0, i), breg(u, 1, i), lr, li, xr, xi, breg(u, 0, i), breg(u, 1, i))
    for u in range(NU):
        q = Q + 8 * u
        for k in range(4):
            a(f"v_cvt_pk_bf16_f32 v{q+k}, v{breg(u,0,2*k)}, v{breg(u,0,2*k+1)}")
            a(f"v_cvt_pk_bf16_f32 v{q+4+k}, -v{breg(u,1,2*k)}, -v{breg(u,1,2*k+1)}")
        a(f"ds_write_b128 v{A0}, v[{q}:{q+3}] offset:{u*2048}")
        a(f"ds_write_b128 v{A0}, v[{q+4}:{q+7}] offset:{u*2048+1024}")
    a("s_waitcnt lgkmcnt(0)")
    for u in range(NU):
        for j in range(2):
            o = ACC + (u * 2 + j) * 4
            for e in range(2):
                a(f"ds_read_b64_tr_b16 v[{o+2*e}:{o+2*e+1}], v{A1} offset:{u*2048 + e*256 + j*8}")
    for u in range(NU):
        a(f"""
        s_add_u32 s40, s37, {u}
        s_lshr_b32 s41, s40, 2
        s_lshl_b32 s41, s41, 12
        s_and_b32 s42, s40, 3
        s_lshl_b32 s42, s42, 9
        s_add_u32 s41, s41, s42
        s_add_u32 s41, s41, s34
        s_add_u32 s41, s41, {144*1024}
        s_add_u32 s42, s41, 184320
        s_waitcnt lgkmcnt({min(15, 4*(NU-1-u))})
        """)
        for j in range(2):
            o = ACC + (u * 2 + j) * 4
            a(f"buffer_store_dwordx4 v[{o}:{o+3}], v{A2}, s[4:7], s{41+j} offen {H_STORE_FLAGS}")
    if STAMP: a("s_waitcnt vmcnt(0)")
    stamp(a, 7); stamp_out(a, 1, 16)
    a.label("K1_end")
    a("s_endpgm")
    return ("k1_kernel", 256, 512, 148480, a.text(), 256, 100, 256)

def gen_k2():
    a = Asm()
    stamp_init(a); stamp(a, 0)
    a("""
    s_cmp_ge_u32 s2, 240
    s_cbranch_scc1 K2_end
    s_load_dwordx2 s[20:21], s[0:1], 120
    s_load_dwordx2 s[24:25], s[0:1], 96      ; w_down
    s_load_dwordx4 s[28:31], s[0:1], 40
    v_lshrrev_b32 v1, 6, v0
    v_and_b32 v0, 63, v0
    v_readfirstlane_b32 s16, v1              ; wave8
    ; item = (id&7)*30 + (id>>3) ; split = item/48 ; tile = item%48 ; mt2 = tile/3 ; nt = tile%3
    s_and_b32 s3, s2, 7
    s_mul_i32 s3, s3, 30
    s_lshr_b32 s17, s2, 3
    s_add_u32 s3, s3, s17                    ; item
    s_mul_i32 s17, s3, 1366
    s_lshr_b32 s17, s17, 16                  ; split
    s_mul_i32 s18, s17, 48
    s_sub_u32 s18, s3, s18                   ; tile
    s_mul_i32 s19, s18, 21846
    s_lshr_b32 s19, s19, 16                  ; mt2
    s_mul_i32 s22, s19, 3
    s_sub_u32 s22, s18, s22                  ; nt
    s_and_b32 s23, s16, 3                    ; wm
    s_lshr_b32 s26, s16, 2                   ; h
    v_lshlrev_b32 v1, 4, v0
    s_lshl_b32 s32, s19, 2
    s_add_u32 s32, s32, s23
    s_mul_i32 s32, s32, 360
    s_mul_i32 s33, s17, 36
    s_add_u32 s32, s32, s33
    s_add_u32 s32, s32, s26
    s_lshl_b32 s32, s32, 10
    """)
    a(f"s_add_u32 s32, s32, {WS_H}\ns_add_u32 s33, s32, 184320")
    a("s_lshl_b32 s35, s16, 10\ns_waitcnt lgkmcnt(0)")
    srd(a, 4, 20, WS_SIZE)
    srd(a, 56, 20, WS_SIZE)
    ACC = 32; HF = 128; FR = 176; VA = 2; VD = 14
    def acc(nb, j): return ACC + (nb * 2 + j) * 4
    def hload(setn):
        for j in range(2):
            r = HF + setn * 8 + j * 4
            a(f"buffer_load_dwordx4 v[{r}:{r+3}], v1, s[56:59], s{32+j} offen")
        a("s_add_u32 s32, s32, 2048\ns_add_u32 s33, s33, 2048")
    a(f"""
    s_load_dwordx2 s[52:53], s[0:1], 104
    v_bfe_u32 v16, v0, 2, 2
    v_lshlrev_b32 v16, 3, v16
    v_and_b32 v17, 3, v0
    v_add_u32 v16, v16, v17
    v_mul_u32_u24 v16, 2304, v16
    v_lshrrev_b32 v17, 4, v0
    v_lshl_add_u32 v15, v17, 4, v16
    s_lshl_b32 s47, s19, 7
    s_lshl_b32 s50, s23, 5
    s_add_u32 s47, s47, s50
    s_mul_i32 s47, s47, 2304
    s_mul_i32 s50, s22, 768
    s_add_u32 s47, s47, s50
    s_mul_i32 s50, s26, 384
    s_add_u32 s47, s47, s50
    s_add_u32 s61, s47, {4*2304 + 256}
    s_and_b32 s50, s17, 1
    s_mul_i32 s50, s50, {4*2304}
    s_add_u32 s47, s47, s50
    s_lshr_b32 s50, s17, 1
    s_lshl_b32 s50, s50, 7
    s_add_u32 s60, s47, s50
    s_lshl_b32 s47, s18, 3
    s_add_u32 s47, s47, s16
    s_mul_i32 s47, s47, 6144
    s_add_u32 s62, s47, {WS_PART}
    s_lshl_b32 s47, s18, 8
    s_add_u32 s48, s47, {WS_FLAG}
    s_cmp_ge_u32 s16, 5
    s_cselect_b32 s49, 5, 0
    s_sub_u32 s49, s16, s49                  ; w8 % 5
    s_cmp_eq_u32 s49, s17
    s_cselect_b32 s61, s61, 0x7ff00000
    """)
    BS = 200
    def base_loads():
        for x in range(2):
            a(f"s_add_u32 s44, s{60+x}, {WS_BASE}")
            a(f"buffer_load_dwordx4 v[{BS+8*x}:{BS+8*x+3}], v15, s[4:7], s44 offen")
            a(f"buffer_load_dwordx4 v[{BS+8*x+4}:{BS+8*x+7}], v15, s[4:7], s44 offen offset:64")
    a("s_cmp_eq_u32 s17, 4\ns_cbranch_scc1 K2_ssm")
    for kind in ("ffn", "ssm"):
        if kind == "ffn":
            srd(a, 8, 24, 4608 * 1152)
            a(f"""
            v_lshrrev_b32 v16, 3, v0
            s_lshl_b32 s40, s16, 3
            v_add_u32 v16, s40, v16
            v_mul_u32_u24 v16, 1152, v16
            v_lshrrev_b32 v17, 4, v0
            v_lshlrev_b32 v17, 1, v17
            v_and_b32 v18, 7, v0
            v_xor_b32 v17, v17, v18
            v_lshl_add_u32 v{VD}, v17, 4, v16
            s_mul_i32 s38, s17, {1152*1152}
            s_mul_i32 s40, s22, 384
            s_add_u32 s38, s38, s40                ; soffset
            v_lshrrev_b32 v16, 2, v0
            v_lshlrev_b32 v16, 7, v16
            v_bfe_u32 v17, v0, 3, 2
            v_lshl_add_u32 v16, v17, 5, v16
            v_and_b32 v17, 3, v0
            v_lshl_add_u32 v16, v17, 3, v16
            s_lshl_b32 s40, s26, 12
            v_add_u32 v16, s40, v16
            """)
            for b in range(4):
                a(f"v_xor_b32 v{VA+b}, {b*32}, v16")
                a(f"v_add_u32 v{VA+4+b}, 49152, v{VA+b}")
                a(f"v_add_u32 v{VA+8+b}, 98304, v{VA+b}")
            def dma(slot):
                for pn in range(3):
                    a(f"s_add_u32 m0, s35, {slot*24576 + pn*8192 - pn*128}")
                    a("s_nop 0")
                    a(f"buffer_load_dwordx4 v{VD}, s[8:11], s38 offen offset:{pn*128} lds")
                a(f"s_add_u32 s38, s38, {64*1152}")
            def rd(g, k):
                g %= 72
                slot, nb = divmod(g, 12)
                buf = FR + (g % 6) * 4 + 2 * k
                reg = VA + (slot // 2) * 4 + (nb & 3)
                off = (slot % 2) * 24576 + (nb >> 2) * 8192 + k * 2048
                a(f"ds_read_b64_tr_b16 v[{buf}:{buf+1}], v{reg} offset:{off}")
            nrd = 2
            def disable():
                a("s_cselect_b32 s10, 0, s10")
        else:
            a.label("K2_ssm")
            srd(a, 8, 28, 576 * 1152)
            srd(a, 12, 30, 576 * 1152)
            a(f"""
            s_mul_i32 s40, s22, 192
            s_lshl_b32 s41, s16, 3
            s_add_u32 s40, s40, s41
            v_lshrrev_b32 v16, 3, v0
            v_add_u32 v16, s40, v16
            v_mul_u32_u24 v16, 1152, v16
            s_and_b32 s41, s16, 1
            s_lshl_b32 s41, s41, 2
            v_lshrrev_b32 v17, 4, v0
            v_add_u32 v17, s41, v17
            v_and_b32 v18, 7, v0
            v_xor_b32 v17, v17, v18
            v_lshl_add_u32 v{VD}, v17, 4, v16
            s_mov_b32 s38, 0
            v_and_b32 v16, 15, v0
            v_lshrrev_b32 v17, 1, v16
            v_lshrrev_b32 v18, 4, v0
            s_lshl_b32 s40, s26, 2
            v_add_u32 v18, s40, v18
            v_xor_b32 v17, v17, v18
            v_lshlrev_b32 v17, 4, v17
            v_lshl_add_u32 v{VA}, v16, 7, v17
            v_add_u32 v{VA+1}, 49152, v{VA}
            v_add_u32 v{VA+2}, 98304, v{VA}
            """)
            def dma(slot):
                comp = slot & 1
                for t in range(3):
                    a(f"s_add_u32 m0, s35, {slot*24576 + t*8192}")
                    a(f"s_add_u32 s41, s38, {t*64*1152}")
                    a(f"buffer_load_dwordx4 v{VD}, s[{8+4*comp}:{11+4*comp}], s41 offen lds")
                if comp: a("s_add_u32 s38, s38, 128")
            def rd(g, k):
                if k: return
                g %= 72
                slot, nb = divmod(g, 12)
                buf = FR + (g % 6) * 4
                reg = VA + (slot // 2)
                off = (slot % 2) * 24576 + nb * 2048
                a(f"ds_read_b128 v[{buf}:{buf+3}], v{reg} offset:{off}")
            nrd = 1
            def disable():
                a("s_cselect_b32 s10, 0, s10\ns_cselect_b32 s14, 0, s14")
        vm = VM(); waits = {}
        for st in range(max(LH, LW)):
            if st < LH: vm.op(("H", st), 2)
            if st < LW: vm.op(("W", st), 3)
            if st == 0: vm.op("B", 4)
        w0 = vm.need({("H", 0), ("W", 0)})
        for gs in range(18):
            vm.op(("H", gs + LH), 2); vm.op(("W", gs + LW), 3)
            waits.setdefault(gs % 6, []).append(vm.need({("H", gs + 1), ("W", gs + 1)}))
        for st in range(max(LH, LW)):
            if st < LH: hload(st)
            if st < LW: dma(st)
            if st == 0: base_loads()
        for r in range(96):
            a(f"v_mov_b32 v{ACC+r}, 0")
        a("s_mov_b32 s42, 0")
        stamp(a, 1)
        a(f"s_waitcnt vmcnt({w0})\ns_barrier")
        stamp(a, 2)
        for g in range(4):
            for k in range(2): rd(g, k)
        lab = f"K2_loop_{kind}"
        a.label(lab)
        for slot in range(6):
            for nb in range(12):
                g = slot * 12 + nb
                if nb == 8:
                    a(f"s_waitcnt vmcnt({min(waits[slot])})\ns_barrier")
                if PRIO and (nb - 8) % 3 == 0:
                    a(f"s_setprio {3 - ((nb + 4) % 12) // 3}")
                a(f"s_waitcnt lgkmcnt({3*nrd})")
                buf = FR + (g % 6) * 4
                for j in range(2):
                    c = acc(nb, j); hreg = HF + slot * 8 + j * 4
                    a(f"{MFMA} v[{c}:{c+3}], v[{buf}:{buf+3}], v[{hreg}:{hreg+3}], v[{c}:{c+3}]")
                    rd(g + 4, j)
                if nb == 0:
                    if slot + LH == 6:
                        a("s_cmp_eq_u32 s42, 2\ns_cselect_b32 s58, 0, s58")
                    hload((slot + LH) % 6)
                if nb == 2:
                    if slot + LW == 6:
                        a("s_cmp_eq_u32 s42, 2")
                        disable()
                    dma((slot + LW) % 6)
        stamp_dyn(a, 3, 42, 3)
        a(f"s_add_u32 s42, s42, 1\ns_cmp_lt_u32 s42, 3\ns_cbranch_scc1 {lab}")
        if kind == "ffn":
            a("s_branch K2_epi")
    a.label("K2_epi")
    a(f"""
    s_waitcnt vmcnt(0) lgkmcnt(0)
    s_barrier
    s_mul_i32 s40, s16, 12288
    v_add_u32 v2, s40, v1
    s_xor_b32 s41, s16, 4
    s_mul_i32 s41, s41, 12288
    v_add_u32 v3, s41, v1
    s_cmp_eq_u32 s26, 0
    s_cbranch_scc1 K2_lo
    """)
    for h in (1, 0):
        if h == 0: a.label("K2_lo")
        keep = ACC + 48 * h; send = ACC + 48 * (1 - h)
        for k in range(12):
            a(f"ds_write_b128 v2, v[{send+4*k}:{send+4*k+3}] offset:{k*1024}")
        a("s_waitcnt lgkmcnt(0)\ns_barrier")
        for k in range(12):
            a(f"ds_read_b128 v[{HF+4*k}:{HF+4*k+3}], v3 offset:{k*1024}")
        for k in range(12):
            a(f"s_waitcnt lgkmcnt({11-k})")
            for r in range(4):
                a(f"v_add_f32 v{HF+4*k+r}, v{HF+4*k+r}, v{keep+4*k+r}")
        if h == 1: a("s_branch K2_out")
    a.label("K2_out")
    stamp(a, 6)
    a(f"""
    s_mul_i32 s40, s17, {48*48*1024}
    s_add_u32 s40, s40, s62
    s_add_u32 s41, s40, 3072
    """)
    for nbp in range(3):
        for j in range(2):
            un = nbp * 2 + j
            T = ACC + un * 4
            own = a.newlabel("K2_own"); nxt = a.newlabel("K2_nx")
            a(f"s_cmp_eq_u32 s17, {un if un < 5 else 's49'}\ns_cbranch_scc1 {own}")
            for x in range(2):
                s_ = HF + ((2 * nbp + x) * 2 + j) * 4
                a(f"v_cvt_pk_bf16_f32 v{T+2*x}, v{s_}, v{s_+1}")
                a(f"v_cvt_pk_bf16_f32 v{T+2*x+1}, v{s_+2}, v{s_+3}")
            a(f"buffer_store_dwordx4 v[{T}:{T+3}], v1, s[4:7], s{40 + un//3} offen offset:{(un%3)*1024} sc1")
            a(f"s_branch {nxt}")
            a.label(own)
            b = BS + (8 if un == 5 else 0)
            for x in range(2):
                s_ = HF + ((2 * nbp + x) * 2 + j) * 4
                for r in range(4):
                    a(f"v_add_f32 v{b+4*x+r}, v{b+4*x+r}, v{s_+r}")
            a.label(nxt)
    srd(a, 8, 52, 2048 * 2304)
    a(f"""
    s_lshl_b32 s41, s17, 2
    s_add_u32 s40, s48, s41
    v_mov_b32 v2, 0
    v_mov_b32 v3, 1
    v_min_u32 v4, 4, v0
    v_lshlrev_b32 v4, 2, v4
    s_mov_b32 s47, 0
    s_lshl_b32 s43, s17, 10
    s_add_u32 s43, s43, s62
    s_add_u32 s44, s62, 5120
    s_cmp_eq_u32 s49, s17
    s_cselect_b32 s44, s44, 0x7ff00000
    s_waitcnt vmcnt(0)
    s_barrier
    """)
    stamp(a, 7)
    a(f"""
    s_cmp_lg_u32 s16, 0
    s_cbranch_scc1 K2_go
    s_mov_b64 exec, 1
    buffer_store_dword v3, v2, s[4:7], s40 offen sc1
    s_mov_b64 exec, -1
    """)
    a.label("K2_poll")
    a(f"""
    buffer_load_dword v5, v4, s[4:7], s48 offen sc1
    s_waitcnt vmcnt(0)
    v_cmp_ne_u32 vcc, 1, v5
    s_cbranch_vccz K2_go
    s_sleep {POLLSLEEP}
    s_add_u32 s47, s47, 1
    s_cmp_lt_u32 s47, 0x40000
    s_cbranch_scc1 K2_poll
    """)
    a.label("K2_go")
    a("s_barrier")
    stamp(a, 8)
    a("s_mov_b32 s45, s17")
    for k in range(4):
        a(f"""
        s_add_u32 s45, s45, 1
        s_cmp_eq_u32 s45, 5
        s_cselect_b32 s45, 0, s45
        s_mul_i32 s46, s45, {48*48*1024}
        s_add_u32 s47, s46, s43
        s_add_u32 s46, s46, s44
        """)
        for x in range(2):
            r = HF + (k * 2 + x) * 4
            a(f"buffer_load_dwordx4 v[{r}:{r+3}], v1, s[4:7], s{47-x} offen sc1")
    a("v_mov_b32 v3, 0xffff0000")
    for sp in range(4):
        for x in range(2):
            r = HF + (sp * 2 + x) * 4
            a(f"s_waitcnt vmcnt({7 - (sp*2+x)})")
            for k in range(4):
                a(f"v_lshlrev_b32 v5, 16, v{r+k}")
                a(f"v_and_b32 v6, v3, v{r+k}")
                a(f"v_add_f32 v{BS+8*x+2*k}, v{BS+8*x+2*k}, v5")
                a(f"v_add_f32 v{BS+8*x+2*k+1}, v{BS+8*x+2*k+1}, v6")
    for x in range(2):
        a(f"buffer_store_dwordx4 v[{BS+8*x}:{BS+8*x+3}], v15, s[8:11], s{60+x} offen")
        a(f"buffer_store_dwordx4 v[{BS+8*x+4}:{BS+8*x+7}], v15, s[8:11], s{60+x} offen offset:64")
    if STAMP: a("s_waitcnt vmcnt(0)")
    stamp(a, 9); stamp_out(a, 2, 16)
    a.label("K2_end")
    a("s_endpgm")
    a.label("CODE_END")
    return ("k2_kernel", 240, 512, 147456, a.text(), 216, 100, 216)

def gen_k3():
    a = Asm()
    a(f"""
    s_cmp_ge_u32 s2, 576
    s_cbranch_scc1 K3_end
    s_load_dwordx2 s[20:21], s[0:1], 120
    s_load_dwordx2 s[22:23], s[0:1], 104
    v_lshrrev_b32 v1, 6, v0
    v_and_b32 v0, 63, v0
    v_readfirstlane_b32 s16, v1
    s_lshl_b32 s3, s2, 2
    s_add_u32 s3, s3, s16
    s_mul_i32 s17, s3, 43691
    s_lshr_b32 s17, s17, 21                  ; tile
    s_mul_i32 s18, s17, 48
    s_sub_u32 s18, s3, s18                   ; wave8*6+un
    s_mul_i32 s19, s18, 10923
    s_lshr_b32 s19, s19, 16                  ; wave8
    s_mul_i32 s24, s19, 6
    s_sub_u32 s24, s18, s24
    s_mul_i32 s25, s17, 21846
    s_lshr_b32 s25, s25, 16                  ; mt2
    s_mul_i32 s26, s25, 3
    s_sub_u32 s26, s17, s26                  ; nt
    s_lshl_b32 s27, s25, 7
    s_and_b32 s28, s19, 3
    s_lshl_b32 s28, s28, 5
    s_add_u32 s27, s27, s28
    s_and_b32 s28, s24, 1
    s_lshl_b32 s28, s28, 2
    s_add_u32 s27, s27, s28
    s_mul_i32 s27, s27, 2304
    s_mul_i32 s28, s26, 768
    s_add_u32 s27, s27, s28
    s_lshr_b32 s28, s19, 2
    s_mul_i32 s28, s28, 384
    s_add_u32 s27, s27, s28
    s_lshr_b32 s28, s24, 1
    s_lshl_b32 s28, s28, 7
    s_add_u32 s27, s27, s28
    v_bfe_u32 v2, v0, 2, 2
    v_lshlrev_b32 v2, 3, v2
    v_and_b32 v3, 3, v0
    v_add_u32 v2, v2, v3
    v_mul_u32_u24 v2, 2304, v2
    v_lshrrev_b32 v3, 4, v0
    v_lshl_add_u32 v2, v3, 4, v2
    v_lshlrev_b32 v1, 4, v0
    s_lshl_b32 s29, s3, 10
    s_add_u32 s29, s29, {WS_PART}
    s_add_u32 s30, s27, {WS_BASE}
    s_waitcnt lgkmcnt(0)
    """)
    srd(a, 4, 20, WS_SIZE)
    srd(a, 8, 22, 2048 * 2304)
    a("buffer_load_dwordx4 v[4:7], v2, s[4:7], s30 offen")
    a("buffer_load_dwordx4 v[8:11], v2, s[4:7], s30 offen offset:64")
    for s in range(5):
        a(f"buffer_load_dwordx4 v[{12+4*s}:{15+4*s}], v1, s[4:7], s29 offen")
        a(f"s_add_u32 s29, s29, {48*48*1024}")
    a("v_mov_b32 v3, 0xffff0000")
    for s in range(5):
        a(f"s_waitcnt vmcnt({4-s})")
        for k in range(4):
            a(f"v_lshlrev_b32 v32, 16, v{12+4*s+k}")
            a(f"v_and_b32 v33, v3, v{12+4*s+k}")
            a(f"v_add_f32 v{4+2*k}, v{4+2*k}, v32")
            a(f"v_add_f32 v{5+2*k}, v{5+2*k}, v33")
    a("buffer_store_dwordx4 v[4:7], v2, s[8:11], s27 offen")
    a("buffer_store_dwordx4 v[8:11], v2, s[8:11], s27 offen offset:64")
    a.label("K3_end")
    a("s_endpgm")
    return ("k3_kernel", 576, 256, 0, a.text(), 40, 48, 40)

if __name__ == "__main__":
    out = sys.argv[1] if len(sys.argv) > 1 else "out.s"
    ks = [gen_k0(), gen_k1(), gen_k2()]
    open(out, "w").write(build_file(ks))
```

```python
import sys, os, copy
from asmlib import *
import gen as G1
from gen import WS_X, WS_H, WS_BASE, WS_CONST, WS_E, WS_PART, WS_SIZE, WS_FLAG, srd, MFMA, P
from gen import stamp, stamp_init, stamp_out, STAMP, ST0, XR, xreg

HST = os.environ.get("HST", "sc1")
LD = P("LD", 5); LX = P("LX", 2)
W2PF = P("W2PF", 1); W2G = P("W2G", 1)
S0 = P("S0", 6)
LP = P("LP", 10)
LH = P("LH", 3)
POLLSLEEP = P("POLLSLEEP", 2)
PRIO = P("PRIO", 0)
SBP = P("SBP", 0); SBSL = P("SBSL", 1)
LB = 2048
JUNK = LB + 147456

def stampc(a, i):
    stamp(a, i)
    if STAMP: a(f"s_memtime s[{ST0+2*(i+8)}:{ST0+2*(i+8)+1}]")

class Stream:
    def __init__(self, a):
        self.a = a; self.vm = []; self.vd = 0; self.lg = []; self.ld = 0
        self.slow = []
    def fork(self):
        c = Stream(self.a); c.vm = list(self.vm); c.vd = self.vd; c.lg = list(self.lg); c.ld = self.ld; c.slow = self.slow
        return c
    def vmi(self, tag, text): self.a(text); self.vm.append(tag)
    def lgi(self, tag, text): self.a(text); self.lg.append(tag)
    def _w(self, ops, done, tags, cap):
        idx = [i for i, t in enumerate(ops) if t in tags]
        if not idx or max(idx) < done: return None
        return min(cap, len(ops) - 1 - max(idx))
    def vmw(self, tags):
        n = self._w(self.vm, self.vd, tags, 63)
        if n is not None:
            self.a(f"s_waitcnt vmcnt({n})"); self.vd = len(self.vm) - n
    def lgw(self, tags):
        n = self._w(self.lg, self.ld, tags, 15)
        if n is not None:
            self.a(f"s_waitcnt lgkmcnt({n})"); self.ld = len(self.lg) - n
    def vm0(self): self.a("s_waitcnt vmcnt(0)"); self.vd = len(self.vm)
    def lg0(self): self.a("s_waitcnt lgkmcnt(0)"); self.ld = len(self.lg)
    def sb_setup(self, vE, vR, vFA, sfl):
        self.vE, self.vR, self.vFA, self.sfl = vE, vR, vFA, sfl
    def fork2(self):
        c = self.fork(); c.sb_setup(self.vE, self.vR, self.vFA, self.sfl); return c
    def sb_init(self, swave):
        self.a(f"""
        s_lshl_b32 s{self.sfl}, s{swave}, 8
        v_mov_b32 v{self.vE}, 0
        s_mov_b32 m0, s{self.sfl}
        v_and_b32 v{self.vFA}, 7, v0
        v_mul_u32_u24 v{self.vFA}, 260, v{self.vFA}
        """)
        self.lgi("sbw", f"ds_write_addtid_b32 v{self.vE}")
    def arrive(self):
        self.a(f"s_mov_b32 m0, s{self.sfl}\nv_add_u32 v{self.vE}, 1, v{self.vE}")
        self.lgi("sbw", f"ds_write_addtid_b32 v{self.vE}")
        if SBP == 2: self.a("s_setprio 0")
    def peek(self):
        self.lgi("peek", f"ds_read_b32 v{self.vR}, v{self.vFA}")
    def check(self):
        self.lgw({"peek"})
        sl = self.a.newlabel("SBs"); bk = self.a.newlabel("SBb")
        self.a(f"v_cmp_gt_u32 vcc, v{self.vE}, v{self.vR}\ns_cbranch_vccnz {sl}")
        if SBP == 1: self.a("s_setprio 1")
        self.a.label(bk)
        if SBP == 2: self.a("s_setprio 1")
        self.slow.append((sl, bk, self.vE, self.vR, self.vFA))
    def emit_slow(self):
        for sl, bk, vE, vR, vFA in self.slow:
            self.a.label(sl)
            if SBP == 1: self.a("s_setprio 0")
            self.a(f"""
            s_sleep {SBSL}
            ds_read_b32 v{vR}, v{vFA}
            s_waitcnt lgkmcnt(0)
            v_cmp_gt_u32 vcc, v{vE}, v{vR}
            s_cbranch_vccnz {sl}
            s_branch {bk}
            """)
        self.slow.clear()

def spread(ops, n, k):
    return ops[len(ops) * k // n: len(ops) * (k + 1) // n]

def gen_k1():
    a = Asm()
    stamp_init(a); stamp(a, 0)
    a("""
    s_cmp_ge_u32 s2, 256
    s_cbranch_scc1 K1_end
    s_load_dwordx2 s[20:21], s[0:1], 120
    s_load_dwordx4 s[24:27], s[0:1], 80
    s_load_dwordx4 s[28:31], s[0:1], 24
    s_load_dwordx2 s[58:59], s[0:1], 96
    s_load_dwordx4 s[60:63], s[0:1], 40
    v_lshrrev_b32 v1, 6, v0
    v_and_b32 v0, 63, v0                     ; lane
    v_readfirstlane_b32 s16, v1              ; wave
    s_and_b32 s3, s2, 7                      ; xcd
    s_lshr_b32 s18, s2, 3
    s_and_b32 s17, s18, 7                    ; mt
    s_lshr_b32 s18, s18, 3                   ; k4
    v_lshlrev_b32 v1, 4, v0                  ; lane*16
    s_lshl_b32 s19, s17, 3
    s_add_u32 s19, s19, s16                  ; 8mt + w
    s_mul_i32 s32, s19, 36864
    s_add_u32 s33, s32, 18432
    s_mul_i32 s34, s19, 368640
    """)
    a(f"s_add_u32 s34, s34, {WS_H}")
    a(f"s_lshl_b32 s35, s16, 10\ns_add_u32 s35, s35, {LB}")
    a("s_waitcnt lgkmcnt(0)")
    srd(a, 4, 20, WS_SIZE)
    a("s_cmp_eq_u32 s18, 3\ns_cbranch_scc1 K1_ssm")

    def xload_ops(S, st):
        ops = []
        for j in range(2):
            for e in range(2):
                r = xreg(j, 2 * st + e)
                def f(j=j, e=e, r=r):
                    if e == 0: a(f"s_add_u32 s{36+j}, s{32+j}, {WS_X + st*2048}")
                    S.vmi(("X", st), f"buffer_load_dwordx4 v[{r}:{r+3}], v1, s[4:7], s{36+j} offen offset:{1024*e}")
                ops.append(f)
        return ops

    WSZ = 576 * 9216
    srd(a, 8, 24, WSZ)
    srd(a, 12, 26, WSZ)
    ACC = 48; FR = 24; VA = 2; VD = 14; T0 = 16
    S = Stream(a); S.sb_setup(15, 20, 21, 46)
    a(f"""
    s_mul_i32 s39, s3, 9
    s_mul_i32 s38, s18, 3
    s_add_u32 s39, s39, s38
    s_lshl_b32 s38, s39, 7                   ; line*128
    s_lshl_b32 s39, s39, 11
    s_add_u32 s39, s39, s34
    v_lshrrev_b32 v16, 3, v0
    s_lshl_b32 s40, s16, 3
    v_add_u32 v16, s40, v16
    v_mul_u32_u24 v16, 9216, v16
    v_bfe_u32 v17, v0, 4, 1
    s_and_b32 s40, s16, 1
    s_lshl_b32 s40, s40, 1
    v_or_b32 v17, s40, v17
    v_lshlrev_b32 v17, 1, v17
    v_and_b32 v18, 7, v0
    v_xor_b32 v17, v17, v18
    v_lshl_add_u32 v{VD}, v17, 4, v16
    """)
    def dma_ops(gs):
        G, st = divmod(gs, 9)
        ops = []
        for m in range(2):
            def f(m=m):
                a(f"s_add_u32 m0, s35, {st*16384 + m*8192}")
                a(f"s_add_u32 s41, s38, {G*128 + st*589824}")
                S.vmi(("D", gs), f"buffer_load_dwordx4 v{VD}, s[{8+4*m}:{11+4*m}], s41 offen lds")
            ops.append(f)
        return ops
    for st in range(2):
        for f in xload_ops(S, st) + dma_ops(st): f()
    for st in range(2, LX):
        for f in xload_ops(S, st): f()
    S.sb_init(16)
    a(f"""
    v_lshrrev_b32 v16, 4, v0
    v_lshlrev_b32 v16, 10, v16
    v_bfe_u32 v17, v0, 2, 2
    v_lshl_add_u32 v16, v17, 7, v16
    v_bfe_u32 v17, v0, 3, 2
    v_lshl_add_u32 v16, v17, 5, v16
    v_and_b32 v17, 3, v0
    v_lshl_add_u32 v16, v17, 3, v16
    v_add_u32 v16, {LB}, v16
    v_lshlrev_b32 v22, 7, v0
    """)
    for b in range(4):
        a(f"v_xor_b32 v{VA+b}, {b*32}, v16")
        a(f"v_add_u32 v{VA+4+b}, 49152, v{VA+b}")
        a(f"v_add_u32 v{VA+8+b}, 98304, v{VA+b}")
    if W2PF:
        a(f"""
        s_lshl_b32 s40, s18, 3
        s_add_u32 s40, s40, s17
        s_lshl_b32 s40, s40, 3
        s_add_u32 s40, s40, s16
        s_min_u32 s40, s40, 161
        """)
        for x in range(2):
            a(f"""
            s_mul_i32 s41, s3, 30
            s_add_u32 s41, s41, {29*x}
            s_mul_i32 s41, s41, 1366
            s_lshr_b32 s41, s41, 16              ; split
            s_cmp_ge_u32 s40, 81
            s_cselect_b32 s22, s62, s60
            s_cselect_b32 s23, s63, s61
            s_cselect_b32 s42, 81, 0
            s_sub_u32 s42, s40, s42
            s_lshl_b32 s42, s42, 13
            s_mul_i32 s47, s41, {1152*1152}
            s_lshl_b32 s45, s40, 13
            s_add_u32 s47, s47, s45
            s_cmp_eq_u32 s41, 4
            s_cselect_b32 s{48+4*x}, s22, s58
            s_cselect_b32 s{49+4*x}, s23, s59
            s_cselect_b32 s{56+x}, s42, s47
            s_mov_b32 s{50+4*x}, {4608*1152}
            s_cselect_b32 s{50+4*x}, {576*1152}, s{50+4*x}
            s_mov_b32 s{51+4*x}, 0x20000
            """)
    NBLK = 27 * 8
    def rd(gblk, k):
        if gblk >= NBLK: return
        gs, blk = divmod(gblk, 8)
        st = gs % 9
        u, m = divmod(blk, 2)
        s, e = divmod(k, 2)
        buf = FR + (gblk % 3) * 8 + s * 4 + e * 2
        reg = VA + (st // 3) * 4 + u
        off = (st % 3) * 16384 + m * 8192 + s * 4096 + e * 512
        S.lgi(("F", gblk), f"ds_read_b64_tr_b16 v[{buf}:{buf+1}], v{reg} offset:{off}")
    def acc(blk, j):
        return ACC + (blk * 2 + j) * 4
    def epi_ops(v, G):
        ops = []
        for j in range(2):
            for uu in range(2):
                g = acc(4 * v + 2 * uu, j); u = acc(4 * v + 2 * uu + 1, j)
                for r in range(4):
                    ops.append(lambda g=g, u=u, r=r: a(f"v_mul_f32 v{g+r}, v{g+r}, v{u+r}"))
            T = acc(4 * v + 1, j)
            g0 = acc(4 * v, j); g1 = acc(4 * v + 2, j)
            ops.append(lambda T=T, g=g0: a(f"v_cvt_pk_bf16_f32 v{T}, v{g}, v{g+1}"))
            ops.append(lambda T=T, g=g0: a(f"v_cvt_pk_bf16_f32 v{T+1}, v{g+2}, v{g+3}"))
            ops.append(lambda T=T, g=g1: a(f"v_cvt_pk_bf16_f32 v{T+2}, v{g}, v{g+1}"))
            ops.append(lambda T=T, g=g1: a(f"v_cvt_pk_bf16_f32 v{T+3}, v{g+2}, v{g+3}"))
            def st_(T=T, j=j):
                a(f"s_add_u32 s45, s39, {j*184320 + G*2048}")
                S.vmi("S", f"buffer_store_dwordx4 v[{T}:{T+3}], v1, s[4:7], s45 offen offset:{1024*v} {HST}")
            ops.append(st_)
        return ops
    stamp(a, 1)
    S.vmw({("X", 0), ("D", 0)}); S.lg0(); a("s_barrier")
    stamp(a, 2)
    for g in range(2):
        for k in range(4): rd(g, k)
    dnext = 2
    for gs in range(27):
        G, st = divmod(gs, 9)
        side = {b: [] for b in range(8)}
        if st == 0 and G > 0:
            e = epi_ops(1, G - 1)
            for b in range(3): side[b] += spread(e, 3, b)
        if st == 8:
            e = epi_ops(0, G)
            for b in range(3): side[5 + b] += spread(e, 3, b)
        if G == 0 and st + LX <= 8:
            x = xload_ops(S, st + LX)
            side[0] += x[:2]; side[1] += x[2:]
        for pos in (3, 6):
            if dnext <= min(gs + LD, 26) and (pos == 3 or dnext < gs + LD or True):
                if pos == 6 and G == 0 and 1 <= st <= 5 and dnext >= gs + 3: continue
                side[pos] += dma_ops(dnext); dnext += 1
        if W2PF and G == W2G and st < 8:
            def pf(x=st & 1):
                a(f"s_mov_b32 m0, {JUNK}\ns_mov_b64 exec, 0xffff")
                S.vmi("P", f"buffer_load_dword v22, s[{48+4*x}:{51+4*x}], s{56+x} offen lds")
                a(f"s_mov_b64 exec, -1\ns_add_u32 s{56+x}, s{56+x}, 2048")
            side[4].append(pf)
        for blk in range(8):
            g = gs * 8 + blk
            if blk == 0: S.vmw({("X", gs)})
            if gs < 26:
                if blk == 2:
                    S.vmw({("D", gs + 1)}); S.arrive()
                if blk == 5: S.peek()
                if blk == 6: S.check()
            S.lgw({("F", g)})
            buf = FR + (g % 3) * 8
            k = 0
            for j in range(2):
                for s in range(2):
                    c = acc(blk, j)
                    src2 = "0" if (st == 0 and s == 0) else f"v[{c}:{c+3}]"
                    x = xreg(j, 2 * st + s)
                    a(f"{MFMA} v[{c}:{c+3}], v[{buf+4*s}:{buf+4*s+3}], v[{x}:{x+3}], {src2}")
                    rd(g + 2, k)
                    for o in spread(side[blk], 4, k): o()
                    k += 1
        if st == 8: stampc(a, 3 + G)
    a("s_nop 7")
    for o in epi_ops(1, 2): o()
    if STAMP: a("s_waitcnt vmcnt(0)")
    stamp(a, 6); stamp_out(a, 1, 16)
    a("s_endpgm")
    S.emit_slow()

    a.label("K1_ssm")
    NU = 5
    ACC = 32; FR = 8; VA = 2
    BSZ = 576 * 1152
    S = Stream(a)
    a(f"""
    s_cmp_lt_u32 s16, 4
    s_cselect_b32 s22, s28, s30
    s_cselect_b32 s23, s29, s31
    """)
    srd(a, 8, 22, BSZ)
    a(f"""
    s_mul_i32 s39, s3, 5
    s_min_u32 s39, s39, 31                   ; ustart
    s_and_b32 s40, s16, 3
    s_lshl_b32 s41, s40, 3
    s_lshl_b32 s38, s39, 4
    s_add_u32 s41, s41, s38                  ; 16*ustart + 8*(w&3)
    v_lshrrev_b32 v8, 3, v0
    v_add_u32 v8, s41, v8
    v_mul_u32_u24 v8, 1152, v8
    s_and_b32 s41, s16, 1
    s_lshl_b32 s41, s41, 2
    v_lshrrev_b32 v9, 4, v0
    v_add_u32 v9, s41, v9
    v_and_b32 v10, 7, v0
    v_xor_b32 v9, v9, v10
    v_and_b32 v10, 15, v0
    v_lshrrev_b32 v11, 1, v10
    v_lshrrev_b32 v12, 4, v0
    v_xor_b32 v11, v11, v12
    v_lshlrev_b32 v11, 4, v11
    v_lshl_add_u32 v{VA}, v10, 7, v11
    v_add_u32 v{VA}, {LB}, v{VA}
    v_xor_b32 v{VA+1}, 64, v{VA}
    v_add_u32 v{VA+2}, 49152, v{VA}
    v_add_u32 v{VA+3}, 49152, v{VA+1}
    v_add_u32 v{VA+4}, 98304, v{VA}
    v_add_u32 v{VA+5}, 98304, v{VA+1}
    v_lshl_add_u32 v0, v9, 4, v8
    s_lshr_b32 s41, s16, 2
    s_mul_i32 s41, s41, 12288
    s_lshl_b32 s35, s40, 10
    s_add_u32 s35, s35, s41
    s_add_u32 s35, s35, {LB}
    """)
    def sdma_ops(st):
        slot = st % 6
        ops = []
        for t in range(3):
            def f(t=t):
                a(f"s_add_u32 m0, s35, {slot*24576 + t*4096}")
                a(f"s_mov_b32 s41, {st*128 + t*36864}")
                S.vmi(("D", st), f"buffer_load_dwordx4 v0, s[8:11], s41 offen lds")
            ops.append(f)
        return ops
    for st in range(2):
        for f in xload_ops(S, st) + sdma_ops(st): f()
    a(f"""
    s_cmp_lt_u32 s16, 4
    s_cselect_b32 s22, s24, s26
    s_cselect_b32 s23, s25, s27
    """)
    srd(a, 12, 22, 576 * 9216)
    a(f"""
    v_lshrrev_b32 v10, 4, v1
    v_mul_u32_u24 v8, 86, v10
    v_lshrrev_b32 v8, 8, v8
    v_mul_u32_u24 v9, 3, v8
    v_sub_u32 v9, v10, v9
    v_min_u32 v8, 17, v8
    v_mul_u32_u24 v8, 9216, v8
    v_mul_u32_u24 v9, 384, v9
    v_add_u32 v8, v8, v9
    s_lshl_b32 s40, s17, 2
    s_and_b32 s41, s16, 3
    s_add_u32 s40, s40, s41
    s_mul_i32 s40, s40, {18*9216}
    s_mul_i32 s41, s3, 1152
    s_add_u32 s40, s40, s41
    s_mov_b32 m0, {JUNK}
    s_nop 0
    """)
    S.vmi("P", "buffer_load_dword v8, s[12:15], s40 offen offset:128 lds")
    S.vmi("P", "buffer_load_dword v8, s[12:15], s40 offen offset:256 lds")
    NB = 2 * NU
    def srd_(gblk, s):
        if gblk >= 9 * NB: return
        st, blk = divmod(gblk, NB)
        u, comp = divmod(blk, 2)
        slot = st % 6
        buf = FR + (gblk % 3) * 8 + s * 4
        reg = VA + (slot // 2) * 2 + s
        off = (slot % 2) * 24576 + comp * 12288 + u * 2048
        S.lgi(("F", gblk), f"ds_read_b128 v[{buf}:{buf+3}], v{reg} offset:{off}")
    def sacc(u, comp, j):
        return ACC + ((u * 2 + comp) * 2 + j) * 4
    stamp(a, 1)
    S.vmw({("X", 0), ("D", 0)}); a("s_barrier")
    stamp(a, 2)
    for g in range(2):
        for s in range(2): srd_(g, s)
    CN = XR
    bar = {0: [1], 1: [2], 2: [3, 4, 5], 5: [6, 7, 8]}
    issue = {0: [("X", 2), ("D", 2), ("D", 3)], 1: [("X", 3), ("D", 4), ("D", 5)], 2: [("X", 4)], 3: [("X", 5), ("D", 6), ("D", 7)],
             4: [("X", 6), ("D", 8)], 5: [("X", 7)], 6: [("X", 8)]}
    for st in range(9):
        side = []
        for kind, t in issue.get(st, []):
            side += xload_ops(S, t) if kind == "X" else sdma_ops(t)
        for blk in range(NB):
            g = st * NB + blk
            if blk == 0: S.vmw({("X", st)})
            if blk == NB - 2 and st in bar:
                S.vmw({("D", t) for t in bar[st]})
                if st == 2: S.lg0()
                a("s_barrier")
            S.lgw({("F", g)})
            buf = FR + (g % 3) * 8
            u, comp = divmod(blk, 2)
            k = 0
            for j in range(2):
                for s in range(2):
                    c = sacc(u, comp, j)
                    src2 = "0" if (st == 0 and s == 0) else f"v[{c}:{c+3}]"
                    x = xreg(j, 2 * st + s)
                    a(f"{MFMA} v[{c}:{c+3}], v[{x}:{x+3}], v[{buf+4*s}:{buf+4*s+3}], {src2}")
                    if k % 2 == 0: srd_(g + 2, k // 2)
                    if k == 1 and blk < 6:
                        for o in spread(side, 6, blk): o()
                    k += 1
            if blk == 7 and st == 6:
                a(f"""
                v_mbcnt_lo_u32_b32 v0, -1, 0
                v_mbcnt_hi_u32_b32 v0, -1, v0
                v_and_b32 v{CN+44}, 15, v0
                v_lshlrev_b32 v{CN+44}, 6, v{CN+44}
                v_lshrrev_b32 v{CN+45}, 4, v0
                v_lshl_add_u32 v{CN+45}, v{CN+45}, 3, v{CN+44}
                s_lshl_b32 s40, s39, 10
                s_add_u32 s40, s40, {WS_CONST}
                """)
                for u2 in range(NU):
                    b = CN + 8 * u2
                    a(f"s_add_u32 s41, s40, {u2*1024}")
                    S.vmi("C", f"buffer_load_dwordx4 v[{b}:{b+3}], v{CN+44}, s[4:7], s41 offen")
                    S.vmi("C", f"buffer_load_dwordx2 v[{b+4}:{b+5}], v{CN+44}, s[4:7], s41 offen offset:40")
                    S.vmi("C", f"buffer_load_dwordx2 v[{b+6}:{b+7}], v{CN+45}, s[4:7], s41 offen offset:32")
                a("s_min_u32 s46, s16, 4\ns_lshl_b32 s41, s46, 10\ns_add_u32 s41, s41, s40")
                S.vmi("C", f"buffer_load_dwordx4 v[{CN+40}:{CN+43}], v{CN+44}, s[4:7], s41 offen offset:16")
    ssm_post(a, NU, ACC, CN, sacc, 39)
    if STAMP: a("s_waitcnt vmcnt(0)")
    stamp(a, 7); stamp_out(a, 1, 16)
    a.label("K1_end")
    a("s_endpgm")
    return ("k1_kernel", 256, 512, JUNK + 1024, a.text(), 256, 100, 256)

def ssm_post(a, NU, ACC, CN, sacc, SU):
    TP = XR + 48
    B0 = LB + 3 * 24576
    EQ, TT, SW = B0, B0 + 20480, B0 + 25600
    P_ = TP; E = TP + 10; t0 = TP + 20
    stamp(a, 3)
    a("s_waitcnt vmcnt(0)\ns_nop 7")
    stamp(a, 4)
    def breg(u, comp, i): return sacc(u, comp, i // 4) + (i % 4)
    def cmadd(dr, di, lr, li, xr, xi, br, bi, t):
        a(f"v_fma_f32 v{t}, v{lr}, v{xr}, v{br}")
        a(f"v_fma_f32 v{t+1}, v{lr}, v{xi}, v{bi}")
        a(f"v_fma_f32 v{t+1}, v{li}, v{xr}, v{t+1}")
        a(f"v_fma_f32 v{dr}, -v{li}, v{xi}, v{t}")
        a(f"v_mov_b32 v{di}, v{t+1}")
    def cmadd4(dr, di, lr, li, xr, xi, br, bi):
        if dr == br:
            a(f"v_fmac_f32 v{dr}, v{lr}, v{xr}")
            a(f"v_fmac_f32 v{di}, v{lr}, v{xi}")
        else:
            a(f"v_fma_f32 v{dr}, v{lr}, v{xr}, v{br}")
            a(f"v_fma_f32 v{di}, v{lr}, v{xi}, v{bi}")
        a(f"v_fma_f32 v{dr}, -v{li}, v{xi}, v{dr}")
        a(f"v_fmac_f32 v{di}, v{li}, v{xr}")
    E2 = t0 + 8
    for i in range(1, 8):
        for u in range(NU):
            lr, li = CN + 8 * u, CN + 8 * u + 1
            if i == 1: xr, xi = breg(u, 0, 0), breg(u, 1, 0)
            else:
                src = (E if (i - 1) % 2 == 1 else E2) + 2 * u
                xr, xi = src, src + 1
            dst = (E if i % 2 == 1 else E2) + 2 * u
            cmadd4(dst, dst + 1, lr, li, xr, xi, breg(u, 0, i), breg(u, 1, i))
    for u in range(NU):
        cr, ci = CN + 8 * u + 2, CN + 8 * u + 3
        br, bi = E + 2 * u, E + 2 * u + 1
        t = E2 + 2 * u
        a(f"v_mul_f32 v{t}, v{ci}, v{bi}")
        a(f"v_mul_f32 v{t+1}, v{ci}, v{br}")
        a(f"v_fma_f32 v{br}, v{cr}, v{br}, -v{t}")
        a(f"v_fma_f32 v{bi}, v{cr}, v{bi}, v{t+1}")
    A0 = t0 + 18; A1 = t0 + 19; A2 = t0 + 20; A3 = t0 + 21
    a(f"""
    v_and_b32 v{A2}, 15, v0
    v_lshrrev_b32 v{A3}, 4, v0
    s_lshl_b32 s40, s16, 9
    s_add_u32 s40, s40, {B0}
    v_lshl_add_u32 v{A0}, v{A2}, 5, s40          ; w*512 + p*32
    v_lshl_add_u32 v{A1}, v{A3}, 3, v{A0}        ; + q*8
    v_cmp_eq_u32 s[50:51], 1, v{A3}
    v_cmp_eq_u32 s[52:53], 2, v{A3}
    v_cmp_eq_u32 s[54:55], 3, v{A3}
    """)
    for u in range(NU):
        a(f"ds_write_b64 v{A1}, v[{E+2*u}:{E+2*u+1}] offset:{u*4096}")
    Q = t0 + 24
    a("s_waitcnt lgkmcnt(0)")
    for u in range(NU):
        a(f"ds_read_b128 v[{Q+8*u}:{Q+8*u+3}], v{A0} offset:{u*4096}")
        a(f"ds_read_b128 v[{Q+8*u+4}:{Q+8*u+7}], v{A0} offset:{u*4096 + 16}")
    a(f"s_lshl_b32 s40, s16, 3\ns_add_u32 s40, s40, {TT}\nv_lshl_add_u32 v{A1}, v{A2}, 6, s40")
    a("s_waitcnt lgkmcnt(0)")
    for step in range(1, 4):
        for u in range(NU):
            q = Q + 8 * u
            lr, li = CN + 8 * u + 4, CN + 8 * u + 5
            cmadd4(q + 2 * step, q + 2 * step + 1, lr, li, q + 2 * step - 2, q + 2 * step - 1, q + 2 * step, q + 2 * step + 1)
    for u in range(NU):
        q = Q + 8 * u
        a(f"ds_write_b64 v{A1}, v[{q+6}:{q+7}] offset:{u*1024}")
    for u in range(NU):
        q = Q + 8 * u
        for c in range(2):
            a(f"v_cndmask_b32 v{P_+2*u+c}, 0, v{q+c}, s[50:51]")
            a(f"v_cndmask_b32 v{P_+2*u+c}, v{P_+2*u+c}, v{q+2+c}, s[52:53]")
            a(f"v_cndmask_b32 v{P_+2*u+c}, v{P_+2*u+c}, v{q+4+c}, s[54:55]")
    a("s_waitcnt lgkmcnt(0)\ns_barrier")
    stamp(a, 5)
    def scale_all():
        for u in range(NU):
            cr, ci = CN + 8 * u + 2, CN + 8 * u + 3
            for i in range(8):
                br, bi = breg(u, 0, i), breg(u, 1, i)
                t = E2 + 2 * (i % 4)
                a(f"v_mul_f32 v{t}, v{ci}, v{bi}")
                a(f"v_mul_f32 v{t+1}, v{ci}, v{br}")
                a(f"v_fma_f32 v{br}, v{cr}, v{br}, -v{t}")
                a(f"v_fma_f32 v{bi}, v{cr}, v{bi}, v{t+1}")
    L32r, L32i, L256r, L256i = CN + 40, CN + 41, CN + 42, CN + 43
    TW = Q; G = Q + 16; S_ = t0
    a("s_cmp_ge_u32 s16, 5\ns_cbranch_scc1 K1_pub")
    a(f"""
    s_lshl_b32 s40, s16, 10
    s_add_u32 s40, s40, {TT}
    v_lshl_add_u32 v{A1}, v{A2}, 6, s40          ; u*1024 + p*64
    """)
    for k in range(4):
        a(f"ds_read_b128 v[{TW+4*k}:{TW+4*k+3}], v{A1} offset:{16*k}")
    a(f"""
    s_add_u32 s40, s{SU}, s16
    s_lshl_b32 s40, s40, 11
    s_add_u32 s40, s40, {WS_E}
    v_lshlrev_b32 v{A0}, 4, v{A2}
    s_waitcnt lgkmcnt(0)
    """)
    cur = (TW, TW + 1)
    for w in range(1, 8):
        d = S_ + 2 * (w % 2)
        cmadd4(d, d + 1, L32r, L32i, cur[0], cur[1], TW + 2 * w, TW + 2 * w + 1)
        cur = (d, d + 1)
    a(f"""
    v_mov_b32 v{G}, v{cur[0]}
    v_mov_b32 v{G+1}, 1
    v_mov_b32 v{G+2}, v{cur[1]}
    v_mov_b32 v{G+3}, 1
    s_lshl_b32 s41, s17, 8
    s_add_u32 s41, s41, s40
    s_mov_b64 exec, 0xffff
    buffer_store_dwordx4 v[{G}:{G+3}], v{A0}, s[4:7], s41 offen sc1
    s_mov_b64 exec, -1
    """)
    a.label("K1_pub")
    scale_all()
    a("s_cmp_ge_u32 s16, 5\ns_cbranch_scc1 K1_join")
    a(f"""
    v_mov_b32 v{S_}, 0
    v_mov_b32 v{S_+1}, 0
    s_mov_b32 s47, 0
    s_cmp_eq_u32 s17, 0
    s_cbranch_scc1 K1_lbdone
    """)
    a.label("K1_lbloop")
    for k in range(7):
        a(f"buffer_load_dwordx4 v[{G+4*k}:{G+4*k+3}], v{A0}, s[4:7], s40 offen offset:{256*k} sc1")
    a(f"""
    v_mov_b32 v{S_}, 0
    v_mov_b32 v{S_+1}, 0
    v_mov_b32 v{S_+4}, 1
    s_waitcnt vmcnt(0)
    """)
    for k in range(7):
        a(f"v_and_b32 v{S_+4}, v{S_+4}, v{G+4*k+1}")
        a(f"v_and_b32 v{S_+4}, v{S_+4}, v{G+4*k+3}")
        cmadd(S_, S_ + 1, L256r, L256i, S_, S_ + 1, G + 4 * k, G + 4 * k + 2, S_ + 2)
        if k < 6:
            a(f"s_cmp_eq_u32 s17, {k+1}\ns_cbranch_scc1 K1_lbchk")
    a.label("K1_lbchk")
    a(f"""
    v_cmp_ne_u32 vcc, 1, v{S_+4}
    s_cbranch_vccz K1_lbdone
    s_sleep 2
    s_add_u32 s47, s47, 1
    s_cmp_lt_u32 s47, 0x40000
    s_cbranch_scc1 K1_lbloop
    """)
    a.label("K1_lbdone")
    a(f"""
    s_lshl_b32 s40, s16, 10
    s_add_u32 s40, s40, {SW}
    v_lshl_add_u32 v{A1}, v{A2}, 3, s40
    ds_write_b64 v{A1}, v[{S_}:{S_+1}]
    """)
    cur = (S_, S_ + 1)
    for w in range(7):
        cmadd4(TW + 2 * w, TW + 2 * w + 1, L32r, L32i, cur[0], cur[1], TW + 2 * w, TW + 2 * w + 1)
        cur = (TW + 2 * w, TW + 2 * w + 1)
        a(f"ds_write_b64 v{A1}, v[{cur[0]}:{cur[1]}] offset:{128*(w+1)}")
    a.label("K1_join")
    a("s_waitcnt lgkmcnt(0)\ns_barrier")
    stamp(a, 6)
    a(f"""
    s_lshl_b32 s40, s16, 7
    s_add_u32 s40, s40, {SW}
    v_lshl_add_u32 v{A1}, v{A2}, 3, s40
    """)
    for u in range(NU):
        a(f"ds_read_b64 v[{E+2*u}:{E+2*u+1}], v{A1} offset:{u*1024}")
    a(f"""
    s_mul_i32 s40, s16, 10240
    s_add_u32 s40, s40, {LB}
    v_lshl_add_u32 v{A0}, v{A2}, 6, s40
    v_lshl_add_u32 v{A0}, v{A3}, 4, v{A0}
    v_lshl_add_u32 v{A1}, v{A3}, 9, s40
    v_bfe_u32 v{A2}, v0, 2, 2
    v_lshl_add_u32 v{A1}, v{A2}, 6, v{A1}
    v_and_b32 v{A2}, 3, v0
    v_lshl_add_u32 v{A1}, v{A2}, 4, v{A1}
    v_lshrrev_b32 v{A2}, 5, v0
    v_lshlrev_b32 v{A2}, 11, v{A2}
    v_and_b32 v{A3}, 31, v0
    v_lshl_add_u32 v{A2}, v{A3}, 4, v{A2}
    s_waitcnt lgkmcnt(0)
    """)
    for u in range(NU):
        cmadd4(P_ + 2 * u, P_ + 2 * u + 1, CN + 8 * u + 6, CN + 8 * u + 7, E + 2 * u, E + 2 * u + 1, P_ + 2 * u, P_ + 2 * u + 1)
    for i in range(8):
        for u in range(NU):
            lr, li = CN + 8 * u, CN + 8 * u + 1
            if i == 0: xr, xi = P_ + 2 * u, P_ + 2 * u + 1
            else: xr, xi = breg(u, 0, i - 1), breg(u, 1, i - 1)
            cmadd4(breg(u, 0, i), breg(u, 1, i), lr, li, xr, xi, breg(u, 0, i), breg(u, 1, i))
    for u in range(NU):
        q = Q + 8 * u
        for k in range(4):
            a(f"v_cvt_pk_bf16_f32 v{q+k}, v{breg(u,0,2*k)}, v{breg(u,0,2*k+1)}")
            a(f"v_cvt_pk_bf16_f32 v{q+4+k}, -v{breg(u,1,2*k)}, -v{breg(u,1,2*k+1)}")
        a(f"ds_write_b128 v{A0}, v[{q}:{q+3}] offset:{u*2048}")
        a(f"ds_write_b128 v{A0}, v[{q+4}:{q+7}] offset:{u*2048+1024}")
    a("s_waitcnt lgkmcnt(0)")
    for u in range(NU):
        for j in range(2):
            o = ACC + (u * 2 + j) * 4
            for e in range(2):
                a(f"ds_read_b64_tr_b16 v[{o+2*e}:{o+2*e+1}], v{A1} offset:{u*2048 + e*256 + j*8}")
    for u in range(NU):
        a(f"""
        s_add_u32 s40, s{SU}, {u}
        s_lshr_b32 s41, s40, 2
        s_lshl_b32 s41, s41, 12
        s_and_b32 s42, s40, 3
        s_lshl_b32 s42, s42, 9
        s_add_u32 s41, s41, s42
        s_add_u32 s41, s41, s34
        s_add_u32 s41, s41, {144*1024}
        s_add_u32 s42, s41, 184320
        s_waitcnt lgkmcnt({min(15, 4*(NU-1-u))})
        """)
        for j in range(2):
            o = ACC + (u * 2 + j) * 4
            a(f"buffer_store_dwordx4 v[{o}:{o+3}], v{A2}, s[4:7], s{41+j} offen {HST}")


def gen_k2():
    a = Asm()
    stamp_init(a); stamp(a, 0)
    a("""
    s_cmp_ge_u32 s2, 240
    s_cbranch_scc1 K2_end
    s_load_dwordx2 s[20:21], s[0:1], 120
    s_load_dwordx2 s[24:25], s[0:1], 96      ; w_down
    s_load_dwordx4 s[28:31], s[0:1], 40
    s_load_dwordx2 s[52:53], s[0:1], 104
    v_lshrrev_b32 v1, 6, v0
    v_and_b32 v0, 63, v0
    v_readfirstlane_b32 s16, v1              ; wave8
    s_and_b32 s3, s2, 7
    s_mul_i32 s3, s3, 30
    s_lshr_b32 s17, s2, 3
    s_add_u32 s3, s3, s17                    ; item
    s_mul_i32 s17, s3, 1366
    s_lshr_b32 s17, s17, 16                  ; split
    s_mul_i32 s18, s17, 48
    s_sub_u32 s18, s3, s18                   ; tile
    s_mul_i32 s19, s18, 21846
    s_lshr_b32 s19, s19, 16                  ; mt2
    s_mul_i32 s22, s19, 3
    s_sub_u32 s22, s18, s22                  ; nt
    s_and_b32 s23, s16, 3                    ; wm
    s_lshr_b32 s26, s16, 2                   ; h
    v_lshlrev_b32 v1, 4, v0
    s_lshl_b32 s32, s19, 2
    s_add_u32 s32, s32, s23
    s_mul_i32 s32, s32, 360
    s_mul_i32 s33, s17, 36
    s_add_u32 s32, s32, s33
    s_add_u32 s32, s32, s26
    s_lshl_b32 s32, s32, 10
    """)
    a(f"s_add_u32 s32, s32, {WS_H}\ns_add_u32 s33, s32, 184320")
    a(f"s_lshl_b32 s35, s16, 10\ns_add_u32 s35, s35, {LB}\ns_waitcnt lgkmcnt(0)")
    srd(a, 4, 20, WS_SIZE)
    T = 18 - S0
    ACC = 32; HF = 128; FR = HF + 8 * T; VA = 2; VD = 14; VO = 15; VC0 = 19; VC1 = 20
    BS = FR + 24
    assert BS + 16 <= 256 or True
    NP = 19; CA = 11
    pieces = []
    for st in range(S0): pieces += [(st, 0), (st, 1), (st, 2)]
    for st in range(S0, 18): pieces += [(st, 0), (st, 1)]
    PH2 = len(pieces)
    for st in range(S0, 18): pieces += [(st, 2)]
    NPC = len(pieces)
    def acc(nb, j): return ACC + (nb * 2 + j) * 4
    def hreg(st, j): return HF + (st % T) * 8 + j * 4
    sync = [(0, 1, 3), (2, 3, 5)]
    A = 3
    cov = 5
    while cov < NPC - 1:
        c = cov
        ar = max(sync[-1][1] + 0, c - 2)
        ncov = min(cov + 3, NPC - 1)
        if cov < PH2 <= ncov + 1 and False: pass
        sync.append((ar, c, ncov)); cov = ncov
    ev = sorted(sync)
    ev = [e for e in ev if e[1] <= PH2]
    cov = ev[-1][2]
    assert cov >= PH2 + 2, (cov, PH2)
    ev.append((PH2 + 1, PH2 + 2, min(NPC - 1, PH2 + 5))); cov = ev[-1][2]
    while cov < NPC - 1:
        ncov = min(cov + 3, NPC - 1)
        ev.append((max(ev[-1][1], cov - 2), cov, ncov)); cov = ncov
    arr = {e[0]: e for e in ev}; chk = {e[1]: e for e in ev}
    assert len(arr) == len(ev) and len(chk) == len(ev)
    for x, y in zip(ev, ev[1:]): assert x[1] <= y[0] and y[0] < y[1] and y[1] <= x[2], (x, y)
    def safe_after(p):
        for ar, c, _ in ev:
            if ar >= p: return c
        return 10 ** 9
    issue_at = {}
    npro = 4
    nxt = npro
    slot_of = {}; free_at = {s: -1 for s in range(NP)}
    def alloc(i, t):
        cands = [s for s in range(NP) if free_at[s] <= t]
        if safe_after(i) > PH2 - 0: cands = [s for s in cands if s < CA]
        else: cands = sorted(cands, key=lambda s: -s)
        if not cands: return None
        s = cands[0]; slot_of[i] = s; free_at[s] = safe_after(i); return s
    for i in range(npro): alloc(i, -1)
    for t in range(NPC):
        n = 0
        issue_at[t] = []
        while nxt < NPC and nxt <= t + LP and n < 2:
            if alloc(nxt, t) is None: break
            issue_at[t].append(nxt); nxt += 1; n += 1
    assert nxt == NPC
    for ar, c, cv in ev:
        for i in range(cv + 1):
            if i >= npro: assert min(t for t in issue_at if i in issue_at[t]) < ar, (i, ar)
    first_piece = {}
    for i, (st, pn) in enumerate(pieces): first_piece.setdefault(st, i)
    a(f"""
    v_bfe_u32 v16, v0, 2, 2
    v_lshlrev_b32 v16, 3, v16
    v_and_b32 v17, 3, v0
    v_add_u32 v16, v16, v17
    v_mul_u32_u24 v16, 2304, v16
    v_lshrrev_b32 v17, 4, v0
    v_lshl_add_u32 v{VO}, v17, 4, v16
    """)
    a("s_cmp_eq_u32 s17, 4\ns_cbranch_scc1 K2_ssm")
    for kind in ("ffn", "ssm"):
        S = Stream(a); S.sb_setup(16, 17, 18, 46)
        if kind == "ffn":
            srd(a, 8, 24, 4608 * 1152)
            a(f"""
            v_lshrrev_b32 v21, 3, v0
            s_lshl_b32 s40, s16, 3
            v_add_u32 v21, s40, v21
            v_mul_u32_u24 v21, 1152, v21
            v_lshrrev_b32 v22, 4, v0
            v_lshlrev_b32 v22, 1, v22
            v_and_b32 v23, 7, v0
            v_xor_b32 v22, v22, v23
            v_lshl_add_u32 v{VD}, v22, 4, v21
            s_mul_i32 s38, s17, {1152*1152}
            s_mul_i32 s40, s22, 384
            s_add_u32 s38, s38, s40
            """)
            def setup2():
                a(f"""
                v_lshrrev_b32 v21, 2, v0
                v_lshlrev_b32 v21, 7, v21
                v_bfe_u32 v22, v0, 3, 2
                v_lshl_add_u32 v21, v22, 5, v21
                v_and_b32 v22, 3, v0
                v_lshl_add_u32 v21, v22, 3, v21
                s_lshl_b32 s40, s26, 12
                s_add_u32 s40, s40, {LB}
                v_add_u32 v21, s40, v21
                """)
                for b in range(4):
                    a(f"v_xor_b32 v{VA+b}, {b*32}, v21")
                    a(f"v_add_u32 v{VA+4+b}, 57344, v{VA+b}")
                    a(f"v_add_u32 v{VA+8+b}, 114688, v{VA+b}")
            def dma(S, i):
                st, pn = pieces[i]
                a(f"s_add_u32 m0, s35, {slot_of[i]*8192}")
                a(f"s_add_u32 s41, s38, {st*64*1152 + pn*128}")
                S.vmi(("W", i), f"buffer_load_dwordx4 v{VD}, s[8:11], s41 offen lds")
            def rd(S, f, k):
                if f >= 4 * NPC: return
                i, b = divmod(f, 4); sl = slot_of[i]
                buf = FR + (f % 6) * 4 + 2 * k
                S.lgi(("F", f), f"ds_read_b64_tr_b16 v[{buf}:{buf+1}], v{VA + (sl//7)*4 + b} offset:{(sl%7)*8192 + k*2048}")
        else:
            a.label("K2_ssm")
            srd(a, 8, 28, 576 * 1152)
            srd(a, 12, 30, 576 * 1152)
            a(f"""
            s_mul_i32 s40, s22, 192
            s_lshl_b32 s41, s16, 3
            s_add_u32 s40, s40, s41
            v_lshrrev_b32 v21, 3, v0
            v_add_u32 v21, s40, v21
            v_mul_u32_u24 v21, 1152, v21
            s_and_b32 s41, s16, 1
            s_lshl_b32 s41, s41, 2
            v_lshrrev_b32 v22, 4, v0
            v_add_u32 v22, s41, v22
            v_and_b32 v23, 7, v0
            v_xor_b32 v22, v22, v23
            v_lshl_add_u32 v{VD}, v22, 4, v21
            """)
            def setup2():
                a(f"""
                v_and_b32 v21, 15, v0
                v_lshrrev_b32 v22, 1, v21
                v_lshrrev_b32 v23, 4, v0
                s_lshl_b32 s40, s26, 2
                v_add_u32 v23, s40, v23
                v_xor_b32 v22, v22, v23
                v_lshlrev_b32 v22, 4, v22
                v_lshl_add_u32 v{VA}, v21, 7, v22
                v_add_u32 v{VA}, {LB}, v{VA}
                v_add_u32 v{VA+1}, 57344, v{VA}
                v_add_u32 v{VA+2}, 114688, v{VA}
                """)
            def dma(S, i):
                st, pn = pieces[i]
                comp = st & 1
                a(f"s_add_u32 m0, s35, {slot_of[i]*8192}")
                a(f"s_mov_b32 s41, {(st>>1)*128 + pn*64*1152}")
                S.vmi(("W", i), f"buffer_load_dwordx4 v{VD}, s[{8+4*comp}:{11+4*comp}], s41 offen lds")
            def rd(S, f, k):
                if k or f >= 4 * NPC: return
                i, b = divmod(f, 4); sl = slot_of[i]
                buf = FR + (f % 6) * 4
                S.lgi(("F", f), f"ds_read_b128 v[{buf}:{buf+3}], v{VA + sl//7} offset:{(sl%7)*8192 + b*2048}")
        def hload_ops(S, st):
            ops = []
            for j in range(2):
                def f(j=j):
                    r = hreg(st, j)
                    a(f"s_add_u32 s36, s{32+j}, {st*2048}")
                    S.vmi(("H", st), f"buffer_load_dwordx4 v[{r}:{r+3}], v1, s[4:7], s36 offen")
                ops.append(f)
            return ops
        for f in hload_ops(S, 0): f()
        dma(S, 0); dma(S, 1); dma(S, 2)
        for f in hload_ops(S, 1): f()
        dma(S, 3)
        S.sb_init(16)
        setup2()
        unit_setup(a, VC0, VC1, CA)
        stamp(a, 1)
        S.vmw({("H", 0), ("W", 0), ("W", 1)}); S.lg0(); a("s_barrier")
        stamp(a, 2)
        for f in range(4):
            for k in range(2): rd(S, f, k)
        hn = [2]
        def piece(S, i, extra):
            st, pn = pieces[i]
            side = []
            if i < PH2:
                n = 0
                while hn[0] < 18 and hn[0] <= st + LH and n < 1:
                    side += hload_ops(S, hn[0]); hn[0] += 1; n += 1
            for x in issue_at[i]: side.append(lambda x=x: dma(S, x))
            side += extra
            if i in chk: S.check()
            if i in arr:
                S.vmw({("W", x) for x in range(arr[i][2] + 1)}); S.arrive()
            S.vmw({("H", st)})
            for b in range(4):
                f = 4 * i + b
                if b == 2 and (i + 1) in chk: S.peek()
                S.lgw({("F", f)})
                buf = FR + (f % 6) * 4
                for j in range(2):
                    c = acc(4 * pn + b, j); h = hreg(st, j)
                    src2 = "0" if st == 0 else f"v[{c}:{c+3}]"
                    a(f"{MFMA} v[{c}:{c+3}], v[{buf}:{buf+3}], v[{h}:{h+3}], {src2}")
                    rd(S, f + 4, j)
                    for o in spread(side, 8, 2 * b + j): o()
        for i in range(PH2):
            piece(S, i, [])
            if i == 17: stampc(a, 3)
        stampc(a, 4)
        a(f"s_cmp_eq_u32 s26, 1\ns_cbranch_scc1 K2_{kind}_h1")
        S_ = S
        for h in range(2):
            S = S_.fork2()
            if h == 1: a.label(f"K2_{kind}_h1")
            keep = ACC + 32 * h; send = ACC + 32 * (1 - h)
            ex = {}
            nop = [lambda: None] * 4
            ex[PH2] = nop + [lambda k=k: S.lgi("cw", f"ds_write_b128 v{VC0}, v[{send+4*k}:{send+4*k+3}] offset:{k*1024}") for k in range(8)]
            ex[PH2 + 2] = [lambda k=k: S.lgi(("cr", k), f"ds_read_b128 v[{send+4*k}:{send+4*k+3}], v{VC1} offset:{k*1024}") for k in range(8)]
            adds = []
            for k in range(8):
                def f(k=k):
                    S.lgw({("cr", k)})
                    for r in range(4): a(f"v_add_f32 v{keep+4*k+r}, v{keep+4*k+r}, v{send+4*k+r}")
                adds.append(f)
            ex[PH2 + 3] = adds
            B0 = hreg(S0, 0); B1 = hreg(S0 + 1, 0)
            def bl():
                for x, b in ((0, B0), (1, B1)):
                    a(f"s_add_u32 s44, s{60+x}, {WS_BASE}")
                    S.vmi("B", f"buffer_load_dwordx4 v[{b}:{b+3}], v{VO}, s[4:7], s44 offen")
                    S.vmi("B", f"buffer_load_dwordx4 v[{b+4}:{b+7}], v{VO}, s[4:7], s44 offen offset:64")
            ex[PH2 + 2] = ex[PH2 + 2] + [bl]
            OWN = hreg(S0 + 2, 0)
            def unit_out(un, src0, src1, T_, dst):
                nx = a.newlabel("K2_nx")
                for x, s_ in enumerate((src0, src1)):
                    a(f"v_cvt_pk_bf16_f32 v{T_+2*x}, v{s_}, v{s_+1}")
                    a(f"v_cvt_pk_bf16_f32 v{T_+2*x+1}, v{s_+2}, v{s_+3}")
                a(f"s_cmp_eq_u32 s49, {un % 5}\ns_cselect_b32 s44, 0x7ff00000, s{54 + un//3}")
                S.vmi("U", f"buffer_store_dwordx4 v[{T_}:{T_+3}], v1, s[4:7], s44 offen offset:{(un%3)*1024} sc1")
                a(f"s_cbranch_scc0 {nx}")
                for x, s_ in enumerate((src0, src1)):
                    for r in range(4): a(f"v_mov_b32 v{dst+4*x+r}, v{s_+r}")
                a.label(nx)
            outs = []
            for nbp in range(2):
                for j in range(2):
                    un = nbp * 2 + j
                    outs.append(lambda un=un, nbp=nbp, j=j: unit_out(un, keep + ((2*nbp)*2 + j)*4, keep + ((2*nbp+1)*2 + j)*4, send + 4*un, OWN))
            def zown():
                for r in range(8): a(f"v_mov_b32 v{OWN+r}, 0")
            ex[PH2 + 4] = [zown] + outs
            for i in range(PH2, NPC):
                piece(S, i, ex.get(i, []))
            stampc(a, 5)
            keep2 = ACC + 64 + 16 * h; send2 = ACC + 64 + 16 * (1 - h)
            a("s_nop 7")
            for k in range(4):
                a(f"ds_write_b128 v{VC0}, v[{send2+4*k}:{send2+4*k+3}] offset:{k*1024}")
            S.vmw({"B"})
            for r in range(8): a(f"v_add_f32 v{B0+r}, v{B0+r}, v{OWN+r}")
            a("s_waitcnt lgkmcnt(0)\ns_barrier")
            for k in range(4):
                a(f"ds_read_b128 v[{send2+4*k}:{send2+4*k+3}], v{VC1} offset:{k*1024}")
            for r in range(8): a(f"v_mov_b32 v{OWN+r}, 0")
            for k in range(4):
                a(f"s_waitcnt lgkmcnt({3-k})")
                for r in range(4): a(f"v_add_f32 v{keep2+4*k+r}, v{keep2+4*k+r}, v{send2+4*k+r}")
            for j in range(2):
                unit_out(4 + j, keep2 + j * 4, keep2 + 8 + j * 4, send2 + 4 * j, OWN)
            for r in range(8): a(f"v_add_f32 v{B1+r}, v{B1+r}, v{OWN+r}")
            a("s_branch K2_fin")
        S_.emit_slow()
    a.label("K2_fin")
    stamp(a, 6)
    B0 = hreg(S0, 0); B1 = hreg(S0 + 1, 0)
    srd(a, 8, 52, 2048 * 2304)
    a(f"""
    s_lshl_b32 s41, s17, 2
    s_add_u32 s40, s48, s41
    v_mov_b32 v2, 0
    v_mov_b32 v3, 1
    v_min_u32 v4, 4, v0
    v_lshlrev_b32 v4, 2, v4
    s_mov_b32 s47, 0
    s_waitcnt vmcnt(0)
    s_barrier
    """)
    stamp(a, 7)
    a(f"""
    s_cmp_lg_u32 s16, 0
    s_cbranch_scc1 K2_go
    s_mov_b64 exec, 1
    buffer_store_dword v3, v2, s[4:7], s40 offen sc1
    s_mov_b64 exec, -1
    """)
    a.label("K2_poll")
    a(f"""
    buffer_load_dword v5, v4, s[4:7], s48 offen sc1
    s_waitcnt vmcnt(0)
    v_cmp_ne_u32 vcc, 1, v5
    s_cbranch_vccz K2_go
    s_sleep {POLLSLEEP}
    s_add_u32 s47, s47, 1
    s_cmp_lt_u32 s47, 0x40000
    s_cbranch_scc1 K2_poll
    """)
    a.label("K2_go")
    a("s_barrier")
    stamp(a, 8)
    a("s_mov_b32 s45, s17")
    for k in range(4):
        a(f"""
        s_add_u32 s45, s45, 1
        s_cmp_eq_u32 s45, 5
        s_cselect_b32 s45, 0, s45
        s_mul_i32 s46, s45, {48*48*1024}
        s_add_u32 s47, s46, s62
        s_add_u32 s46, s46, s63
        """)
        for x in range(2):
            r = ACC + (k * 2 + x) * 4
            a(f"buffer_load_dwordx4 v[{r}:{r+3}], v1, s[4:7], s{47-x} offen sc1")
    a("v_mov_b32 v3, 0xffff0000")
    for sp in range(4):
        for x, b in ((0, B0), (1, B1)):
            r = ACC + (sp * 2 + x) * 4
            a(f"s_waitcnt vmcnt({7 - (sp*2+x)})")
            for k in range(4):
                a(f"v_lshlrev_b32 v5, 16, v{r+k}")
                a(f"v_and_b32 v6, v3, v{r+k}")
                a(f"v_add_f32 v{b+2*k}, v{b+2*k}, v5")
                a(f"v_add_f32 v{b+2*k+1}, v{b+2*k+1}, v6")
    for x, b in ((0, B0), (1, B1)):
        a(f"buffer_store_dwordx4 v[{b}:{b+3}], v{VO}, s[8:11], s{60+x} offen")
        a(f"buffer_store_dwordx4 v[{b+4}:{b+7}], v{VO}, s[8:11], s{60+x} offen offset:64")
    if STAMP: a("s_waitcnt vmcnt(0)")
    stamp(a, 9); stamp_out(a, 2, 16)
    a.label("K2_end")
    a("s_endpgm")
    a.label("CODE_END")
    return ("k2_kernel", 240, 512, LB + NP * 8192, a.text(), 256, 100, 256)

def unit_setup(a, VC0, VC1, CA):
    a(f"""
    s_add_u32 s49, s17, 10
    s_sub_u32 s49, s49, s16
    s_mul_i32 s47, s49, 52
    s_lshr_b32 s47, s47, 8
    s_mul_i32 s47, s47, 5
    s_sub_u32 s49, s49, s47                  ; (split - w8) mod 5
    s_lshl_b32 s47, s19, 7
    s_lshl_b32 s50, s23, 5
    s_add_u32 s47, s47, s50
    s_mul_i32 s47, s47, 2304
    s_mul_i32 s50, s22, 768
    s_add_u32 s47, s47, s50                  ; tile/wave row base
    ; early
    s_lshl_b32 s50, s26, 8
    s_add_u32 s60, s47, s50
    s_and_b32 s50, s49, 1
    s_mul_i32 s50, s50, {4*2304}
    s_add_u32 s60, s60, s50
    s_lshr_b32 s50, s49, 1
    s_lshl_b32 s50, s50, 7
    s_add_u32 s60, s60, s50
    ; late
    s_lshl_b32 s50, s26, 7
    s_add_u32 s61, s47, s50
    s_add_u32 s61, s61, 512
    s_cmp_eq_u32 s49, 0
    s_cselect_b32 s50, {4*2304}, 0
    s_add_u32 s61, s61, s50
    ; partial bases
    s_lshl_b32 s47, s18, 3
    s_add_u32 s47, s47, s16
    s_mul_i32 s47, s47, 6144
    s_add_u32 s47, s47, {WS_PART}
    s_mul_i32 s54, s17, {48*48*1024}
    s_add_u32 s54, s54, s47
    s_add_u32 s55, s54, 3072
    s_lshl_b32 s50, s49, 10
    s_add_u32 s62, s47, s50
    s_cmp_eq_u32 s49, 0
    s_cselect_b32 s50, 5120, 4096
    s_add_u32 s63, s47, s50
    s_cmp_lt_u32 s49, 4
    s_cselect_b32 s60, s60, 0x7ff00000
    s_cselect_b32 s62, s62, 0x7ff00000
    s_and_b32 s50, s49, 3
    s_cmp_eq_u32 s50, 0
    s_cselect_b32 s61, s61, 0x7ff00000
    s_cselect_b32 s63, s63, 0x7ff00000
    s_lshl_b32 s47, s18, 8
    s_add_u32 s48, s47, {WS_FLAG}
    s_lshl_b32 s47, s16, 13
    s_add_u32 s47, s47, {LB + CA*8192}
    v_add_u32 v{VC0}, s47, v1
    s_xor_b32 s50, s16, 4
    s_lshl_b32 s50, s50, 13
    s_add_u32 s50, s50, {LB + CA*8192}
    v_add_u32 v{VC1}, s50, v1
    """.replace("s_cselect_b32 s50, 5120, 4096", "s_mov_b32 s50, 4096\n    s_cselect_b32 s50, 5120, s50"))

if __name__ == "__main__":
    out = sys.argv[1] if len(sys.argv) > 1 else "out.s"
    ks = [G1.gen_k0(), gen_k1(), gen_k2()]
    open(out, "w").write(build_file(ks))
```

```python
import sys, os
from asmlib import *
import gen as G1
from gen import WS_X, WS_H, WS_BASE, WS_CONST, WS_E, WS_PART, WS_SIZE, WS_FLAG, srd, MFMA, P
from gen import stamp, stamp_init, stamp_out, STAMP, ST0, XR, xreg
import gen3
from gen3 import Stream, spread, stampc, LB

HST = "sc1"
LD = P("LD", 5); LX = P("LX", 2)
W2G = P("W2G", 1)
S0 = P("S0", 6); LP = P("LP", 14); LH = P("LH", 4)
POLLSLEEP = P("POLLSLEEP", 2)
SPC = [int(x) for x in os.environ.get("SPC", "4,8,12").split(",")]
NPRE = P("NPRE", 15); HPRE = P("HPRE", 12)
XNOLD = P("XNOLD", 0); XNOSB = P("XNOSB", 0); XNOW = P("XNOW", 0)
NP = 19; CA = 11
JUNK = LB + NP * 8192
WS_PF = WS_FLAG + 16384
OOB = "0x7ff00000"
VA = 2; VD = 6; VE = 7; VR = 8; VFA = 9; VO = 10; VC0 = 11; VC1 = 12; VPA = 13; VPF = 14; VT = 15
FR = 16; HF = XR; T = 18 - S0
DF = P("DF", 6)
VA2 = [VA, 240, 244]
PANEL = [208, 48, 80]
SP = XR + (S0 % (18 - S0)) * 8
assert T <= 12

def poll_ops(S, a, need, res):
    def issue():
        S.vmi(("poll", need), f"buffer_load_dword v{res}, v{VPA}, s[4:7], s57 offen sc1")
    def check():
        S.vmw({("poll", need)})
        sl = a.newlabel("PLs"); bk = a.newlabel("PLb")
        a(f"v_cmp_gt_u32 vcc, {need}, v{res}\ns_cbranch_vccnz {sl}")
        a.label(bk)
        S.pslow.append((sl, bk, need, res))
    return issue, check
def emit_pslow(S, a):
    for sl, bk, need, res in S.pslow:
        lp = a.newlabel("PLl")
        a.label(sl)
        a("s_mov_b32 s47, 0")
        a.label(lp)
        a(f"""
        s_sleep 4
        buffer_load_dword v{res}, v{VPA}, s[4:7], s57 offen sc1
        s_waitcnt vmcnt(0)
        v_cmp_gt_u32 vcc, {need}, v{res}
        s_cbranch_vccz {bk}
        s_add_u32 s47, s47, 1
        s_cmp_lt_u32 s47, 0x40000
        s_cbranch_scc1 {lp}
        s_branch {bk}
        """)
    S.pslow.clear()
def flag_store(S, a, val):
    a(f"v_mov_b32 v{VT}, {val}\ns_mov_b64 exec, 1")
    S.vmi("flag", f"buffer_store_dword v{VT}, v1, s[4:7], s56 offen sc1")
    a("s_mov_b64 exec, -1")

class K2Plan:
    def __init__(self, pre, avail, first_sync):
        pc = []
        for st in range(S0): pc += [(st, 0), (st, 1), (st, 2)]
        for st in range(S0, 18): pc += [(st, 0), (st, 1)]
        self.PH2 = PH2 = len(pc)
        for st in range(S0, 18): pc += [(st, 2)]
        self.pieces = pc; self.NPC = NPC = len(pc)
        ev = list(first_sync); cov = ev[-1][2]
        while True:
            c = cov - 1; ar = max(ev[-1][1], c - 2, 0)
            if c > PH2: break
            ncov = cov + 3
            if ncov > PH2 + 1: ncov = PH2 + 4
            ev.append((ar, c, ncov)); cov = ncov
        assert cov == PH2 + 4
        ev.append((PH2, PH2 + 1, PH2 + 5))
        ev.append((PH2 + 2, PH2 + 3, min(NPC - 1, PH2 + 8))); cov = ev[-1][2]
        ev.append((PH2 + 5, PH2 + 7, NPC - 1))
        self.ev = ev
        self.arr = {e[0]: e for e in ev if e[0] >= 0}; self.chk = {e[1]: e for e in ev if e[1] >= 0}
        for x, y in zip(ev, ev[1:]): assert x[1] <= y[0] < y[1] and (y[1] < x[2] or x[2] == NPC - 1), (x, y)
        def safe_after(p):
            for ar, c, _ in ev:
                if ar >= p: return c
            return 10 ** 9
        self.slot = {}; free_at = dict(avail)
        def alloc(i, t, forced=None):
            cands = [s for s in range(NP) if free_at[s] <= t]
            if safe_after(i) > PH2: cands = [s for s in cands if s < CA]
            else:
                cands = sorted(cands, key=lambda s: -s)
                if forced is None and i >= PH2 - 14 and i > t + 9: cands = [s for s in cands if s >= CA]
            if forced is not None: cands = [forced]
            if not cands: return None
            s = cands[0]; self.slot[i] = s; free_at[s] = safe_after(i); return s
        for i, s in enumerate(pre): alloc(i, -1, s)
        nxt = len(pre); self.issue_at = {}
        for t in range(NPC):
            self.issue_at[t] = []
            while nxt < NPC and nxt <= t + LP and len(self.issue_at[t]) < 2:
                if alloc(nxt, t) is None: break
                self.issue_at[t].append(nxt); nxt += 1
        assert nxt == NPC
        for ar, c, cv in ev:
            for i in range(len(pre), cv + 1):
                assert min(t for t in self.issue_at if i in self.issue_at[t]) < ar, (i, ar)

def k2acc(nb, j): return PANEL[nb // 4] + ((nb % 4) * 2 + j) * 4
def hreg(st, j): return HF + (st % T) * 8 + j * 4

def k2_main(a, S, plan, kind, dma, rd, hload_ops, hn, frbuf, extra0, hgate):
    PH2, NPC, pieces = plan.PH2, plan.NPC, plan.pieces
    def piece(S, i, extra):
        st, pn = pieces[i]
        pre, side = [], []
        for o in extra:
            (pre if getattr(o, "pre", False) else side).append(o)
        ld = []
        if hn[0] < 18 and (hn[0] <= st + LH) and i >= hgate.get(hn[0], 0) and i < PH2:
            ld += hload_ops(S, hn[0]); hn[0] += 1
        for x in plan.issue_at[i]: ld.append(lambda x=x: dma(S, x))
        if XNOLD and 12 <= i:
            for o in ld:
                sv = a.lines[:]; o(); a.lines[:] = sv
            S.vd = len(S.vm); ld = []
        side = ld + side
        if XNOSB and 12 <= i < PH2 - 3: pass
        elif i in plan.chk: S.check()
        if XNOSB and 12 <= i < PH2 - 3: pass
        elif i in plan.arr:
            S.vmw({("W", x) for x in range(plan.arr[i][2] + 1)}); S.arrive()
        for o in pre: o()
        assert ("H", st) in S.vm, (i, st)
        S.vmw({("H", st)})
        for b in range(4):
            f = 4 * i + b
            if b == 1 and (i + 1) in plan.chk and not (XNOSB and 12 <= i + 1 < PH2 - 3): S.peek()
            if not (XNOW and b % 2): S.lgw({("F2", f + XNOW)})
            buf = frbuf(f)
            for j in range(2):
                c = k2acc(4 * pn + b, j); h = hreg(st, j)
                src2 = "0" if st == 0 else f"v[{c}:{c+3}]"
                a(f"{MFMA} v[{c}:{c+3}], v[{buf}:{buf+3}], v[{h}:{h+3}], {src2}")
                rd(S, f + DF, j)
                for o in spread(side, 8, 2 * b + j): o()
    for i in range(PH2):
        piece(S, i, extra0.get(i, []))
        if i == 17: stamp(a, 8)
        if kind == "ffn":
            for si, pi_ in zip((6, 7, 15), SPC):
                if i == pi_: stamp(a, si)
    stamp(a, 9)
    a(f"s_cmp_eq_u32 s26, 1\ns_cbranch_scc1 K2_{kind}_h1")
    S_ = S
    B0 = SP; B1 = SP + 8
    for h in range(2):
        S = S_.fork2(); S.pslow = S_.pslow
        if h == 1: a.label(f"K2_{kind}_h1")
        keep = PANEL[h]; send = PANEL[1 - h]
        ex = {}
        nop = [lambda: None]
        wr = [lambda k=k: S.lgi("cw", f"ds_write_b128 v{VC0}, v[{send+4*k}:{send+4*k+3}] offset:{k*1024}") for k in range(8)]
        ex[PH2] = nop * 2 + wr[:4]; ex[PH2 + 1] = wr[4:]
        ex[PH2 + 2] = [lambda r=r: a(f"v_mov_b32 v{SP+2*r}, 0\nv_mov_b32 v{SP+2*r+1}, 0") for r in range(8)]
        ex[PH2 + 3] = [lambda k=k: S.lgi(("cr", k), f"ds_read_b128 v[{send+4*k}:{send+4*k+3}], v{VC1} offset:{k*1024}") for k in range(8)]
        def add2(k, r0):
            S.lgw({("cr", k)})
            for r in (r0, r0 + 1): a(f"v_add_f32 v{keep+4*k+r}, v{keep+4*k+r}, v{send+4*k+r}")
        def unit_ops(un, src0, src1, T_, dst):
            ops = []
            for x, s_ in enumerate((src0, src1)):
                ops.append(lambda x=x, s_=s_: a(f"v_cvt_pk_bf16_f32 v{T_+2*x}, v{s_}, v{s_+1}\nv_cvt_pk_bf16_f32 v{T_+2*x+1}, v{s_+2}, v{s_+3}"))
            def fin():
                nx = a.newlabel("K2_nx")
                a(f"s_cmp_eq_u32 s49, {un % 5}\ns_cselect_b32 s44, {OOB}, s{54 + un//3}")
                S.vmi("U", f"buffer_store_dwordx4 v[{T_}:{T_+3}], v1, s[4:7], s44 offen offset:{(un%3)*1024} sc1")
                a(f"s_cbranch_scc0 {nx}")
                for x, s_ in enumerate((src0, src1)):
                    for r in range(4): a(f"v_add_f32 v{dst+4*x+r}, v{dst+4*x+r}, v{s_+r}")
                a.label(nx)
            ops.append(fin)
            return ops
        for nbp in range(2):
            ops = []
            for k in range(4 * nbp, 4 * nbp + 4):
                ops += [lambda k=k: add2(k, 0), lambda k=k: add2(k, 2)]
            ex[PH2 + 4 + 2 * nbp] = ops
            o2 = []
            for j in range(2):
                o2 += unit_ops(2 * nbp + j, keep + (4*nbp + j) * 4, keep + (4*nbp + 2 + j) * 4, send + (4*nbp + j) * 4, B0)
            ex[PH2 + 5 + 2 * nbp] = o2
        for i in range(PH2, NPC):
            piece(S, i, ex.get(i, []))
        stamp(a, 10)
        keep2 = PANEL[2] + 16 * h; send2 = PANEL[2] + 16 * (1 - h)
        a("s_nop 7")
        for k in range(4):
            a(f"ds_write_b128 v{VC0}, v[{send2+4*k}:{send2+4*k+3}] offset:{k*1024}")
        a("s_waitcnt lgkmcnt(0)\ns_barrier")
        for k in range(4):
            a(f"ds_read_b128 v[{send2+4*k}:{send2+4*k+3}], v{VC1} offset:{k*1024}")
        for k in range(4):
            a(f"s_waitcnt lgkmcnt({3-k})")
            for r in range(4): a(f"v_add_f32 v{keep2+4*k+r}, v{keep2+4*k+r}, v{send2+4*k+r}")
        for j in range(2):
            for o in unit_ops(4 + j, keep2 + j * 4, keep2 + 8 + j * 4, send2 + 4 * j, B1): o()
        a("s_branch K2_fin")
    S_.emit_slow(); emit_pslow(S_, a)

def base_load(S, a):
    for x in range(2):
        b = SP + 8 * x
        a(f"s_add_u32 s44, s{60+x}, {WS_BASE}")
        S.vmi("B", f"buffer_load_dwordx4 v[{b}:{b+3}], v{VO}, s[4:7], s44 offen")
        S.vmi("B", f"buffer_load_dwordx4 v[{b+4}:{b+7}], v{VO}, s[4:7], s44 offen offset:64")

def k2_scalars(a):
    a(f"""
    s_load_dwordx2 s[52:53], s[0:1], 104
    s_and_b32 s23, s16, 3
    s_lshr_b32 s26, s16, 2
    s_lshl_b32 s30, s98, 2
    s_add_u32 s30, s30, s23
    s_mul_i32 s30, s30, 360
    s_mul_i32 s31, s97, 36
    s_add_u32 s30, s30, s31
    s_add_u32 s30, s30, s26
    s_lshl_b32 s30, s30, 10
    s_add_u32 s30, s30, {WS_H}
    s_add_u32 s31, s30, 184320
    s_lshl_b32 s57, s98, 2
    s_add_u32 s57, s57, s23
    s_lshl_b32 s57, s57, 7
    s_mul_i32 s47, s97, 24
    s_add_u32 s57, s57, s47
    s_add_u32 s57, s57, {WS_PF}
    s_mul_i32 s27, s98, 3
    s_add_u32 s27, s27, s99                  ; tile
    s_add_u32 s49, s97, 10
    s_sub_u32 s49, s49, s16
    s_mul_i32 s47, s49, 52
    s_lshr_b32 s47, s47, 8
    s_mul_i32 s47, s47, 5
    s_sub_u32 s49, s49, s47
    s_lshl_b32 s47, s98, 7
    s_lshl_b32 s50, s23, 5
    s_add_u32 s47, s47, s50
    s_mul_i32 s47, s47, 2304
    s_mul_i32 s50, s99, 768
    s_add_u32 s47, s47, s50
    s_lshl_b32 s50, s26, 8
    s_add_u32 s60, s47, s50
    s_and_b32 s50, s49, 1
    s_mul_i32 s50, s50, {4*2304}
    s_add_u32 s60, s60, s50
    s_lshr_b32 s50, s49, 1
    s_lshl_b32 s50, s50, 7
    s_add_u32 s60, s60, s50
    s_lshl_b32 s50, s26, 7
    s_add_u32 s61, s47, s50
    s_add_u32 s61, s61, 512
    s_cmp_eq_u32 s49, 0
    s_cselect_b32 s50, {4*2304}, 0
    s_add_u32 s61, s61, s50
    s_lshl_b32 s47, s27, 3
    s_add_u32 s47, s47, s16
    s_mul_i32 s47, s47, 6144
    s_add_u32 s47, s47, {WS_PART}
    s_mul_i32 s54, s97, {48*48*1024}
    s_add_u32 s54, s54, s47
    s_add_u32 s55, s54, 3072
    s_lshl_b32 s50, s49, 10
    s_add_u32 s62, s47, s50
    s_cmp_eq_u32 s49, 0
    s_mov_b32 s50, 4096
    s_cselect_b32 s50, 5120, s50
    s_add_u32 s63, s47, s50
    s_cmp_lt_u32 s49, 4
    s_cselect_b32 s60, s60, {OOB}
    s_cselect_b32 s62, s62, {OOB}
    s_and_b32 s50, s49, 3
    s_cmp_eq_u32 s50, 0
    s_cselect_b32 s61, s61, {OOB}
    s_cselect_b32 s63, s63, {OOB}
    s_lshl_b32 s47, s27, 8
    s_add_u32 s48, s47, {WS_FLAG}
    """)
def k2_vregs(a, npoll):
    a(f"""
    v_bfe_u32 v{VO}, v0, 2, 2
    v_lshlrev_b32 v{VO}, 3, v{VO}
    v_and_b32 v{VT}, 3, v0
    v_add_u32 v{VO}, v{VO}, v{VT}
    v_mul_u32_u24 v{VO}, 2304, v{VO}
    v_lshrrev_b32 v{VT}, 4, v0
    v_lshl_add_u32 v{VO}, v{VT}, 4, v{VO}
    s_lshl_b32 s47, s16, 13
    s_add_u32 s47, s47, {LB + CA*8192}
    v_add_u32 v{VC0}, s47, v1
    s_xor_b32 s50, s16, 4
    s_lshl_b32 s50, s50, 13
    s_add_u32 s50, s50, {LB + CA*8192}
    v_add_u32 v{VC1}, s50, v1
    v_min_u32 v{VPA}, {npoll-1}, v0
    v_lshlrev_b32 v{VPA}, 2, v{VPA}
    """)

def gen_main():
    a = Asm()
    stamp_init(a); stamp(a, 0)
    a(f"""
    s_cmp_ge_u32 s2, 256
    s_cbranch_scc1 K1_end
    s_load_dwordx2 s[20:21], s[0:1], 120
    s_load_dwordx4 s[24:27], s[0:1], 80
    s_load_dwordx4 s[28:31], s[0:1], 24
    s_load_dwordx2 s[58:59], s[0:1], 96      ; w_down
    v_lshrrev_b32 v1, 6, v0
    v_and_b32 v0, 63, v0                     ; lane
    v_readfirstlane_b32 s16, v1              ; wave
    s_and_b32 s3, s2, 7                      ; xcd
    s_lshr_b32 s18, s2, 3
    s_and_b32 s17, s18, 7                    ; mt
    s_lshr_b32 s18, s18, 3                   ; k4
    v_lshlrev_b32 v1, 4, v0                  ; lane*16
    s_lshl_b32 s19, s17, 3
    s_add_u32 s19, s19, s16                  ; 8mt + w
    s_mul_i32 s32, s19, 36864
    s_add_u32 s33, s32, 18432
    s_mul_i32 s34, s19, 368640
    s_add_u32 s34, s34, {WS_H}
    s_lshl_b32 s35, s16, 10
    s_add_u32 s35, s35, {LB}
    s_lshl_b32 s56, s19, 7
    s_add_u32 s56, s56, {WS_PF}
    s_waitcnt lgkmcnt(0)
    """)
    srd(a, 4, 20, WS_SIZE)
    a("s_cmp_eq_u32 s18, 3\ns_cbranch_scc1 K1_ssm")

    def xload_ops(S, st):
        ops = []
        for j in range(2):
            for e in range(2):
                r = xreg(j, 2 * st + e)
                def f(j=j, e=e, r=r):
                    if e == 0: a(f"s_add_u32 s{36+j}, s{32+j}, {WS_X + st*2048}")
                    S.vmi(("X", st), f"buffer_load_dwordx4 v[{r}:{r+3}], v1, s[4:7], s{36+j} offen offset:{1024*e}")
                ops.append(f)
        return ops

    WSZ = 576 * 9216
    srd(a, 8, 24, WSZ)
    srd(a, 12, 26, WSZ)
    ACC = 48
    S = Stream(a); S.sb_setup(VE, VR, VFA, 46); S.pslow = []
    a(f"""
    s_mul_i32 s39, s3, 3
    s_add_u32 s39, s39, s18
    s_lshl_b32 s40, s39, 2
    s_add_u32 s56, s56, s40
    s_mul_i32 s39, s39, 3
    s_lshl_b32 s38, s39, 7
    s_lshl_b32 s39, s39, 11
    s_add_u32 s39, s39, s34
    v_lshrrev_b32 v16, 3, v0
    s_lshl_b32 s40, s16, 3
    v_add_u32 v16, s40, v16
    v_mul_u32_u24 v16, 9216, v16
    v_bfe_u32 v17, v0, 4, 1
    s_and_b32 s40, s16, 1
    s_lshl_b32 s40, s40, 1
    v_or_b32 v17, s40, v17
    v_lshlrev_b32 v17, 1, v17
    v_and_b32 v18, 7, v0
    v_xor_b32 v17, v17, v18
    v_lshl_add_u32 v{VD}, v17, 4, v16
    """)
    def dma_ops(gs):
        G, st = divmod(gs, 9)
        ops = []
        for m in range(2):
            def f(m=m):
                a(f"s_add_u32 m0, s35, {st*16384 + m*8192}")
                a(f"s_add_u32 s41, s38, {G*128 + st*589824}")
                S.vmi(("D", gs), f"buffer_load_dwordx4 v{VD}, s[{8+4*m}:{11+4*m}], s41 offen lds")
            ops.append(f)
        return ops
    for st in range(2):
        for f in xload_ops(S, st) + dma_ops(st): f()
    for st in range(2, LX):
        for f in xload_ops(S, st): f()
    a(f"""
    v_lshrrev_b32 v{VT}, 4, v0
    v_lshlrev_b32 v{VT}, 10, v{VT}
    v_bfe_u32 v17, v0, 2, 2
    v_lshl_add_u32 v{VT}, v17, 7, v{VT}
    v_bfe_u32 v17, v0, 3, 2
    v_lshl_add_u32 v{VT}, v17, 5, v{VT}
    v_and_b32 v17, 3, v0
    v_lshl_add_u32 v{VT}, v17, 3, v{VT}
    v_add_u32 v{VT}, {LB}, v{VT}
    v_lshlrev_b32 v{VPF}, 7, v0
    """)
    for b in range(4):
        a(f"v_xor_b32 v{VA+b}, {b*32}, v{VT}")
    S.sb_init(16)
    a(f"""
    s_lshr_b32 s97, s3, 1
    s_and_b32 s98, s3, 1
    s_lshl_b32 s98, s98, 3
    s_add_u32 s98, s98, s17
    s_mov_b32 s99, s18
    """)
    k2_scalars(a)
    k2_vregs(a, 6)
    a(f"""
    s_mul_i32 s51, s97, {1152*1152}
    s_mul_i32 s40, s99, 384
    s_add_u32 s28, s51, s40
    s_lshl_b32 s40, s18, 3
    s_add_u32 s40, s40, s17
    s_lshl_b32 s40, s40, 3
    s_add_u32 s40, s40, s16
    s_min_u32 s40, s40, 161
    s_lshl_b32 s40, s40, 13
    s_add_u32 s29, s51, s40
    """)
    srd(a, 20, 58, 4608 * 1152)
    NBLK = 27 * 8
    pre_slots = []; pre_when = []
    g2first = max(2, 9 - LD)
    free = []
    for st in range(0, 9):
        if st >= 2: free += [2 * (st - 2), 2 * (st - 2) + 1]
        if st == 3: free.append(18)
        if st >= g2first:
            n = 0
            while free and n < 3 and len(pre_slots) < NPRE:
                pre_slots.append(free.pop(0)); pre_when.append(st); n += 1
    avail = {s: -1 for s in range(NP)}
    for s in (14, 15): avail[s] = 0
    for s in (16, 17): avail[s] = 2
    plan = K2Plan(pre_slots, avail, [(-2, -1, 3), (0, 2, 6)])
    def line_of(st): return 3 * (st % 6) + st // 6
    def dma2(S, i):
        st, pn = plan.pieces[i]
        a(f"s_add_u32 m0, s35, {plan.slot[i]*8192}")
        a(f"s_add_u32 s41, s28, {line_of(st)*64*1152 + pn*128}")
        S.vmi(("W", i), f"buffer_load_dwordx4 v{VD}, s[20:23], s41 offen lds")
    def frbuf(f): return FR + (f % 8) * 4
    def rd2(S, f, k):
        if f >= 4 * plan.NPC: return
        i, b = divmod(f, 4); sl = plan.slot[i]
        buf = frbuf(f) + 2 * k
        S.lgi(("F2", f), f"ds_read_b64_tr_b16 v[{buf}:{buf+1}], v{VA2[sl//7] + b} offset:{(sl%7)*8192 + k*2048}")
    def hload_ops(S, st):
        ops = []
        for j in range(2):
            def f(j=j):
                r = hreg(st, j)
                a(f"s_add_u32 s36, s{30+j}, {line_of(st)*2048}")
                S.vmi(("H", st), f"buffer_load_dwordx4 v[{r}:{r+3}], v1, s[4:7], s36 offen sc1")
            ops.append(f)
        return ops
    def rd(gblk, k):
        if gblk >= NBLK:
            f = 2 * (gblk - NBLK) + k // 2
            if f < DF: rd2(S, f, k % 2)
            return
        gs, blk = divmod(gblk, 8)
        st = gs % 9
        u, m = divmod(blk, 2)
        s, e = divmod(k, 2)
        buf = FR + (gblk % 4) * 8 + s * 4 + e * 2
        off = (st % 3) * 16384 + m * 8192 + s * 4096 + e * 512
        S.lgi(("F", gblk), f"ds_read_b64_tr_b16 v[{buf}:{buf+1}], v{VA+u} offset:{off}")
        if st % 3 == 2 and m == 1 and k == 3 and gs < 26:
            a(f"v_add_u32 v{VA+u}, 49152, v{VA+u}" if st < 8 else f"v_subrev_u32 v{VA+u}, 98304, v{VA+u}")
    def acc(blk, j): return ACC + (blk * 2 + j) * 4
    def epi_ops(v, G):
        ops = []
        for j in range(2):
            for uu in range(2):
                g = acc(4 * v + 2 * uu, j); u = acc(4 * v + 2 * uu + 1, j)
                for r in range(4):
                    ops.append(lambda g=g, u=u, r=r: a(f"v_mul_f32 v{g+r}, v{g+r}, v{u+r}"))
            T_ = acc(4 * v + 1, j)
            g0 = acc(4 * v, j); g1 = acc(4 * v + 2, j)
            ops.append(lambda T_=T_, g=g0: a(f"v_cvt_pk_bf16_f32 v{T_}, v{g}, v{g+1}"))
            ops.append(lambda T_=T_, g=g0: a(f"v_cvt_pk_bf16_f32 v{T_+1}, v{g+2}, v{g+3}"))
            ops.append(lambda T_=T_, g=g1: a(f"v_cvt_pk_bf16_f32 v{T_+2}, v{g}, v{g+1}"))
            ops.append(lambda T_=T_, g=g1: a(f"v_cvt_pk_bf16_f32 v{T_+3}, v{g+2}, v{g+3}"))
            def st_(T_=T_, j=j):
                a(f"s_add_u32 s45, s39, {j*184320 + G*2048}")
                S.vmi(("S", G), f"buffer_store_dwordx4 v[{T_}:{T_+3}], v1, s[4:7], s45 offen offset:{1024*v} {HST}")
            ops.append(st_)
        return ops
    def publish(G):
        S.vmw({("S", G)}); flag_store(S, a, G + 1)
    def vd2():
        a(f"""
        v_lshrrev_b32 v{VD}, 3, v0
        s_lshl_b32 s40, s16, 3
        v_add_u32 v{VD}, s40, v{VD}
        v_mul_u32_u24 v{VD}, 1152, v{VD}
        v_lshrrev_b32 v{VT}, 4, v0
        v_lshlrev_b32 v{VT}, 1, v{VT}
        v_and_b32 v{VPF}, 7, v0
        v_xor_b32 v{VT}, v{VT}, v{VPF}
        v_lshl_add_u32 v{VD}, v{VT}, 4, v{VD}
        """)
    def va2_base():
        a(f"""
        v_lshrrev_b32 v{VPF}, 2, v0
        v_lshlrev_b32 v{VPF}, 7, v{VPF}
        v_bfe_u32 v{VT}, v0, 3, 2
        v_lshl_add_u32 v{VPF}, v{VT}, 5, v{VPF}
        v_and_b32 v{VT}, 3, v0
        v_lshl_add_u32 v{VPF}, v{VT}, 3, v{VPF}
        s_lshl_b32 s40, s26, 12
        s_add_u32 s40, s40, {LB}
        v_add_u32 v{VPF}, s40, v{VPF}
        """)
    def va2(region):
        for b in range(4):
            if region == 0: a(f"v_xor_b32 v{VA+b}, {b*32}, v{VPF}")
            else: a(f"v_add_u32 v{VA2[region]+b}, {57344*region}, v{VA+b}")
    stamp(a, 1)
    S.vmw({("X", 0), ("D", 0)}); S.lg0(); a("s_barrier")
    stamp(a, 2)
    for g in range(3):
        for k in range(4): rd(g, k)
    dnext = 2
    p1i, p1c = poll_ops(S, a, 1, VT)
    p2i, p2c = poll_ops(S, a, 2, VT if HPRE > 6 else VPF)
    for gs in range(27):
        G, st = divmod(gs, 9)
        side = {b: [] for b in range(8)}
        if st == 0 and G > 0:
            e = epi_ops(1, G - 1)
            for b in range(3): side[b] += spread(e, 3, b)
        if st == 2 and G > 0: side[7].append(lambda G=G: publish(G - 1))
        if st == 8:
            e = epi_ops(0, G)
            for b in range(3): side[5 + b] += spread(e, 3, b)
        if G == 0 and st + LX <= 8:
            x = xload_ops(S, st + LX)
            side[0] += x[:2]; side[1] += x[2:]
        for pos in (3, 6):
            if dnext <= min(gs + LD, 26):
                if pos == 6 and G == 0 and 1 <= st <= 5 and dnext >= gs + 3: continue
                side[pos] += dma_ops(dnext); dnext += 1
        if G == W2G and st < 8 and st % 2 == 0:
            def pf():
                a(f"s_mov_b32 m0, {JUNK}\ns_mov_b64 exec, 0xffff")
                S.vmi("P", f"buffer_load_dword v{VPF}, s[20:23], s29 offen lds")
                a(f"s_mov_b64 exec, -1\ns_add_u32 s29, s29, 2048")
            side[4].append(pf)
        if G == 2:
            if st == 0: side[4].append(p1i)
            if st == 1: side[4].append(p1c)
            if 1 <= st <= 3:
                side[5] += hload_ops(S, 2 * (st - 1)); side[6] += hload_ops(S, 2 * (st - 1) + 1)
            if HPRE > 6:
                if st == 5: side[1].append(p2i)
                if st == 6: side[0].append(p2c)
                hs = {6: [(3, 6), (6, 7), (7, 8)], 7: [(0, 9), (1, 10), (5, 11)]}.get(st, [])
                for b, hh in hs:
                    if hh < HPRE: side[b] += hload_ops(S, hh)
            if st == g2first: side[0].append(vd2)
            k = 0
            for i, w in enumerate(pre_when):
                if w == st:
                    side[(3, 4, 7)[k] if st < 8 else (1, 3, 4)[k]].append(lambda i=i: dma2(S, i)); k += 1
            if st == 6: side[1].append(va2_base)
        for blk in range(8):
            g = gs * 8 + blk
            if blk == 0: S.vmw({("X", gs)})
            if blk == 1:
                S.vmw({("D", gs + 1)} if gs < 26 else {("W", x) for x in range(4)}); S.arrive()
            if blk == 3: S.peek()
            if blk == 5:
                S.check()
                if gs == 26: va2(0)
            S.lgw({("F", g)})
            buf = FR + (g % 4) * 8
            k = 0
            for j in range(2):
                for s in range(2):
                    c = acc(blk, j)
                    src2 = "0" if (st == 0 and s == 0) else f"v[{c}:{c+3}]"
                    x = xreg(j, 2 * st + s)
                    a(f"{MFMA} v[{c}:{c+3}], v[{buf+4*s}:{buf+4*s+3}], v[{x}:{x+3}], {src2}")
                    rd(g + 3, k)
                    for o in spread(side[blk], 4, k): o()
                    k += 1
        if st == 8: stamp(a, 3 + G)
    e = epi_ops(1, 2)
    p3i, p3c = poll_ops(S, a, 3, VPF)
    p2c.pre = True; p3c.pre = True
    P3 = P("P3", 19)
    P2 = P("P2", 2); P2C = P("P2C", 5); PUB = P("PUB", 11); PB = P("PB", 8)
    def va12(): va2(1); va2(2)
    va12.pre = True
    extra0 = {0: [va12]}
    for k, v in ((0, spread(e, 2, 0)), (1, spread(e, 2, 1)), (P2, [p2i] if HPRE <= 6 else []), (P2C, [p2c] if HPRE <= 6 else []), (PUB, [lambda: publish(2)]),
              (P3, [p3i]), (P3 + 3, [p3c])):
        extra0.setdefault(k, []).extend(v)
    hgate = {st: P2C for st in range(6, 12)}; hgate.update({st: P3 + 3 for st in range(12, 18)})
    k2_main(a, S, plan, "ffn", dma2, rd2, hload_ops, [HPRE], frbuf, extra0, hgate)

    a.label("K1_ssm")
    NU = 5
    SACC = 32; SFR = 8
    BSZ = 576 * 1152
    S = Stream(a); S.pslow = []
    a(f"""
    s_cmp_lt_u32 s16, 4
    s_cselect_b32 s22, s28, s30
    s_cselect_b32 s23, s29, s31
    """)
    srd(a, 8, 22, BSZ)
    a(f"""
    s_load_dwordx4 s[28:31], s[0:1], 40
    s_lshl_b32 s40, s3, 2
    s_add_u32 s56, s56, s40
    s_add_u32 s56, s56, 96
    s_mul_i32 s39, s3, 5
    s_min_u32 s39, s39, 31                   ; ustart
    s_and_b32 s40, s16, 3
    s_lshl_b32 s41, s40, 3
    s_lshl_b32 s38, s39, 4
    s_add_u32 s41, s41, s38
    v_lshrrev_b32 v8, 3, v0
    v_add_u32 v8, s41, v8
    v_mul_u32_u24 v8, 1152, v8
    s_and_b32 s41, s16, 1
    s_lshl_b32 s41, s41, 2
    v_lshrrev_b32 v9, 4, v0
    v_add_u32 v9, s41, v9
    v_and_b32 v10, 7, v0
    v_xor_b32 v9, v9, v10
    v_and_b32 v10, 15, v0
    v_lshrrev_b32 v11, 1, v10
    v_lshrrev_b32 v12, 4, v0
    v_xor_b32 v11, v11, v12
    v_lshlrev_b32 v11, 4, v11
    v_lshl_add_u32 v{VA}, v10, 7, v11
    v_add_u32 v{VA}, {LB}, v{VA}
    v_xor_b32 v{VA+1}, 64, v{VA}
    v_add_u32 v{VA+2}, 49152, v{VA}
    v_add_u32 v{VA+3}, 49152, v{VA+1}
    v_add_u32 v{VA+4}, 98304, v{VA}
    v_add_u32 v{VA+5}, 98304, v{VA+1}
    v_lshl_add_u32 v0, v9, 4, v8
    s_lshr_b32 s41, s16, 2
    s_mul_i32 s41, s41, 12288
    s_lshl_b32 s43, s40, 10
    s_add_u32 s43, s43, s41
    s_add_u32 s43, s43, {LB}
    """)
    def sdma_ops(st):
        slot = st % 6
        ops = []
        for t in range(3):
            def f(t=t):
                a(f"s_add_u32 m0, s43, {slot*24576 + t*4096}")
                a(f"s_mov_b32 s41, {st*128 + t*36864}")
                S.vmi(("D", st), f"buffer_load_dwordx4 v0, s[8:11], s41 offen lds")
            ops.append(f)
        return ops
    for st in range(2):
        for f in xload_ops(S, st) + sdma_ops(st): f()
    a(f"""
    s_cmp_lt_u32 s16, 4
    s_cselect_b32 s22, s24, s26
    s_cselect_b32 s23, s25, s27
    """)
    srd(a, 12, 22, 576 * 9216)
    a(f"""
    v_lshrrev_b32 v10, 4, v1
    v_mul_u32_u24 v8, 86, v10
    v_lshrrev_b32 v8, 8, v8
    v_mul_u32_u24 v9, 3, v8
    v_sub_u32 v9, v10, v9
    v_min_u32 v8, 17, v8
    v_mul_u32_u24 v8, 9216, v8
    v_mul_u32_u24 v9, 384, v9
    v_add_u32 v8, v8, v9
    s_lshl_b32 s40, s17, 2
    s_and_b32 s41, s16, 3
    s_add_u32 s40, s40, s41
    s_mul_i32 s40, s40, {18*9216}
    s_mul_i32 s41, s3, 1152
    s_add_u32 s40, s40, s41
    s_mov_b32 m0, {JUNK}
    s_nop 0
    """)
    S.vmi("P", "buffer_load_dword v8, s[12:15], s40 offen offset:128 lds")
    S.vmi("P", "buffer_load_dword v8, s[12:15], s40 offen offset:256 lds")
    a("s_waitcnt lgkmcnt(0)")
    NB = 2 * NU
    def srd_(gblk, s):
        if gblk >= 9 * NB: return
        st, blk = divmod(gblk, NB)
        u, comp = divmod(blk, 2)
        slot = st % 6
        buf = SFR + (gblk % 3) * 8 + s * 4
        reg = VA + (slot // 2) * 2 + s
        off = (slot % 2) * 24576 + comp * 12288 + u * 2048
        S.lgi(("F", gblk), f"ds_read_b128 v[{buf}:{buf+3}], v{reg} offset:{off}")
    def sacc(u, comp, j): return SACC + ((u * 2 + comp) * 2 + j) * 4
    stamp(a, 1)
    S.vmw({("X", 0), ("D", 0)}); a("s_barrier")
    stamp(a, 2)
    for g in range(2):
        for s in range(2): srd_(g, s)
    CN = XR
    bar = {0: [1], 1: [2], 2: [3, 4, 5], 5: [6, 7, 8]}
    issue = {0: [("X", 2), ("D", 2), ("D", 3)], 1: [("X", 3), ("D", 4), ("D", 5)], 2: [("X", 4)], 3: [("X", 5), ("D", 6), ("D", 7)],
             4: [("X", 6), ("D", 8)], 5: [("X", 7)], 6: [("X", 8)]}
    for st in range(9):
        side = []
        for kind, t in issue.get(st, []):
            side += xload_ops(S, t) if kind == "X" else sdma_ops(t)
        for blk in range(NB):
            g = st * NB + blk
            if blk == 0: S.vmw({("X", st)})
            if blk == NB - 2 and st in bar:
                S.vmw({("D", t) for t in bar[st]})
                if st == 2: S.lg0()
                a("s_barrier")
            S.lgw({("F", g)})
            buf = SFR + (g % 3) * 8
            u, comp = divmod(blk, 2)
            k = 0
            for j in range(2):
                for s in range(2):
                    c = sacc(u, comp, j)
                    src2 = "0" if (st == 0 and s == 0) else f"v[{c}:{c+3}]"
                    x = xreg(j, 2 * st + s)
                    a(f"{MFMA} v[{c}:{c+3}], v[{x}:{x+3}], v[{buf+4*s}:{buf+4*s+3}], {src2}")
                    if k % 2 == 0: srd_(g + 2, k // 2)
                    if k == 1 and blk < 6:
                        for o in spread(side, 6, blk): o()
                    k += 1
            if blk == 7 and st == 6:
                a(f"""
                v_mbcnt_lo_u32_b32 v0, -1, 0
                v_mbcnt_hi_u32_b32 v0, -1, v0
                v_and_b32 v{CN+44}, 15, v0
                v_lshlrev_b32 v{CN+44}, 6, v{CN+44}
                v_lshrrev_b32 v{CN+45}, 4, v0
                v_lshl_add_u32 v{CN+45}, v{CN+45}, 3, v{CN+44}
                s_lshl_b32 s40, s39, 10
                s_add_u32 s40, s40, {WS_CONST}
                """)
                for u2 in range(NU):
                    b = CN + 8 * u2
                    a(f"s_add_u32 s41, s40, {u2*1024}")
                    S.vmi("C", f"buffer_load_dwordx4 v[{b}:{b+3}], v{CN+44}, s[4:7], s41 offen")
                    S.vmi("C", f"buffer_load_dwordx2 v[{b+4}:{b+5}], v{CN+44}, s[4:7], s41 offen offset:40")
                    S.vmi("C", f"buffer_load_dwordx2 v[{b+6}:{b+7}], v{CN+45}, s[4:7], s41 offen offset:32")
                a("s_min_u32 s46, s16, 4\ns_lshl_b32 s41, s46, 10\ns_add_u32 s41, s41, s40")
                S.vmi("C", f"buffer_load_dwordx4 v[{CN+40}:{CN+43}], v{CN+44}, s[4:7], s41 offen offset:16")
                srd(a, 8, 28, BSZ); srd(a, 12, 30, BSZ)
                a(f"""
                s_cmp_lt_u32 s16, 4
                s_cselect_b32 s22, s28, s30
                s_cselect_b32 s23, s29, s31
                s_mov_b32 s24, s22
                s_mov_b32 s25, s23
                s_mov_b32 s26, {BSZ}
                s_mov_b32 s27, 0x20000
                s_lshl_b32 s40, s17, 2
                s_and_b32 s41, s16, 3
                s_add_u32 s40, s40, s41
                s_mul_i32 s40, s40, {162*128}
                v_min_u32 v{CN+46}, 53, v0
                v_lshlrev_b32 v{CN+46}, 7, v{CN+46}
                s_mov_b32 m0, {JUNK}
                """)
                for t in range(3):
                    S.vmi("P", f"buffer_load_dword v{CN+46}, s[24:27], s40 offen lds")
                    a(f"s_add_u32 s40, s40, {54*128}")
    S.vmw({"C"})
    gen3.HST = HST
    ssm_post4(a, NU, SACC, CN, sacc, 39)
    a("s_waitcnt vmcnt(0)")
    S = Stream(a); S.sb_setup(VE, VR, VFA, 46); S.pslow = []
    flag_store(S, a, 3)
    stamp(a, 7)
    a(f"""
    s_cmp_ge_u32 s17, 6
    s_cbranch_scc1 K1_done
    s_mov_b32 s97, 4
    s_cmp_ge_u32 s17, 3
    s_cselect_b32 s40, 1, 0
    s_lshl_b32 s98, s3, 1
    s_add_u32 s98, s98, s40
    s_mul_i32 s40, s40, 3
    s_sub_u32 s99, s17, s40
    """)
    k2_scalars(a)
    k2_vregs(a, 8)
    plan_s = K2Plan([18, 17, 16, 15, 14, 13, 10], {s: -1 for s in range(NP)}, [(-2, -1, 3), (0, 2, 6)])
    a(f"""
    s_mul_i32 s40, s99, 192
    s_lshl_b32 s41, s16, 3
    s_add_u32 s40, s40, s41
    v_lshrrev_b32 v{VD}, 3, v0
    v_add_u32 v{VD}, s40, v{VD}
    v_mul_u32_u24 v{VD}, 1152, v{VD}
    s_and_b32 s41, s16, 1
    s_lshl_b32 s41, s41, 2
    v_lshrrev_b32 v{VT}, 4, v0
    v_add_u32 v{VT}, s41, v{VT}
    v_and_b32 v{VPF}, 7, v0
    v_xor_b32 v{VT}, v{VT}, v{VPF}
    v_lshl_add_u32 v{VD}, v{VT}, 4, v{VD}
    """)
    def dma_s(S, i):
        st, pn = plan_s.pieces[i]
        comp = st & 1
        a(f"s_add_u32 m0, s35, {plan_s.slot[i]*8192}")
        a(f"s_mov_b32 s41, {(st>>1)*128 + pn*64*1152}")
        S.vmi(("W", i), f"buffer_load_dwordx4 v{VD}, s[{8+4*comp}:{11+4*comp}], s41 offen lds")
    def rd_s(S, f, k):
        if k or f >= 4 * plan_s.NPC: return
        i, b = divmod(f, 4); sl = plan_s.slot[i]
        buf = frbuf(f)
        S.lgi(("F2", f), f"ds_read_b128 v[{buf}:{buf+3}], v{VA + sl//7} offset:{(sl%7)*8192 + b*2048}")
    def hload_s(S, st):
        ops = []
        for j in range(2):
            def f(j=j):
                r = hreg(st, j)
                a(f"s_add_u32 s36, s{30+j}, {st*2048}")
                S.vmi(("H", st), f"buffer_load_dwordx4 v[{r}:{r+3}], v1, s[4:7], s36 offen sc1")
            ops.append(f)
        return ops
    for i in range(7): dma_s(S, i)
    pi, pc = poll_ops(S, a, 3, 248)
    pi()
    a(f"""
    v_and_b32 v{VPF}, 15, v0
    v_lshrrev_b32 v{VT}, 1, v{VPF}
    v_lshrrev_b32 v{VA+1}, 4, v0
    s_lshl_b32 s40, s26, 2
    v_add_u32 v{VA+1}, s40, v{VA+1}
    v_xor_b32 v{VT}, v{VT}, v{VA+1}
    v_lshlrev_b32 v{VT}, 4, v{VT}
    v_lshl_add_u32 v{VA}, v{VPF}, 7, v{VT}
    v_add_u32 v{VA}, {LB}, v{VA}
    v_add_u32 v{VA+1}, 57344, v{VA}
    v_add_u32 v{VA+2}, 114688, v{VA}
    """)
    S.sb_init(16)
    pc()
    for st in range(3):
        for f in hload_s(S, st): f()
    S.lg0(); a("s_barrier")
    for f in range(DF): rd_s(S, f, 0)
    k2_main(a, S, plan_s, "ssm", dma_s, rd_s, hload_s, [3], frbuf, {}, {})

    a.label("K2_fin")
    stamp(a, 11)
    B0 = SP; B1 = SP + 8; L0 = 48
    srd(a, 8, 52, 2048 * 2304)
    a(f"""
    s_lshl_b32 s41, s97, 2
    s_add_u32 s40, s48, s41
    v_mov_b32 v3, 1
    v_min_u32 v4, 4, v0
    v_lshlrev_b32 v4, 2, v4
    s_mov_b32 s47, 0
    s_waitcnt vmcnt(0)
    s_barrier
    """)
    stamp(a, 12)
    BL = 208
    def base_ld():
        for x in range(2):
            a(f"s_add_u32 s44, s{60+x}, {WS_BASE}")
            a(f"buffer_load_dwordx4 v[{BL+8*x}:{BL+8*x+3}], v{VO}, s[4:7], s44 offen")
            a(f"buffer_load_dwordx4 v[{BL+8*x+4}:{BL+8*x+7}], v{VO}, s[4:7], s44 offen offset:64")
    a(f"""
    s_cmp_lg_u32 s16, 0
    s_cbranch_scc1 K2_go
    s_mov_b64 exec, 1
    buffer_store_dword v3, v1, s[4:7], s40 offen sc1
    s_mov_b64 exec, -1
    """)
    a.label("K2_poll")
    a(f"""
    buffer_load_dword v5, v4, s[4:7], s48 offen sc1
    s_waitcnt vmcnt(0)
    v_cmp_ne_u32 vcc, 1, v5
    s_cbranch_vccz K2_go
    s_sleep {POLLSLEEP}
    s_add_u32 s47, s47, 1
    s_cmp_lt_u32 s47, 0x40000
    s_cbranch_scc1 K2_poll
    """)
    a.label("K2_go")
    base_ld()
    a("s_barrier")
    stamp(a, 13)
    a("s_mov_b32 s45, s97")
    for k in range(4):
        a(f"""
        s_add_u32 s45, s45, 1
        s_cmp_eq_u32 s45, 5
        s_cselect_b32 s45, 0, s45
        s_mul_i32 s46, s45, {48*48*1024}
        s_add_u32 s47, s46, s62
        s_add_u32 s46, s46, s63
        """)
        for x in range(2):
            r = L0 + (k * 2 + x) * 4
            a(f"buffer_load_dwordx4 v[{r}:{r+3}], v1, s[4:7], s{47-x} offen sc1")
    a("v_mov_b32 v3, 0xffff0000")
    a("s_waitcnt vmcnt(8)")
    for r in range(16): a(f"v_add_f32 v{SP+r}, v{SP+r}, v{BL+r}")
    for sp in range(4):
        for x, b in ((0, B0), (1, B1)):
            r = L0 + (sp * 2 + x) * 4
            a(f"s_waitcnt vmcnt({7 - (sp*2+x)})")
            for k in range(4):
                a(f"v_lshlrev_b32 v5, 16, v{r+k}")
                a(f"v_and_b32 v6, v3, v{r+k}")
                a(f"v_add_f32 v{b+2*k}, v{b+2*k}, v5")
                a(f"v_add_f32 v{b+2*k+1}, v{b+2*k+1}, v6")
    for x, b in ((0, B0), (1, B1)):
        a(f"buffer_store_dwordx4 v[{b}:{b+3}], v{VO}, s[8:11], s{60+x} offen")
        a(f"buffer_store_dwordx4 v[{b+4}:{b+7}], v{VO}, s[8:11], s{60+x} offen offset:64")
    a.label("K1_done")
    if STAMP: a("s_waitcnt vmcnt(0)")
    stamp(a, 14); stamp_out(a, 1, 16)
    a.label("K1_end")
    a("s_endpgm")
    a.label("CODE_END")
    return ("k1_kernel", 256, 512, JUNK + 1024, a.text(), 256, 102, 256)

def ssm_post4(a, NU, ACC, CN, sacc, SU):
    b = Asm()
    gen3.ssm_post(b, NU, ACC, CN, sacc, SU)
    t = b.text().replace("    s_waitcnt vmcnt(0)\n    s_nop 7\n", "    s_nop 7\n", 1)
    a.lines += t.rstrip("\n").split("\n")

if __name__ == "__main__":
    out = sys.argv[1] if len(sys.argv) > 1 else "out.s"
    ks = [G1.gen_k0(), gen_main()]
    open(out, "w").write(build_file(ks))
```

```python
import sys, os, copy
from asmlib import *
import gen as G1
from gen import WS_X, WS_H, WS_BASE, WS_CONST, WS_E, WS_PART, WS_SIZE, WS_FLAG, srd, MFMA, P
from gen import stamp, stamp_init, stamp_out, STAMP, ST0, XR, xreg

HST = os.environ.get("HST", "sc1")
LD = P("LD", 5); LX = P("LX", 2)
W2PF = P("W2PF", 1); W2G = P("W2G", 1)
S0 = P("S0", 6)
LP = P("LP", 10)
LH = P("LH", 3)
POLLSLEEP = P("POLLSLEEP", 2)
PRIO = P("PRIO", 0)
LB = 2048
JUNK = LB + 147456

def stampc(a, i):
    stamp(a, i)
    if STAMP: a(f"s_memtime s[{ST0+2*(i+8)}:{ST0+2*(i+8)+1}]")

class Stream:
    def __init__(self, a):
        self.a = a; self.vm = []; self.vd = 0; self.lg = []; self.ld = 0
        self.slow = []
    def fork(self):
        c = Stream(self.a); c.vm = list(self.vm); c.vd = self.vd; c.lg = list(self.lg); c.ld = self.ld; c.slow = self.slow
        return c
    def vmi(self, tag, text): self.a(text); self.vm.append(tag)
    def lgi(self, tag, text): self.a(text); self.lg.append(tag)
    def _w(self, ops, done, tags, cap):
        idx = [i for i, t in enumerate(ops) if t in tags]
        if not idx or max(idx) < done: return None
        return min(cap, len(ops) - 1 - max(idx))
    def vmw(self, tags):
        n = self._w(self.vm, self.vd, tags, 63)
        if n is not None:
            self.a(f"s_waitcnt vmcnt({n})"); self.vd = len(self.vm) - n
    def lgw(self, tags):
        n = self._w(self.lg, self.ld, tags, 15)
        if n is not None:
            self.a(f"s_waitcnt lgkmcnt({n})"); self.ld = len(self.lg) - n
    def vm0(self): self.a("s_waitcnt vmcnt(0)"); self.vd = len(self.vm)
    def lg0(self): self.a("s_waitcnt lgkmcnt(0)"); self.ld = len(self.lg)
    def sb_setup(self, vE, vR, vFA, sfl):
        self.vE, self.vR, self.vFA, self.sfl = vE, vR, vFA, sfl
    def fork2(self):
        c = self.fork(); c.sb_setup(self.vE, self.vR, self.vFA, self.sfl); return c
    def sb_init(self, swave):
        self.a(f"""
        s_lshl_b32 s{self.sfl}, s{swave}, 8
        v_mov_b32 v{self.vE}, 0
        s_mov_b32 m0, s{self.sfl}
        v_and_b32 v{self.vFA}, 7, v0
        v_mul_u32_u24 v{self.vFA}, 260, v{self.vFA}
        """)
        self.lgi("sbw", f"ds_write_addtid_b32 v{self.vE}")
    def arrive(self):
        self.a(f"s_mov_b32 m0, s{self.sfl}\nv_add_u32 v{self.vE}, 1, v{self.vE}")
        self.lgi("sbw", f"ds_write_addtid_b32 v{self.vE}")
    def peek(self):
        self.lgi("peek", f"ds_read_b32 v{self.vR}, v{self.vFA}")
    def check(self):
        self.lgw({"peek"})
        sl = self.a.newlabel("SBs"); bk = self.a.newlabel("SBb")
        self.a(f"v_cmp_gt_u32 vcc, v{self.vE}, v{self.vR}\ns_cbranch_vccnz {sl}")
        self.a.label(bk)
        self.slow.append((sl, bk, self.vE, self.vR, self.vFA))
    def emit_slow(self):
        for sl, bk, vE, vR, vFA in self.slow:
            self.a.label(sl)
            self.a(f"""
            s_sleep 1
            ds_read_b32 v{vR}, v{vFA}
            s_waitcnt lgkmcnt(0)
            v_cmp_gt_u32 vcc, v{vE}, v{vR}
            s_cbranch_vccnz {sl}
            s_branch {bk}
            """)
        self.slow.clear()

def spread(ops, n, k):
    return ops[len(ops) * k // n: len(ops) * (k + 1) // n]

def gen_k1():
    a = Asm()
    stamp_init(a); stamp(a, 0)
    a("""
    s_cmp_ge_u32 s2, 256
    s_cbranch_scc1 K1_end
    s_load_dwordx2 s[20:21], s[0:1], 120
    s_load_dwordx4 s[24:27], s[0:1], 80
    s_load_dwordx4 s[28:31], s[0:1], 24
    s_load_dwordx2 s[58:59], s[0:1], 96
    s_load_dwordx4 s[60:63], s[0:1], 40
    v_lshrrev_b32 v1, 6, v0
    v_and_b32 v0, 63, v0                     ; lane
    v_readfirstlane_b32 s16, v1              ; wave
    s_and_b32 s3, s2, 7                      ; xcd
    s_lshr_b32 s18, s2, 3
    s_and_b32 s17, s18, 7                    ; mt
    s_lshr_b32 s18, s18, 3                   ; k4
    v_lshlrev_b32 v1, 4, v0                  ; lane*16
    s_lshl_b32 s19, s17, 3
    s_add_u32 s19, s19, s16                  ; 8mt + w
    s_mul_i32 s32, s19, 36864
    s_add_u32 s33, s32, 18432
    s_mul_i32 s34, s19, 368640
    """)
    a(f"s_add_u32 s34, s34, {WS_H}")
    a(f"s_lshl_b32 s35, s16, 10\ns_add_u32 s35, s35, {LB}")
    a("s_waitcnt lgkmcnt(0)")
    srd(a, 4, 20, WS_SIZE)
    a("s_cmp_eq_u32 s18, 3\ns_cbranch_scc1 K1_ssm")

    def xload_ops(S, st):
        ops = []
        for j in range(2):
            for e in range(2):
                r = xreg(j, 2 * st + e)
                def f(j=j, e=e, r=r):
                    if e == 0: a(f"s_add_u32 s{36+j}, s{32+j}, {WS_X + st*2048}")
                    S.vmi(("X", st), f"buffer_load_dwordx4 v[{r}:{r+3}], v1, s[4:7], s{36+j} offen offset:{1024*e}")
                ops.append(f)
        return ops

    WSZ = 576 * 9216
    srd(a, 8, 24, WSZ)
    srd(a, 12, 26, WSZ)
    ACC = 48; FR = 24; VA = 2; VD = 14; T0 = 16
    S = Stream(a); S.sb_setup(15, 20, 21, 46)
    a(f"""
    s_mul_i32 s39, s3, 9
    s_mul_i32 s38, s18, 3
    s_add_u32 s39, s39, s38
    s_lshl_b32 s38, s39, 7                   ; line*128
    s_lshl_b32 s39, s39, 11
    s_add_u32 s39, s39, s34
    v_lshrrev_b32 v16, 3, v0
    s_lshl_b32 s40, s16, 3
    v_add_u32 v16, s40, v16
    v_mul_u32_u24 v16, 9216, v16
    v_bfe_u32 v17, v0, 4, 1
    s_and_b32 s40, s16, 1
    s_lshl_b32 s40, s40, 1
    v_or_b32 v17, s40, v17
    v_lshlrev_b32 v17, 1, v17
    v_and_b32 v18, 7, v0
    v_xor_b32 v17, v17, v18
    v_lshl_add_u32 v{VD}, v17, 4, v16
    """)
    def dma_ops(gs):
        G, st = divmod(gs, 9)
        ops = []
        for m in range(2):
            def f(m=m):
                a(f"s_add_u32 m0, s35, {st*16384 + m*8192}")
                a(f"s_add_u32 s41, s38, {G*128 + st*589824}")
                S.vmi(("D", gs), f"buffer_load_dwordx4 v{VD}, s[{8+4*m}:{11+4*m}], s41 offen lds")
            ops.append(f)
        return ops
    for st in range(2):
        for f in xload_ops(S, st) + dma_ops(st): f()
    for st in range(2, LX):
        for f in xload_ops(S, st): f()
    S.sb_init(16)
    a(f"""
    v_lshrrev_b32 v16, 4, v0
    v_lshlrev_b32 v16, 10, v16
    v_bfe_u32 v17, v0, 2, 2
    v_lshl_add_u32 v16, v17, 7, v16
    v_bfe_u32 v17, v0, 3, 2
    v_lshl_add_u32 v16, v17, 5, v16
    v_and_b32 v17, 3, v0
    v_lshl_add_u32 v16, v17, 3, v16
    v_add_u32 v16, {LB}, v16
    v_lshlrev_b32 v22, 7, v0
    """)
    for b in range(4):
        a(f"v_xor_b32 v{VA+b}, {b*32}, v16")
        a(f"v_add_u32 v{VA+4+b}, 49152, v{VA+b}")
        a(f"v_add_u32 v{VA+8+b}, 98304, v{VA+b}")
    if W2PF:
        a(f"""
        s_lshl_b32 s40, s18, 3
        s_add_u32 s40, s40, s17
        s_lshl_b32 s40, s40, 3
        s_add_u32 s40, s40, s16
        s_min_u32 s40, s40, 161
        """)
        for x in range(2):
            a(f"""
            s_mul_i32 s41, s3, 30
            s_add_u32 s41, s41, {29*x}
            s_mul_i32 s41, s41, 1366
            s_lshr_b32 s41, s41, 16              ; split
            s_cmp_ge_u32 s40, 81
            s_cselect_b32 s22, s62, s60
            s_cselect_b32 s23, s63, s61
            s_cselect_b32 s42, 81, 0
            s_sub_u32 s42, s40, s42
            s_lshl_b32 s42, s42, 13
            s_mul_i32 s47, s41, {1152*1152}
            s_lshl_b32 s45, s40, 13
            s_add_u32 s47, s47, s45
            s_cmp_eq_u32 s41, 4
            s_cselect_b32 s{48+4*x}, s22, s58
            s_cselect_b32 s{49+4*x}, s23, s59
            s_cselect_b32 s{56+x}, s42, s47
            s_mov_b32 s{50+4*x}, {4608*1152}
            s_cselect_b32 s{50+4*x}, {576*1152}, s{50+4*x}
            s_mov_b32 s{51+4*x}, 0x20000
            """)
    NBLK = 27 * 8
    def rd(gblk, k):
        if gblk >= NBLK: return
        gs, blk = divmod(gblk, 8)
        st = gs % 9
        u, m = divmod(blk, 2)
        s, e = divmod(k, 2)
        buf = FR + (gblk % 3) * 8 + s * 4 + e * 2
        reg = VA + (st // 3) * 4 + u
        off = (st % 3) * 16384 + m * 8192 + s * 4096 + e * 512
        S.lgi(("F", gblk), f"ds_read_b64_tr_b16 v[{buf}:{buf+1}], v{reg} offset:{off}")
    def acc(blk, j):
        return ACC + (blk * 2 + j) * 4
    def epi_ops(v, G):
        ops = []
        for j in range(2):
            for uu in range(2):
                g = acc(4 * v + 2 * uu, j); u = acc(4 * v + 2 * uu + 1, j)
                for r in range(4):
                    ops.append(lambda g=g, u=u, r=r: a(f"v_mul_f32 v{g+r}, v{g+r}, v{u+r}"))
            T = acc(4 * v + 1, j)
            g0 = acc(4 * v, j); g1 = acc(4 * v + 2, j)
            ops.append(lambda T=T, g=g0: a(f"v_cvt_pk_bf16_f32 v{T}, v{g}, v{g+1}"))
            ops.append(lambda T=T, g=g0: a(f"v_cvt_pk_bf16_f32 v{T+1}, v{g+2}, v{g+3}"))
            ops.append(lambda T=T, g=g1: a(f"v_cvt_pk_bf16_f32 v{T+2}, v{g}, v{g+1}"))
            ops.append(lambda T=T, g=g1: a(f"v_cvt_pk_bf16_f32 v{T+3}, v{g+2}, v{g+3}"))
            def st_(T=T, j=j):
                a(f"s_add_u32 s45, s39, {j*184320 + G*2048}")
                S.vmi("S", f"buffer_store_dwordx4 v[{T}:{T+3}], v1, s[4:7], s45 offen offset:{1024*v} {HST}")
            ops.append(st_)
        return ops
    stamp(a, 1)
    S.vmw({("X", 0), ("D", 0)}); S.lg0(); a("s_barrier")
    stamp(a, 2)
    for g in range(2):
        for k in range(4): rd(g, k)
    dnext = 2
    for gs in range(27):
        G, st = divmod(gs, 9)
        side = {b: [] for b in range(8)}
        if st == 0 and G > 0:
            e = epi_ops(1, G - 1)
            for b in range(3): side[b] += spread(e, 3, b)
        if st == 8:
            e = epi_ops(0, G)
            for b in range(3): side[5 + b] += spread(e, 3, b)
        if G == 0 and st + LX <= 8:
            x = xload_ops(S, st + LX)
            side[0] += x[:2]; side[1] += x[2:]
        for pos in (3, 6):
            if dnext <= min(gs + LD, 26) and (pos == 3 or dnext < gs + LD or True):
                if pos == 6 and G == 0 and 1 <= st <= 5 and dnext >= gs + 3: continue
                side[pos] += dma_ops(dnext); dnext += 1
        if W2PF and G == W2G and st < 8:
            def pf(x=st & 1):
                a(f"s_mov_b32 m0, {JUNK}\ns_mov_b64 exec, 0xffff")
                S.vmi("P", f"buffer_load_dword v22, s[{48+4*x}:{51+4*x}], s{56+x} offen lds")
                a(f"s_mov_b64 exec, -1\ns_add_u32 s{56+x}, s{56+x}, 2048")
            side[4].append(pf)
        for blk in range(8):
            g = gs * 8 + blk
            if blk == 0: S.vmw({("X", gs)})
            if gs < 26:
                if blk == 2:
                    S.vmw({("D", gs + 1)}); S.arrive()
                if blk == 5: S.peek()
                if blk == 6: S.check()
            S.lgw({("F", g)})
            buf = FR + (g % 3) * 8
            k = 0
            for j in range(2):
                for s in range(2):
                    c = acc(blk, j)
                    src2 = "0" if (st == 0 and s == 0) else f"v[{c}:{c+3}]"
                    x = xreg(j, 2 * st + s)
                    a(f"{MFMA} v[{c}:{c+3}], v[{buf+4*s}:{buf+4*s+3}], v[{x}:{x+3}], {src2}")
                    rd(g + 2, k)
                    for o in spread(side[blk], 4, k): o()
                    k += 1
        if st == 8: stampc(a, 3 + G)
    a("s_nop 7")
    for o in epi_ops(1, 2): o()
    if STAMP: a("s_waitcnt vmcnt(0)")
    stamp(a, 6); stamp_out(a, 1, 16)
    a("s_endpgm")
    S.emit_slow()

    a.label("K1_ssm")
    NU = 5
    ACC = 32; FR = 8; VA = 2
    BSZ = 576 * 1152
    S = Stream(a)
    a(f"""
    s_cmp_lt_u32 s16, 4
    s_cselect_b32 s22, s28, s30
    s_cselect_b32 s23, s29, s31
    """)
    srd(a, 8, 22, BSZ)
    a(f"""
    s_mul_i32 s39, s3, 5
    s_min_u32 s39, s39, 31                   ; ustart
    s_and_b32 s40, s16, 3
    s_lshl_b32 s41, s40, 3
    s_lshl_b32 s38, s39, 4
    s_add_u32 s41, s41, s38                  ; 16*ustart + 8*(w&3)
    v_lshrrev_b32 v8, 3, v0
    v_add_u32 v8, s41, v8
    v_mul_u32_u24 v8, 1152, v8
    s_and_b32 s41, s16, 1
    s_lshl_b32 s41, s41, 2
    v_lshrrev_b32 v9, 4, v0
    v_add_u32 v9, s41, v9
    v_and_b32 v10, 7, v0
    v_xor_b32 v9, v9, v10
    v_and_b32 v10, 15, v0
    v_lshrrev_b32 v11, 1, v10
    v_lshrrev_b32 v12, 4, v0
    v_xor_b32 v11, v11, v12
    v_lshlrev_b32 v11, 4, v11
    v_lshl_add_u32 v{VA}, v10, 7, v11
    v_add_u32 v{VA}, {LB}, v{VA}
    v_xor_b32 v{VA+1}, 64, v{VA}
    v_add_u32 v{VA+2}, 49152, v{VA}
    v_add_u32 v{VA+3}, 49152, v{VA+1}
    v_add_u32 v{VA+4}, 98304, v{VA}
    v_add_u32 v{VA+5}, 98304, v{VA+1}
    v_lshl_add_u32 v0, v9, 4, v8
    s_lshr_b32 s41, s16, 2
    s_mul_i32 s41, s41, 12288
    s_lshl_b32 s35, s40, 10
    s_add_u32 s35, s35, s41
    s_add_u32 s35, s35, {LB}
    """)
    def sdma_ops(st):
        slot = st % 6
        ops = []
        for t in range(3):
            def f(t=t):
                a(f"s_add_u32 m0, s35, {slot*24576 + t*4096}")
                a(f"s_mov_b32 s41, {st*128 + t*36864}")
                S.vmi(("D", st), f"buffer_load_dwordx4 v0, s[8:11], s41 offen lds")
            ops.append(f)
        return ops
    for st in range(2):
        for f in xload_ops(S, st) + sdma_ops(st): f()
    a(f"""
    s_cmp_lt_u32 s16, 4
    s_cselect_b32 s22, s24, s26
    s_cselect_b32 s23, s25, s27
    """)
    srd(a, 12, 22, 576 * 9216)
    a(f"""
    v_lshrrev_b32 v10, 4, v1
    v_mul_u32_u24 v8, 86, v10
    v_lshrrev_b32 v8, 8, v8
    v_mul_u32_u24 v9, 3, v8
    v_sub_u32 v9, v10, v9
    v_min_u32 v8, 17, v8
    v_mul_u32_u24 v8, 9216, v8
    v_mul_u32_u24 v9, 384, v9
    v_add_u32 v8, v8, v9
    s_lshl_b32 s40, s17, 2
    s_and_b32 s41, s16, 3
    s_add_u32 s40, s40, s41
    s_mul_i32 s40, s40, {18*9216}
    s_mul_i32 s41, s3, 1152
    s_add_u32 s40, s40, s41
    s_mov_b32 m0, {JUNK}
    s_nop 0
    """)
    S.vmi("P", "buffer_load_dword v8, s[12:15], s40 offen offset:128 lds")
    S.vmi("P", "buffer_load_dword v8, s[12:15], s40 offen offset:256 lds")
    NB = 2 * NU
    def srd_(gblk, s):
        if gblk >= 9 * NB: return
        st, blk = divmod(gblk, NB)
        u, comp = divmod(blk, 2)
        slot = st % 6
        buf = FR + (gblk % 3) * 8 + s * 4
        reg = VA + (slot // 2) * 2 + s
        off = (slot % 2) * 24576 + comp * 12288 + u * 2048
        S.lgi(("F", gblk), f"ds_read_b128 v[{buf}:{buf+3}], v{reg} offset:{off}")
    def sacc(u, comp, j):
        return ACC + ((u * 2 + comp) * 2 + j) * 4
    stamp(a, 1)
    S.vmw({("X", 0), ("D", 0)}); a("s_barrier")
    stamp(a, 2)
    for g in range(2):
        for s in range(2): srd_(g, s)
    CN = XR
    bar = {0: [1], 1: [2], 2: [3, 4, 5], 5: [6, 7, 8]}
    issue = {0: [("X", 2), ("D", 2), ("D", 3)], 1: [("X", 3), ("D", 4), ("D", 5)], 2: [("X", 4)], 3: [("X", 5), ("D", 6), ("D", 7)],
             4: [("X", 6), ("D", 8)], 5: [("X", 7)], 6: [("X", 8)]}
    for st in range(9):
        side = []
        for kind, t in issue.get(st, []):
            side += xload_ops(S, t) if kind == "X" else sdma_ops(t)
        for blk in range(NB):
            g = st * NB + blk
            if blk == 0: S.vmw({("X", st)})
            if blk == NB - 2 and st in bar:
                S.vmw({("D", t) for t in bar[st]})
                if st == 2: S.lg0()
                a("s_barrier")
            S.lgw({("F", g)})
            buf = FR + (g % 3) * 8
            u, comp = divmod(blk, 2)
            k = 0
            for j in range(2):
                for s in range(2):
                    c = sacc(u, comp, j)
                    src2 = "0" if (st == 0 and s == 0) else f"v[{c}:{c+3}]"
                    x = xreg(j, 2 * st + s)
                    a(f"{MFMA} v[{c}:{c+3}], v[{x}:{x+3}], v[{buf+4*s}:{buf+4*s+3}], {src2}")
                    if k % 2 == 0: srd_(g + 2, k // 2)
                    if k == 1 and blk < 6:
                        for o in spread(side, 6, blk): o()
                    k += 1
            if blk == 7 and st == 6:
                a(f"""
                v_mbcnt_lo_u32_b32 v0, -1, 0
                v_mbcnt_hi_u32_b32 v0, -1, v0
                v_and_b32 v{CN+44}, 15, v0
                v_lshlrev_b32 v{CN+44}, 6, v{CN+44}
                v_lshrrev_b32 v{CN+45}, 4, v0
                v_lshl_add_u32 v{CN+45}, v{CN+45}, 3, v{CN+44}
                s_lshl_b32 s40, s39, 10
                s_add_u32 s40, s40, {WS_CONST}
                """)
                for u2 in range(NU):
                    b = CN + 8 * u2
                    a(f"s_add_u32 s41, s40, {u2*1024}")
                    S.vmi("C", f"buffer_load_dwordx4 v[{b}:{b+3}], v{CN+44}, s[4:7], s41 offen")
                    S.vmi("C", f"buffer_load_dwordx2 v[{b+4}:{b+5}], v{CN+44}, s[4:7], s41 offen offset:40")
                    S.vmi("C", f"buffer_load_dwordx2 v[{b+6}:{b+7}], v{CN+45}, s[4:7], s41 offen offset:32")
                a("s_min_u32 s46, s16, 4\ns_lshl_b32 s41, s46, 10\ns_add_u32 s41, s41, s40")
                S.vmi("C", f"buffer_load_dwordx4 v[{CN+40}:{CN+43}], v{CN+44}, s[4:7], s41 offen offset:16")
    ssm_post(a, NU, ACC, CN, sacc, 39)
    if STAMP: a("s_waitcnt vmcnt(0)")
    stamp(a, 7); stamp_out(a, 1, 16)
    a.label("K1_end")
    a("s_endpgm")
    return ("k1_kernel", 256, 512, JUNK + 1024, a.text(), 256, 100, 256)

def ssm_post(a, NU, ACC, CN, sacc, SU):
    TP = XR + 48
    B0 = LB + 3 * 24576
    EQ, TT, SW = B0, B0 + 20480, B0 + 25600
    P_ = TP; E = TP + 10; t0 = TP + 20
    stamp(a, 3)
    a("s_waitcnt vmcnt(0)\ns_nop 7")
    stamp(a, 4)
    def breg(u, comp, i): return sacc(u, comp, i // 4) + (i % 4)
    def cmadd(dr, di, lr, li, xr, xi, br, bi, t):
        a(f"v_fma_f32 v{t}, v{lr}, v{xr}, v{br}")
        a(f"v_fma_f32 v{t+1}, v{lr}, v{xi}, v{bi}")
        a(f"v_fma_f32 v{t+1}, v{li}, v{xr}, v{t+1}")
        a(f"v_fma_f32 v{dr}, -v{li}, v{xi}, v{t}")
        a(f"v_mov_b32 v{di}, v{t+1}")
    def cmadd4(dr, di, lr, li, xr, xi, br, bi):
        if dr == br:
            a(f"v_fmac_f32 v{dr}, v{lr}, v{xr}")
            a(f"v_fmac_f32 v{di}, v{lr}, v{xi}")
        else:
            a(f"v_fma_f32 v{dr}, v{lr}, v{xr}, v{br}")
            a(f"v_fma_f32 v{di}, v{lr}, v{xi}, v{bi}")
        a(f"v_fma_f32 v{dr}, -v{li}, v{xi}, v{dr}")
        a(f"v_fmac_f32 v{di}, v{li}, v{xr}")
    E2 = t0 + 8
    for i in range(1, 8):
        for u in range(NU):
            lr, li = CN + 8 * u, CN + 8 * u + 1
            if i == 1: xr, xi = breg(u, 0, 0), breg(u, 1, 0)
            else:
                src = (E if (i - 1) % 2 == 1 else E2) + 2 * u
                xr, xi = src, src + 1
            dst = (E if i % 2 == 1 else E2) + 2 * u
            cmadd4(dst, dst + 1, lr, li, xr, xi, breg(u, 0, i), breg(u, 1, i))
    for u in range(NU):
        cr, ci = CN + 8 * u + 2, CN + 8 * u + 3
        br, bi = E + 2 * u, E + 2 * u + 1
        t = E2 + 2 * u
        a(f"v_mul_f32 v{t}, v{ci}, v{bi}")
        a(f"v_mul_f32 v{t+1}, v{ci}, v{br}")
        a(f"v_fma_f32 v{br}, v{cr}, v{br}, -v{t}")
        a(f"v_fma_f32 v{bi}, v{cr}, v{bi}, v{t+1}")
    A0 = t0 + 18; A1 = t0 + 19; A2 = t0 + 20; A3 = t0 + 21
    a(f"""
    v_and_b32 v{A2}, 15, v0
    v_lshrrev_b32 v{A3}, 4, v0
    s_lshl_b32 s40, s16, 9
    s_add_u32 s40, s40, {B0}
    v_lshl_add_u32 v{A0}, v{A2}, 5, s40          ; w*512 + p*32
    v_lshl_add_u32 v{A1}, v{A3}, 3, v{A0}        ; + q*8
    v_cmp_eq_u32 s[50:51], 1, v{A3}
    v_cmp_eq_u32 s[52:53], 2, v{A3}
    v_cmp_eq_u32 s[54:55], 3, v{A3}
    """)
    for u in range(NU):
        a(f"ds_write_b64 v{A1}, v[{E+2*u}:{E+2*u+1}] offset:{u*4096}")
    Q = t0 + 24
    a("s_waitcnt lgkmcnt(0)")
    for u in range(NU):
        a(f"ds_read_b128 v[{Q+8*u}:{Q+8*u+3}], v{A0} offset:{u*4096}")
        a(f"ds_read_b128 v[{Q+8*u+4}:{Q+8*u+7}], v{A0} offset:{u*4096 + 16}")
    a(f"s_lshl_b32 s40, s16, 3\ns_add_u32 s40, s40, {TT}\nv_lshl_add_u32 v{A1}, v{A2}, 6, s40")
    a("s_waitcnt lgkmcnt(0)")
    for step in range(1, 4):
        for u in range(NU):
            q = Q + 8 * u
            lr, li = CN + 8 * u + 4, CN + 8 * u + 5
            cmadd4(q + 2 * step, q + 2 * step + 1, lr, li, q + 2 * step - 2, q + 2 * step - 1, q + 2 * step, q + 2 * step + 1)
    for u in range(NU):
        q = Q + 8 * u
        a(f"ds_write_b64 v{A1}, v[{q+6}:{q+7}] offset:{u*1024}")
    for u in range(NU):
        q = Q + 8 * u
        for c in range(2):
            a(f"v_cndmask_b32 v{P_+2*u+c}, 0, v{q+c}, s[50:51]")
            a(f"v_cndmask_b32 v{P_+2*u+c}, v{P_+2*u+c}, v{q+2+c}, s[52:53]")
            a(f"v_cndmask_b32 v{P_+2*u+c}, v{P_+2*u+c}, v{q+4+c}, s[54:55]")
    a("s_waitcnt lgkmcnt(0)\ns_barrier")
    stamp(a, 5)
    def scale_all():
        for u in range(NU):
            cr, ci = CN + 8 * u + 2, CN + 8 * u + 3
            for i in range(8):
                br, bi = breg(u, 0, i), breg(u, 1, i)
                t = E2 + 2 * (i % 4)
                a(f"v_mul_f32 v{t}, v{ci}, v{bi}")
                a(f"v_mul_f32 v{t+1}, v{ci}, v{br}")
                a(f"v_fma_f32 v{br}, v{cr}, v{br}, -v{t}")
                a(f"v_fma_f32 v{bi}, v{cr}, v{bi}, v{t+1}")
    L32r, L32i, L256r, L256i = CN + 40, CN + 41, CN + 42, CN + 43
    TW = Q; G = Q + 16; S_ = t0
    a("s_cmp_ge_u32 s16, 5\ns_cbranch_scc1 K1_pub")
    a(f"""
    s_lshl_b32 s40, s16, 10
    s_add_u32 s40, s40, {TT}
    v_lshl_add_u32 v{A1}, v{A2}, 6, s40          ; u*1024 + p*64
    """)
    for k in range(4):
        a(f"ds_read_b128 v[{TW+4*k}:{TW+4*k+3}], v{A1} offset:{16*k}")
    a(f"""
    s_add_u32 s40, s{SU}, s16
    s_lshl_b32 s40, s40, 11
    s_add_u32 s40, s40, {WS_E}
    v_lshlrev_b32 v{A0}, 4, v{A2}
    s_waitcnt lgkmcnt(0)
    """)
    cur = (TW, TW + 1)
    for w in range(1, 8):
        d = S_ + 2 * (w % 2)
        cmadd4(d, d + 1, L32r, L32i, cur[0], cur[1], TW + 2 * w, TW + 2 * w + 1)
        cur = (d, d + 1)
    a(f"""
    v_mov_b32 v{G}, v{cur[0]}
    v_mov_b32 v{G+1}, 1
    v_mov_b32 v{G+2}, v{cur[1]}
    v_mov_b32 v{G+3}, 1
    s_lshl_b32 s41, s17, 8
    s_add_u32 s41, s41, s40
    s_mov_b64 exec, 0xffff
    buffer_store_dwordx4 v[{G}:{G+3}], v{A0}, s[4:7], s41 offen sc1
    s_mov_b64 exec, -1
    """)
    a.label("K1_pub")
    scale_all()
    a("s_cmp_ge_u32 s16, 5\ns_cbranch_scc1 K1_join")
    a(f"""
    v_mov_b32 v{S_}, 0
    v_mov_b32 v{S_+1}, 0
    s_mov_b32 s47, 0
    s_cmp_eq_u32 s17, 0
    s_cbranch_scc1 K1_lbdone
    """)
    a.label("K1_lbloop")
    for k in range(7):
        a(f"buffer_load_dwordx4 v[{G+4*k}:{G+4*k+3}], v{A0}, s[4:7], s40 offen offset:{256*k} sc1")
    a(f"""
    v_mov_b32 v{S_}, 0
    v_mov_b32 v{S_+1}, 0
    v_mov_b32 v{S_+4}, 1
    s_waitcnt vmcnt(0)
    """)
    for k in range(7):
        a(f"v_and_b32 v{S_+4}, v{S_+4}, v{G+4*k+1}")
        a(f"v_and_b32 v{S_+4}, v{S_+4}, v{G+4*k+3}")
        cmadd(S_, S_ + 1, L256r, L256i, S_, S_ + 1, G + 4 * k, G + 4 * k + 2, S_ + 2)
        if k < 6:
            a(f"s_cmp_eq_u32 s17, {k+1}\ns_cbranch_scc1 K1_lbchk")
    a.label("K1_lbchk")
    a(f"""
    v_cmp_ne_u32 vcc, 1, v{S_+4}
    s_cbranch_vccz K1_lbdone
    s_sleep 2
    s_add_u32 s47, s47, 1
    s_cmp_lt_u32 s47, 0x40000
    s_cbranch_scc1 K1_lbloop
    """)
    a.label("K1_lbdone")
    a(f"""
    s_lshl_b32 s40, s16, 10
    s_add_u32 s40, s40, {SW}
    v_lshl_add_u32 v{A1}, v{A2}, 3, s40
    ds_write_b64 v{A1}, v[{S_}:{S_+1}]
    """)
    cur = (S_, S_ + 1)
    for w in range(7):
        cmadd4(TW + 2 * w, TW + 2 * w + 1, L32r, L32i, cur[0], cur[1], TW + 2 * w, TW + 2 * w + 1)
        cur = (TW + 2 * w, TW + 2 * w + 1)
        a(f"ds_write_b64 v{A1}, v[{cur[0]}:{cur[1]}] offset:{128*(w+1)}")
    a.label("K1_join")
    a("s_waitcnt lgkmcnt(0)\ns_barrier")
    stamp(a, 6)
    a(f"""
    s_lshl_b32 s40, s16, 7
    s_add_u32 s40, s40, {SW}
    v_lshl_add_u32 v{A1}, v{A2}, 3, s40
    """)
    for u in range(NU):
        a(f"ds_read_b64 v[{E+2*u}:{E+2*u+1}], v{A1} offset:{u*1024}")
    a(f"""
    s_mul_i32 s40, s16, 10240
    s_add_u32 s40, s40, {LB}
    v_lshl_add_u32 v{A0}, v{A2}, 6, s40
    v_lshl_add_u32 v{A0}, v{A3}, 4, v{A0}
    v_lshl_add_u32 v{A1}, v{A3}, 9, s40
    v_bfe_u32 v{A2}, v0, 2, 2
    v_lshl_add_u32 v{A1}, v{A2}, 6, v{A1}
    v_and_b32 v{A2}, 3, v0
    v_lshl_add_u32 v{A1}, v{A2}, 4, v{A1}
    v_lshrrev_b32 v{A2}, 5, v0
    v_lshlrev_b32 v{A2}, 11, v{A2}
    v_and_b32 v{A3}, 31, v0
    v_lshl_add_u32 v{A2}, v{A3}, 4, v{A2}
    s_waitcnt lgkmcnt(0)
    """)
    for u in range(NU):
        cmadd4(P_ + 2 * u, P_ + 2 * u + 1, CN + 8 * u + 6, CN + 8 * u + 7, E + 2 * u, E + 2 * u + 1, P_ + 2 * u, P_ + 2 * u + 1)
    for i in range(8):
        for u in range(NU):
            lr, li = CN + 8 * u, CN + 8 * u + 1
            if i == 0: xr, xi = P_ + 2 * u, P_ + 2 * u + 1
            else: xr, xi = breg(u, 0, i - 1), breg(u, 1, i - 1)
            cmadd4(breg(u, 0, i), breg(u, 1, i), lr, li, xr, xi, breg(u, 0, i), breg(u, 1, i))
    for u in range(NU):
        q = Q + 8 * u
        for k in range(4):
            a(f"v_cvt_pk_bf16_f32 v{q+k}, v{breg(u,0,2*k)}, v{breg(u,0,2*k+1)}")
            a(f"v_cvt_pk_bf16_f32 v{q+4+k}, -v{breg(u,1,2*k)}, -v{breg(u,1,2*k+1)}")
        a(f"ds_write_b128 v{A0}, v[{q}:{q+3}] offset:{u*2048}")
        a(f"ds_write_b128 v{A0}, v[{q+4}:{q+7}] offset:{u*2048+1024}")
    a("s_waitcnt lgkmcnt(0)")
    for u in range(NU):
        for j in range(2):
            o = ACC + (u * 2 + j) * 4
            for e in range(2):
                a(f"ds_read_b64_tr_b16 v[{o+2*e}:{o+2*e+1}], v{A1} offset:{u*2048 + e*256 + j*8}")
    for u in range(NU):
        a(f"""
        s_add_u32 s40, s{SU}, {u}
        s_lshr_b32 s41, s40, 2
        s_lshl_b32 s41, s41, 12
        s_and_b32 s42, s40, 3
        s_lshl_b32 s42, s42, 9
        s_add_u32 s41, s41, s42
        s_add_u32 s41, s41, s34
        s_add_u32 s41, s41, {144*1024}
        s_add_u32 s42, s41, 184320
        s_waitcnt lgkmcnt({min(15, 4*(NU-1-u))})
        """)
        for j in range(2):
            o = ACC + (u * 2 + j) * 4
            a(f"buffer_store_dwordx4 v[{o}:{o+3}], v{A2}, s[4:7], s{41+j} offen {HST}")


def gen_k2():
    a = Asm()
    stamp_init(a); stamp(a, 0)
    a("""
    s_cmp_ge_u32 s2, 240
    s_cbranch_scc1 K2_end
    s_load_dwordx2 s[20:21], s[0:1], 120
    s_load_dwordx2 s[24:25], s[0:1], 96      ; w_down
    s_load_dwordx4 s[28:31], s[0:1], 40
    s_load_dwordx2 s[52:53], s[0:1], 104
    v_lshrrev_b32 v1, 6, v0
    v_and_b32 v0, 63, v0
    v_readfirstlane_b32 s16, v1              ; wave8
    s_and_b32 s3, s2, 7
    s_mul_i32 s3, s3, 30
    s_lshr_b32 s17, s2, 3
    s_add_u32 s3, s3, s17                    ; item
    s_mul_i32 s17, s3, 1366
    s_lshr_b32 s17, s17, 16                  ; split
    s_mul_i32 s18, s17, 48
    s_sub_u32 s18, s3, s18                   ; tile
    s_mul_i32 s19, s18, 21846
    s_lshr_b32 s19, s19, 16                  ; mt2
    s_mul_i32 s22, s19, 3
    s_sub_u32 s22, s18, s22                  ; nt
    s_and_b32 s23, s16, 3                    ; wm
    s_lshr_b32 s26, s16, 2                   ; h
    v_lshlrev_b32 v1, 4, v0
    s_lshl_b32 s32, s19, 2
    s_add_u32 s32, s32, s23
    s_mul_i32 s32, s32, 360
    s_mul_i32 s33, s17, 36
    s_add_u32 s32, s32, s33
    s_add_u32 s32, s32, s26
    s_lshl_b32 s32, s32, 10
    """)
    a(f"s_add_u32 s32, s32, {WS_H}\ns_add_u32 s33, s32, 184320")
    a(f"s_lshl_b32 s35, s16, 10\ns_add_u32 s35, s35, {LB}\ns_waitcnt lgkmcnt(0)")
    srd(a, 4, 20, WS_SIZE)
    T = 18 - S0
    ACC = 32; HF = 128; FR = HF + 8 * T; VA = 2; VD = 14; VO = 15; VC0 = 19; VC1 = 20
    BS = FR + 24
    assert BS + 16 <= 256 or True
    NP = 19; CA = 11
    pieces = []
    for st in range(S0): pieces += [(st, 0), (st, 1), (st, 2)]
    for st in range(S0, 18): pieces += [(st, 0), (st, 1)]
    PH2 = len(pieces)
    for st in range(S0, 18): pieces += [(st, 2)]
    NPC = len(pieces)
    def acc(nb, j): return ACC + (nb * 2 + j) * 4
    def hreg(st, j): return HF + (st % T) * 8 + j * 4
    sync = [(0, 1, 3), (2, 3, 5)]
    A = 3
    cov = 5
    while cov < NPC - 1:
        c = cov
        ar = max(sync[-1][1] + 0, c - 2)
        ncov = min(cov + 3, NPC - 1)
        if cov < PH2 <= ncov + 1 and False: pass
        sync.append((ar, c, ncov)); cov = ncov
    ev = sorted(sync)
    ev = [e for e in ev if e[1] <= PH2]
    cov = ev[-1][2]
    assert cov >= PH2 + 2, (cov, PH2)
    ev.append((PH2 + 1, PH2 + 2, min(NPC - 1, PH2 + 5))); cov = ev[-1][2]
    while cov < NPC - 1:
        ncov = min(cov + 3, NPC - 1)
        ev.append((max(ev[-1][1], cov - 2), cov, ncov)); cov = ncov
    arr = {e[0]: e for e in ev}; chk = {e[1]: e for e in ev}
    assert len(arr) == len(ev) and len(chk) == len(ev)
    for x, y in zip(ev, ev[1:]): assert x[1] <= y[0] and y[0] < y[1] and y[1] <= x[2], (x, y)
    def safe_after(p):
        for ar, c, _ in ev:
            if ar >= p: return c
        return 10 ** 9
    issue_at = {}
    npro = 4
    nxt = npro
    slot_of = {}; free_at = {s: -1 for s in range(NP)}
    def alloc(i, t):
        cands = [s for s in range(NP) if free_at[s] <= t]
        if safe_after(i) > PH2 - 0: cands = [s for s in cands if s < CA]
        else: cands = sorted(cands, key=lambda s: -s)
        if not cands: return None
        s = cands[0]; slot_of[i] = s; free_at[s] = safe_after(i); return s
    for i in range(npro): alloc(i, -1)
    for t in range(NPC):
        n = 0
        issue_at[t] = []
        while nxt < NPC and nxt <= t + LP and n < 2:
            if alloc(nxt, t) is None: break
            issue_at[t].append(nxt); nxt += 1; n += 1
    assert nxt == NPC
    for ar, c, cv in ev:
        for i in range(cv + 1):
            if i >= npro: assert min(t for t in issue_at if i in issue_at[t]) < ar, (i, ar)
    first_piece = {}
    for i, (st, pn) in enumerate(pieces): first_piece.setdefault(st, i)
    a(f"""
    v_bfe_u32 v16, v0, 2, 2
    v_lshlrev_b32 v16, 3, v16
    v_and_b32 v17, 3, v0
    v_add_u32 v16, v16, v17
    v_mul_u32_u24 v16, 2304, v16
    v_lshrrev_b32 v17, 4, v0
    v_lshl_add_u32 v{VO}, v17, 4, v16
    """)
    a("s_cmp_eq_u32 s17, 4\ns_cbranch_scc1 K2_ssm")
    for kind in ("ffn", "ssm"):
        S = Stream(a); S.sb_setup(16, 17, 18, 46)
        if kind == "ffn":
            srd(a, 8, 24, 4608 * 1152)
            a(f"""
            v_lshrrev_b32 v21, 3, v0
            s_lshl_b32 s40, s16, 3
            v_add_u32 v21, s40, v21
            v_mul_u32_u24 v21, 1152, v21
            v_lshrrev_b32 v22, 4, v0
            v_lshlrev_b32 v22, 1, v22
            v_and_b32 v23, 7, v0
            v_xor_b32 v22, v22, v23
            v_lshl_add_u32 v{VD}, v22, 4, v21
            s_mul_i32 s38, s17, {1152*1152}
            s_mul_i32 s40, s22, 384
            s_add_u32 s38, s38, s40
            """)
            def setup2():
                a(f"""
                v_lshrrev_b32 v21, 2, v0
                v_lshlrev_b32 v21, 7, v21
                v_bfe_u32 v22, v0, 3, 2
                v_lshl_add_u32 v21, v22, 5, v21
                v_and_b32 v22, 3, v0
                v_lshl_add_u32 v21, v22, 3, v21
                s_lshl_b32 s40, s26, 12
                s_add_u32 s40, s40, {LB}
                v_add_u32 v21, s40, v21
                """)
                for b in range(4):
                    a(f"v_xor_b32 v{VA+b}, {b*32}, v21")
                    a(f"v_add_u32 v{VA+4+b}, 57344, v{VA+b}")
                    a(f"v_add_u32 v{VA+8+b}, 114688, v{VA+b}")
            def dma(S, i):
                st, pn = pieces[i]
                a(f"s_add_u32 m0, s35, {slot_of[i]*8192}")
                a(f"s_add_u32 s41, s38, {st*64*1152 + pn*128}")
                S.vmi(("W", i), f"buffer_load_dwordx4 v{VD}, s[8:11], s41 offen lds")
            def rd(S, f, k):
                if f >= 4 * NPC: return
                i, b = divmod(f, 4); sl = slot_of[i]
                buf = FR + (f % 6) * 4 + 2 * k
                S.lgi(("F", f), f"ds_read_b64_tr_b16 v[{buf}:{buf+1}], v{VA + (sl//7)*4 + b} offset:{(sl%7)*8192 + k*2048}")
        else:
            a.label("K2_ssm")
            srd(a, 8, 28, 576 * 1152)
            srd(a, 12, 30, 576 * 1152)
            a(f"""
            s_mul_i32 s40, s22, 192
            s_lshl_b32 s41, s16, 3
            s_add_u32 s40, s40, s41
            v_lshrrev_b32 v21, 3, v0
            v_add_u32 v21, s40, v21
            v_mul_u32_u24 v21, 1152, v21
            s_and_b32 s41, s16, 1
            s_lshl_b32 s41, s41, 2
            v_lshrrev_b32 v22, 4, v0
            v_add_u32 v22, s41, v22
            v_and_b32 v23, 7, v0
            v_xor_b32 v22, v22, v23
            v_lshl_add_u32 v{VD}, v22, 4, v21
            """)
            def setup2():
                a(f"""
                v_and_b32 v21, 15, v0
                v_lshrrev_b32 v22, 1, v21
                v_lshrrev_b32 v23, 4, v0
                s_lshl_b32 s40, s26, 2
                v_add_u32 v23, s40, v23
                v_xor_b32 v22, v22, v23
                v_lshlrev_b32 v22, 4, v22
                v_lshl_add_u32 v{VA}, v21, 7, v22
                v_add_u32 v{VA}, {LB}, v{VA}
                v_add_u32 v{VA+1}, 57344, v{VA}
                v_add_u32 v{VA+2}, 114688, v{VA}
                """)
            def dma(S, i):
                st, pn = pieces[i]
                comp = st & 1
                a(f"s_add_u32 m0, s35, {slot_of[i]*8192}")
                a(f"s_mov_b32 s41, {(st>>1)*128 + pn*64*1152}")
                S.vmi(("W", i), f"buffer_load_dwordx4 v{VD}, s[{8+4*comp}:{11+4*comp}], s41 offen lds")
            def rd(S, f, k):
                if k or f >= 4 * NPC: return
                i, b = divmod(f, 4); sl = slot_of[i]
                buf = FR + (f % 6) * 4
                S.lgi(("F", f), f"ds_read_b128 v[{buf}:{buf+3}], v{VA + sl//7} offset:{(sl%7)*8192 + b*2048}")
        def hload_ops(S, st):
            ops = []
            for j in range(2):
                def f(j=j):
                    r = hreg(st, j)
                    a(f"s_add_u32 s36, s{32+j}, {st*2048}")
                    S.vmi(("H", st), f"buffer_load_dwordx4 v[{r}:{r+3}], v1, s[4:7], s36 offen")
                ops.append(f)
            return ops
        for f in hload_ops(S, 0): f()
        dma(S, 0); dma(S, 1); dma(S, 2)
        for f in hload_ops(S, 1): f()
        dma(S, 3)
        S.sb_init(16)
        setup2()
        unit_setup(a, VC0, VC1, CA)
        stamp(a, 1)
        S.vmw({("H", 0), ("W", 0), ("W", 1)}); S.lg0(); a("s_barrier")
        stamp(a, 2)
        for f in range(4):
            for k in range(2): rd(S, f, k)
        hn = [2]
        def piece(S, i, extra):
            st, pn = pieces[i]
            side = []
            if i < PH2:
                n = 0
                while hn[0] < 18 and hn[0] <= st + LH and n < 1:
                    side += hload_ops(S, hn[0]); hn[0] += 1; n += 1
            for x in issue_at[i]: side.append(lambda x=x: dma(S, x))
            side += extra
            if i in chk: S.check()
            if i in arr:
                S.vmw({("W", x) for x in range(arr[i][2] + 1)}); S.arrive()
            S.vmw({("H", st)})
            for b in range(4):
                f = 4 * i + b
                if b == 2 and (i + 1) in chk: S.peek()
                S.lgw({("F", f)})
                buf = FR + (f % 6) * 4
                for j in range(2):
                    c = acc(4 * pn + b, j); h = hreg(st, j)
                    src2 = "0" if st == 0 else f"v[{c}:{c+3}]"
                    a(f"{MFMA} v[{c}:{c+3}], v[{buf}:{buf+3}], v[{h}:{h+3}], {src2}")
                    rd(S, f + 4, j)
                    for o in spread(side, 8, 2 * b + j): o()
        for i in range(PH2):
            piece(S, i, [])
            if i == 17: stampc(a, 3)
        stampc(a, 4)
        a(f"s_cmp_eq_u32 s26, 1\ns_cbranch_scc1 K2_{kind}_h1")
        S_ = S
        for h in range(2):
            S = S_.fork2()
            if h == 1: a.label(f"K2_{kind}_h1")
            keep = ACC + 32 * h; send = ACC + 32 * (1 - h)
            ex = {}
            nop = [lambda: None] * 4
            ex[PH2] = nop + [lambda k=k: S.lgi("cw", f"ds_write_b128 v{VC0}, v[{send+4*k}:{send+4*k+3}] offset:{k*1024}") for k in range(8)]
            ex[PH2 + 2] = [lambda k=k: S.lgi(("cr", k), f"ds_read_b128 v[{send+4*k}:{send+4*k+3}], v{VC1} offset:{k*1024}") for k in range(8)]
            adds = []
            for k in range(8):
                def f(k=k):
                    S.lgw({("cr", k)})
                    for r in range(4): a(f"v_add_f32 v{keep+4*k+r}, v{keep+4*k+r}, v{send+4*k+r}")
                adds.append(f)
            ex[PH2 + 3] = adds
            B0 = hreg(S0, 0); B1 = hreg(S0 + 1, 0)
            def bl():
                for x, b in ((0, B0), (1, B1)):
                    a(f"s_add_u32 s44, s{60+x}, {WS_BASE}")
                    S.vmi("B", f"buffer_load_dwordx4 v[{b}:{b+3}], v{VO}, s[4:7], s44 offen")
                    S.vmi("B", f"buffer_load_dwordx4 v[{b+4}:{b+7}], v{VO}, s[4:7], s44 offen offset:64")
            ex[PH2 + 2] = ex[PH2 + 2] + [bl]
            OWN = hreg(S0 + 2, 0)
            def unit_out(un, src0, src1, T_, dst):
                nx = a.newlabel("K2_nx")
                for x, s_ in enumerate((src0, src1)):
                    a(f"v_cvt_pk_bf16_f32 v{T_+2*x}, v{s_}, v{s_+1}")
                    a(f"v_cvt_pk_bf16_f32 v{T_+2*x+1}, v{s_+2}, v{s_+3}")
                a(f"s_cmp_eq_u32 s49, {un % 5}\ns_cselect_b32 s44, 0x7ff00000, s{54 + un//3}")
                S.vmi("U", f"buffer_store_dwordx4 v[{T_}:{T_+3}], v1, s[4:7], s44 offen offset:{(un%3)*1024} sc1")
                a(f"s_cbranch_scc0 {nx}")
                for x, s_ in enumerate((src0, src1)):
                    for r in range(4): a(f"v_mov_b32 v{dst+4*x+r}, v{s_+r}")
                a.label(nx)
            outs = []
            for nbp in range(2):
                for j in range(2):
                    un = nbp * 2 + j
                    outs.append(lambda un=un, nbp=nbp, j=j: unit_out(un, keep + ((2*nbp)*2 + j)*4, keep + ((2*nbp+1)*2 + j)*4, send + 4*un, OWN))
            def zown():
                for r in range(8): a(f"v_mov_b32 v{OWN+r}, 0")
            ex[PH2 + 4] = [zown] + outs
            for i in range(PH2, NPC):
                piece(S, i, ex.get(i, []))
            stampc(a, 5)
            keep2 = ACC + 64 + 16 * h; send2 = ACC + 64 + 16 * (1 - h)
            a("s_nop 7")
            for k in range(4):
                a(f"ds_write_b128 v{VC0}, v[{send2+4*k}:{send2+4*k+3}] offset:{k*1024}")
            S.vmw({"B"})
            for r in range(8): a(f"v_add_f32 v{B0+r}, v{B0+r}, v{OWN+r}")
            a("s_waitcnt lgkmcnt(0)\ns_barrier")
            for k in range(4):
                a(f"ds_read_b128 v[{send2+4*k}:{send2+4*k+3}], v{VC1} offset:{k*1024}")
            for r in range(8): a(f"v_mov_b32 v{OWN+r}, 0")
            for k in range(4):
                a(f"s_waitcnt lgkmcnt({3-k})")
                for r in range(4): a(f"v_add_f32 v{keep2+4*k+r}, v{keep2+4*k+r}, v{send2+4*k+r}")
            for j in range(2):
                unit_out(4 + j, keep2 + j * 4, keep2 + 8 + j * 4, send2 + 4 * j, OWN)
            for r in range(8): a(f"v_add_f32 v{B1+r}, v{B1+r}, v{OWN+r}")
            a("s_branch K2_fin")
        S_.emit_slow()
    a.label("K2_fin")
    stamp(a, 6)
    B0 = hreg(S0, 0); B1 = hreg(S0 + 1, 0)
    srd(a, 8, 52, 2048 * 2304)
    a(f"""
    s_lshl_b32 s41, s17, 2
    s_add_u32 s40, s48, s41
    v_mov_b32 v2, 0
    v_mov_b32 v3, 1
    v_min_u32 v4, 4, v0
    v_lshlrev_b32 v4, 2, v4
    s_mov_b32 s47, 0
    s_waitcnt vmcnt(0)
    s_barrier
    """)
    stamp(a, 7)
    a(f"""
    s_cmp_lg_u32 s16, 0
    s_cbranch_scc1 K2_go
    s_mov_b64 exec, 1
    buffer_store_dword v3, v2, s[4:7], s40 offen sc1
    s_mov_b64 exec, -1
    """)
    a.label("K2_poll")
    a(f"""
    buffer_load_dword v5, v4, s[4:7], s48 offen sc1
    s_waitcnt vmcnt(0)
    v_cmp_ne_u32 vcc, 1, v5
    s_cbranch_vccz K2_go
    s_sleep {POLLSLEEP}
    s_add_u32 s47, s47, 1
    s_cmp_lt_u32 s47, 0x40000
    s_cbranch_scc1 K2_poll
    """)
    a.label("K2_go")
    a("s_barrier")
    stamp(a, 8)
    a("s_mov_b32 s45, s17")
    for k in range(4):
        a(f"""
        s_add_u32 s45, s45, 1
        s_cmp_eq_u32 s45, 5
        s_cselect_b32 s45, 0, s45
        s_mul_i32 s46, s45, {48*48*1024}
        s_add_u32 s47, s46, s62
        s_add_u32 s46, s46, s63
        """)
        for x in range(2):
            r = ACC + (k * 2 + x) * 4
            a(f"buffer_load_dwordx4 v[{r}:{r+3}], v1, s[4:7], s{47-x} offen sc1")
    a("v_mov_b32 v3, 0xffff0000")
    for sp in range(4):
        for x, b in ((0, B0), (1, B1)):
            r = ACC + (sp * 2 + x) * 4
            a(f"s_waitcnt vmcnt({7 - (sp*2+x)})")
            for k in range(4):
                a(f"v_lshlrev_b32 v5, 16, v{r+k}")
                a(f"v_and_b32 v6, v3, v{r+k}")
                a(f"v_add_f32 v{b+2*k}, v{b+2*k}, v5")
                a(f"v_add_f32 v{b+2*k+1}, v{b+2*k+1}, v6")
    for x, b in ((0, B0), (1, B1)):
        a(f"buffer_store_dwordx4 v[{b}:{b+3}], v{VO}, s[8:11], s{60+x} offen")
        a(f"buffer_store_dwordx4 v[{b+4}:{b+7}], v{VO}, s[8:11], s{60+x} offen offset:64")
    if STAMP: a("s_waitcnt vmcnt(0)")
    stamp(a, 9); stamp_out(a, 2, 16)
    a.label("K2_end")
    a("s_endpgm")
    a.label("CODE_END")
    return ("k2_kernel", 240, 512, LB + NP * 8192, a.text(), 256, 100, 256)

def unit_setup(a, VC0, VC1, CA):
    a(f"""
    s_add_u32 s49, s17, 10
    s_sub_u32 s49, s49, s16
    s_mul_i32 s47, s49, 52
    s_lshr_b32 s47, s47, 8
    s_mul_i32 s47, s47, 5
    s_sub_u32 s49, s49, s47                  ; (split - w8) mod 5
    s_lshl_b32 s47, s19, 7
    s_lshl_b32 s50, s23, 5
    s_add_u32 s47, s47, s50
    s_mul_i32 s47, s47, 2304
    s_mul_i32 s50, s22, 768
    s_add_u32 s47, s47, s50                  ; tile/wave row base
    ; early
    s_lshl_b32 s50, s26, 8
    s_add_u32 s60, s47, s50
    s_and_b32 s50, s49, 1
    s_mul_i32 s50, s50, {4*2304}
    s_add_u32 s60, s60, s50
    s_lshr_b32 s50, s49, 1
    s_lshl_b32 s50, s50, 7
    s_add_u32 s60, s60, s50
    ; late
    s_lshl_b32 s50, s26, 7
    s_add_u32 s61, s47, s50
    s_add_u32 s61, s61, 512
    s_cmp_eq_u32 s49, 0
    s_cselect_b32 s50, {4*2304}, 0
    s_add_u32 s61, s61, s50
    ; partial bases
    s_lshl_b32 s47, s18, 3
    s_add_u32 s47, s47, s16
    s_mul_i32 s47, s47, 6144
    s_add_u32 s47, s47, {WS_PART}
    s_mul_i32 s54, s17, {48*48*1024}
    s_add_u32 s54, s54, s47
    s_add_u32 s55, s54, 3072
    s_lshl_b32 s50, s49, 10
    s_add_u32 s62, s47, s50
    s_cmp_eq_u32 s49, 0
    s_cselect_b32 s50, 5120, 4096
    s_add_u32 s63, s47, s50
    s_cmp_lt_u32 s49, 4
    s_cselect_b32 s60, s60, 0x7ff00000
    s_cselect_b32 s62, s62, 0x7ff00000
    s_and_b32 s50, s49, 3
    s_cmp_eq_u32 s50, 0
    s_cselect_b32 s61, s61, 0x7ff00000
    s_cselect_b32 s63, s63, 0x7ff00000
    s_lshl_b32 s47, s18, 8
    s_add_u32 s48, s47, {WS_FLAG}
    s_lshl_b32 s47, s16, 13
    s_add_u32 s47, s47, {LB + CA*8192}
    v_add_u32 v{VC0}, s47, v1
    s_xor_b32 s50, s16, 4
    s_lshl_b32 s50, s50, 13
    s_add_u32 s50, s50, {LB + CA*8192}
    v_add_u32 v{VC1}, s50, v1
    """.replace("s_cselect_b32 s50, 5120, 4096", "s_mov_b32 s50, 4096\n    s_cselect_b32 s50, 5120, s50"))

if __name__ == "__main__":
    out = sys.argv[1] if len(sys.argv) > 1 else "out.s"
    ks = [G1.gen_k0(), gen_k1(), gen_k2()]
    open(out, "w").write(build_file(ks))
```

```python
import sys, os
from asmlib import *
import gen as G1
from gen import WS_X, WS_H, WS_BASE, WS_CONST, WS_E, WS_PART, WS_SIZE, WS_FLAG, srd, MFMA, P
from gen import stamp, stamp_init, stamp_out, STAMP, ST0, XR, xreg
import gen3
from gen3 import Stream, spread, stampc, LB

HST = "sc1"
LD = P("LD", 5); LX = P("LX", 2)
W2G = P("W2G", 1)
S0 = P("S0", 6); LP = P("LP", 14); LH = P("LH", 4)
POLLSLEEP = P("POLLSLEEP", 2)
SPC = [int(x) for x in os.environ.get("SPC", "4,8,12").split(",")]
NPRE = P("NPRE", 15); HPRE = P("HPRE", 12)
NP = 19; CA = 11
JUNK = LB + NP * 8192
WS_PF = WS_FLAG + 16384
OOB = "0x7ff00000"
VA = 2; VD = 6; VE = 7; VR = 8; VFA = 9; VO = 10; VC0 = 11; VC1 = 12; VPA = 13; VPF = 14; VT = 15
FR = 16; HF = XR; T = 18 - S0
DF = P("DF", 6)
VA2 = [VA, 240, 244]
PANEL = [208, 48, 80]
SP = XR + (S0 % (18 - S0)) * 8
assert T <= 12

def poll_ops(S, a, need, res):
    def issue():
        S.vmi(("poll", need), f"buffer_load_dword v{res}, v{VPA}, s[4:7], s57 offen sc1")
    def check():
        S.vmw({("poll", need)})
        sl = a.newlabel("PLs"); bk = a.newlabel("PLb")
        a(f"v_cmp_gt_u32 vcc, {need}, v{res}\ns_cbranch_vccnz {sl}")
        a.label(bk)
        S.pslow.append((sl, bk, need, res))
    return issue, check
def emit_pslow(S, a):
    for sl, bk, need, res in S.pslow:
        lp = a.newlabel("PLl")
        a.label(sl)
        a("s_mov_b32 s47, 0")
        a.label(lp)
        a(f"""
        s_sleep 4
        buffer_load_dword v{res}, v{VPA}, s[4:7], s57 offen sc1
        s_waitcnt vmcnt(0)
        v_cmp_gt_u32 vcc, {need}, v{res}
        s_cbranch_vccz {bk}
        s_add_u32 s47, s47, 1
        s_cmp_lt_u32 s47, 0x40000
        s_cbranch_scc1 {lp}
        s_branch {bk}
        """)
    S.pslow.clear()
def flag_store(S, a, val):
    a(f"v_mov_b32 v{VT}, {val}\ns_mov_b64 exec, 1")
    S.vmi("flag", f"buffer_store_dword v{VT}, v1, s[4:7], s56 offen sc1")
    a("s_mov_b64 exec, -1")

class K2Plan:
    def __init__(self, pre, avail, first_sync):
        pc = []
        for st in range(S0): pc += [(st, 0), (st, 1), (st, 2)]
        for st in range(S0, 18): pc += [(st, 0), (st, 1)]
        self.PH2 = PH2 = len(pc)
        for st in range(S0, 18): pc += [(st, 2)]
        self.pieces = pc; self.NPC = NPC = len(pc)
        ev = list(first_sync); cov = ev[-1][2]
        while True:
            c = cov - 1; ar = max(ev[-1][1], c - 2, 0)
            if c > PH2: break
            ncov = cov + 3
            if ncov > PH2 + 1: ncov = PH2 + 4
            ev.append((ar, c, ncov)); cov = ncov
        assert cov == PH2 + 4
        ev.append((PH2, PH2 + 1, PH2 + 5))
        ev.append((PH2 + 2, PH2 + 3, min(NPC - 1, PH2 + 8))); cov = ev[-1][2]
        ev.append((PH2 + 5, PH2 + 7, NPC - 1))
        self.ev = ev
        self.arr = {e[0]: e for e in ev if e[0] >= 0}; self.chk = {e[1]: e for e in ev if e[1] >= 0}
        for x, y in zip(ev, ev[1:]): assert x[1] <= y[0] < y[1] and (y[1] < x[2] or x[2] == NPC - 1), (x, y)
        def safe_after(p):
            for ar, c, _ in ev:
                if ar >= p: return c
            return 10 ** 9
        self.slot = {}; free_at = dict(avail)
        def alloc(i, t, forced=None):
            cands = [s for s in range(NP) if free_at[s] <= t]
            if safe_after(i) > PH2: cands = [s for s in cands if s < CA]
            else:
                cands = sorted(cands, key=lambda s: -s)
                if forced is None and i >= PH2 - 14 and i > t + 9: cands = [s for s in cands if s >= CA]
            if forced is not None: cands = [forced]
            if not cands: return None
            s = cands[0]; self.slot[i] = s; free_at[s] = safe_after(i); return s
        for i, s in enumerate(pre): alloc(i, -1, s)
        nxt = len(pre); self.issue_at = {}
        for t in range(NPC):
            self.issue_at[t] = []
            while nxt < NPC and nxt <= t + LP and len(self.issue_at[t]) < 2:
                if alloc(nxt, t) is None: break
                self.issue_at[t].append(nxt); nxt += 1
        assert nxt == NPC
        for ar, c, cv in ev:
            for i in range(len(pre), cv + 1):
                assert min(t for t in self.issue_at if i in self.issue_at[t]) < ar, (i, ar)

def k2acc(nb, j): return PANEL[nb // 4] + ((nb % 4) * 2 + j) * 4
def hreg(st, j): return HF + (st % T) * 8 + j * 4

def k2_main(a, S, plan, kind, dma, rd, hload_ops, hn, frbuf, extra0, hgate):
    PH2, NPC, pieces = plan.PH2, plan.NPC, plan.pieces
    def piece(S, i, extra):
        st, pn = pieces[i]
        pre, side = [], []
        for o in extra:
            (pre if getattr(o, "pre", False) else side).append(o)
        ld = []
        if hn[0] < 18 and (hn[0] <= st + LH) and i >= hgate.get(hn[0], 0) and i < PH2:
            ld += hload_ops(S, hn[0]); hn[0] += 1
        for x in plan.issue_at[i]: ld.append(lambda x=x: dma(S, x))
        side = ld + side
        if i in plan.chk: S.check()
        if i in plan.arr:
            S.vmw({("W", x) for x in range(plan.arr[i][2] + 1)}); S.arrive()
        for o in pre: o()
        assert ("H", st) in S.vm, (i, st)
        S.vmw({("H", st)})
        for b in range(4):
            f = 4 * i + b
            if b == 1 and (i + 1) in plan.chk: S.peek()
            S.lgw({("F2", f)})
            buf = frbuf(f)
            for j in range(2):
                c = k2acc(4 * pn + b, j); h = hreg(st, j)
                src2 = "0" if st == 0 else f"v[{c}:{c+3}]"
                a(f"{MFMA} v[{c}:{c+3}], v[{buf}:{buf+3}], v[{h}:{h+3}], {src2}")
                rd(S, f + DF, j)
                for o in spread(side, 8, 2 * b + j): o()
    for i in range(PH2):
        piece(S, i, extra0.get(i, []))
        if i == 17: stamp(a, 8)
        if kind == "ffn":
            for si, pi_ in zip((6, 7, 15), SPC):
                if i == pi_: stamp(a, si)
    stamp(a, 9)
    a(f"s_cmp_eq_u32 s26, 1\ns_cbranch_scc1 K2_{kind}_h1")
    S_ = S
    B0 = SP; B1 = SP + 8
    for h in range(2):
        S = S_.fork2(); S.pslow = S_.pslow
        if h == 1: a.label(f"K2_{kind}_h1")
        keep = PANEL[h]; send = PANEL[1 - h]
        ex = {}
        nop = [lambda: None]
        wr = [lambda k=k: S.lgi("cw", f"ds_write_b128 v{VC0}, v[{send+4*k}:{send+4*k+3}] offset:{k*1024}") for k in range(8)]
        ex[PH2] = nop * 2 + wr[:4]; ex[PH2 + 1] = wr[4:]
        ex[PH2 + 2] = [lambda r=r: a(f"v_mov_b32 v{SP+2*r}, 0\nv_mov_b32 v{SP+2*r+1}, 0") for r in range(8)]
        ex[PH2 + 3] = [lambda k=k: S.lgi(("cr", k), f"ds_read_b128 v[{send+4*k}:{send+4*k+3}], v{VC1} offset:{k*1024}") for k in range(8)]
        def add2(k, r0):
            S.lgw({("cr", k)})
            for r in (r0, r0 + 1): a(f"v_add_f32 v{keep+4*k+r}, v{keep+4*k+r}, v{send+4*k+r}")
        def unit_ops(un, src0, src1, T_, dst):
            ops = []
            for x, s_ in enumerate((src0, src1)):
                ops.append(lambda x=x, s_=s_: a(f"v_cvt_pk_bf16_f32 v{T_+2*x}, v{s_}, v{s_+1}\nv_cvt_pk_bf16_f32 v{T_+2*x+1}, v{s_+2}, v{s_+3}"))
            def fin():
                nx = a.newlabel("K2_nx")
                a(f"s_cmp_eq_u32 s49, {un % 5}\ns_cselect_b32 s44, {OOB}, s{54 + un//3}")
                S.vmi("U", f"buffer_store_dwordx4 v[{T_}:{T_+3}], v1, s[4:7], s44 offen offset:{(un%3)*1024} sc1")
                a(f"s_cbranch_scc0 {nx}")
                for x, s_ in enumerate((src0, src1)):
                    for r in range(4): a(f"v_add_f32 v{dst+4*x+r}, v{dst+4*x+r}, v{s_+r}")
                a.label(nx)
            ops.append(fin)
            return ops
        for nbp in range(2):
            ops = []
            for k in range(4 * nbp, 4 * nbp + 4):
                ops += [lambda k=k: add2(k, 0), lambda k=k: add2(k, 2)]
            ex[PH2 + 4 + 2 * nbp] = ops
            o2 = []
            for j in range(2):
                o2 += unit_ops(2 * nbp + j, keep + (4*nbp + j) * 4, keep + (4*nbp + 2 + j) * 4, send + (4*nbp + j) * 4, B0)
            ex[PH2 + 5 + 2 * nbp] = o2
        for i in range(PH2, NPC):
            piece(S, i, ex.get(i, []))
        stamp(a, 10)
        keep2 = PANEL[2] + 16 * h; send2 = PANEL[2] + 16 * (1 - h)
        a("s_nop 7")
        for k in range(4):
            a(f"ds_write_b128 v{VC0}, v[{send2+4*k}:{send2+4*k+3}] offset:{k*1024}")
        a("s_waitcnt lgkmcnt(0)\ns_barrier")
        for k in range(4):
            a(f"ds_read_b128 v[{send2+4*k}:{send2+4*k+3}], v{VC1} offset:{k*1024}")
        for k in range(4):
            a(f"s_waitcnt lgkmcnt({3-k})")
            for r in range(4): a(f"v_add_f32 v{keep2+4*k+r}, v{keep2+4*k+r}, v{send2+4*k+r}")
        for j in range(2):
            for o in unit_ops(4 + j, keep2 + j * 4, keep2 + 8 + j * 4, send2 + 4 * j, B1): o()
        a("s_branch K2_fin")
    S_.emit_slow(); emit_pslow(S_, a)

def base_load(S, a):
    for x in range(2):
        b = SP + 8 * x
        a(f"s_add_u32 s44, s{60+x}, {WS_BASE}")
        S.vmi("B", f"buffer_load_dwordx4 v[{b}:{b+3}], v{VO}, s[4:7], s44 offen")
        S.vmi("B", f"buffer_load_dwordx4 v[{b+4}:{b+7}], v{VO}, s[4:7], s44 offen offset:64")

def k2_scalars(a):
    a(f"""
    s_load_dwordx2 s[52:53], s[0:1], 104
    s_and_b32 s23, s16, 3
    s_lshr_b32 s26, s16, 2
    s_lshl_b32 s30, s98, 2
    s_add_u32 s30, s30, s23
    s_mul_i32 s30, s30, 360
    s_mul_i32 s31, s97, 36
    s_add_u32 s30, s30, s31
    s_add_u32 s30, s30, s26
    s_lshl_b32 s30, s30, 10
    s_add_u32 s30, s30, {WS_H}
    s_add_u32 s31, s30, 184320
    s_lshl_b32 s57, s98, 2
    s_add_u32 s57, s57, s23
    s_lshl_b32 s57, s57, 7
    s_mul_i32 s47, s97, 24
    s_add_u32 s57, s57, s47
    s_add_u32 s57, s57, {WS_PF}
    s_mul_i32 s27, s98, 3
    s_add_u32 s27, s27, s99                  ; tile
    s_add_u32 s49, s97, 10
    s_sub_u32 s49, s49, s16
    s_mul_i32 s47, s49, 52
    s_lshr_b32 s47, s47, 8
    s_mul_i32 s47, s47, 5
    s_sub_u32 s49, s49, s47
    s_lshl_b32 s47, s98, 7
    s_lshl_b32 s50, s23, 5
    s_add_u32 s47, s47, s50
    s_mul_i32 s47, s47, 2304
    s_mul_i32 s50, s99, 768
    s_add_u32 s47, s47, s50
    s_lshl_b32 s50, s26, 8
    s_add_u32 s60, s47, s50
    s_and_b32 s50, s49, 1
    s_mul_i32 s50, s50, {4*2304}
    s_add_u32 s60, s60, s50
    s_lshr_b32 s50, s49, 1
    s_lshl_b32 s50, s50, 7
    s_add_u32 s60, s60, s50
    s_lshl_b32 s50, s26, 7
    s_add_u32 s61, s47, s50
    s_add_u32 s61, s61, 512
    s_cmp_eq_u32 s49, 0
    s_cselect_b32 s50, {4*2304}, 0
    s_add_u32 s61, s61, s50
    s_lshl_b32 s47, s27, 3
    s_add_u32 s47, s47, s16
    s_mul_i32 s47, s47, 6144
    s_add_u32 s47, s47, {WS_PART}
    s_mul_i32 s54, s97, {48*48*1024}
    s_add_u32 s54, s54, s47
    s_add_u32 s55, s54, 3072
    s_lshl_b32 s50, s49, 10
    s_add_u32 s62, s47, s50
    s_cmp_eq_u32 s49, 0
    s_mov_b32 s50, 4096
    s_cselect_b32 s50, 5120, s50
    s_add_u32 s63, s47, s50
    s_cmp_lt_u32 s49, 4
    s_cselect_b32 s60, s60, {OOB}
    s_cselect_b32 s62, s62, {OOB}
    s_and_b32 s50, s49, 3
    s_cmp_eq_u32 s50, 0
    s_cselect_b32 s61, s61, {OOB}
    s_cselect_b32 s63, s63, {OOB}
    s_lshl_b32 s47, s27, 8
    s_add_u32 s48, s47, {WS_FLAG}
    """)
def k2_vregs(a, npoll):
    a(f"""
    v_bfe_u32 v{VO}, v0, 2, 2
    v_lshlrev_b32 v{VO}, 3, v{VO}
    v_and_b32 v{VT}, 3, v0
    v_add_u32 v{VO}, v{VO}, v{VT}
    v_mul_u32_u24 v{VO}, 2304, v{VO}
    v_lshrrev_b32 v{VT}, 4, v0
    v_lshl_add_u32 v{VO}, v{VT}, 4, v{VO}
    s_lshl_b32 s47, s16, 13
    s_add_u32 s47, s47, {LB + CA*8192}
    v_add_u32 v{VC0}, s47, v1
    s_xor_b32 s50, s16, 4
    s_lshl_b32 s50, s50, 13
    s_add_u32 s50, s50, {LB + CA*8192}
    v_add_u32 v{VC1}, s50, v1
    v_min_u32 v{VPA}, {npoll-1}, v0
    v_lshlrev_b32 v{VPA}, 2, v{VPA}
    """)

def gen_main():
    a = Asm()
    stamp_init(a); stamp(a, 0)
    a(f"""
    s_cmp_ge_u32 s2, 256
    s_cbranch_scc1 K1_end
    s_load_dwordx2 s[20:21], s[0:1], 120
    s_load_dwordx4 s[24:27], s[0:1], 80
    s_load_dwordx4 s[28:31], s[0:1], 24
    s_load_dwordx2 s[58:59], s[0:1], 96      ; w_down
    v_lshrrev_b32 v1, 6, v0
    v_and_b32 v0, 63, v0                     ; lane
    v_readfirstlane_b32 s16, v1              ; wave
    s_and_b32 s3, s2, 7                      ; xcd
    s_lshr_b32 s18, s2, 3
    s_and_b32 s17, s18, 7                    ; mt
    s_lshr_b32 s18, s18, 3                   ; k4
    v_lshlrev_b32 v1, 4, v0                  ; lane*16
    s_lshl_b32 s19, s17, 3
    s_add_u32 s19, s19, s16                  ; 8mt + w
    s_mul_i32 s32, s19, 36864
    s_add_u32 s33, s32, 18432
    s_mul_i32 s34, s19, 368640
    s_add_u32 s34, s34, {WS_H}
    s_lshl_b32 s35, s16, 10
    s_add_u32 s35, s35, {LB}
    s_lshl_b32 s56, s19, 7
    s_add_u32 s56, s56, {WS_PF}
    s_waitcnt lgkmcnt(0)
    """)
    srd(a, 4, 20, WS_SIZE)
    a("s_cmp_eq_u32 s18, 3\ns_cbranch_scc1 K1_ssm")

    def xload_ops(S, st):
        ops = []
        for j in range(2):
            for e in range(2):
                r = xreg(j, 2 * st + e)
                def f(j=j, e=e, r=r):
                    if e == 0: a(f"s_add_u32 s{36+j}, s{32+j}, {WS_X + st*2048}")
                    S.vmi(("X", st), f"buffer_load_dwordx4 v[{r}:{r+3}], v1, s[4:7], s{36+j} offen offset:{1024*e}")
                ops.append(f)
        return ops

    WSZ = 576 * 9216
    srd(a, 8, 24, WSZ)
    srd(a, 12, 26, WSZ)
    ACC = 48
    S = Stream(a); S.sb_setup(VE, VR, VFA, 46); S.pslow = []
    a(f"""
    s_mul_i32 s39, s3, 3
    s_add_u32 s39, s39, s18
    s_lshl_b32 s40, s39, 2
    s_add_u32 s56, s56, s40
    s_mul_i32 s39, s39, 3
    s_lshl_b32 s38, s39, 7
    s_lshl_b32 s39, s39, 11
    s_add_u32 s39, s39, s34
    v_lshrrev_b32 v16, 3, v0
    s_lshl_b32 s40, s16, 3
    v_add_u32 v16, s40, v16
    v_mul_u32_u24 v16, 9216, v16
    v_bfe_u32 v17, v0, 4, 1
    s_and_b32 s40, s16, 1
    s_lshl_b32 s40, s40, 1
    v_or_b32 v17, s40, v17
    v_lshlrev_b32 v17, 1, v17
    v_and_b32 v18, 7, v0
    v_xor_b32 v17, v17, v18
    v_lshl_add_u32 v{VD}, v17, 4, v16
    """)
    def dma_ops(gs):
        G, st = divmod(gs, 9)
        ops = []
        for m in range(2):
            def f(m=m):
                a(f"s_add_u32 m0, s35, {st*16384 + m*8192}")
                a(f"s_add_u32 s41, s38, {G*128 + st*589824}")
                S.vmi(("D", gs), f"buffer_load_dwordx4 v{VD}, s[{8+4*m}:{11+4*m}], s41 offen lds")
            ops.append(f)
        return ops
    for st in range(2):
        for f in xload_ops(S, st) + dma_ops(st): f()
    for st in range(2, LX):
        for f in xload_ops(S, st): f()
    a(f"""
    v_lshrrev_b32 v{VT}, 4, v0
    v_lshlrev_b32 v{VT}, 10, v{VT}
    v_bfe_u32 v17, v0, 2, 2
    v_lshl_add_u32 v{VT}, v17, 7, v{VT}
    v_bfe_u32 v17, v0, 3, 2
    v_lshl_add_u32 v{VT}, v17, 5, v{VT}
    v_and_b32 v17, 3, v0
    v_lshl_add_u32 v{VT}, v17, 3, v{VT}
    v_add_u32 v{VT}, {LB}, v{VT}
    v_lshlrev_b32 v{VPF}, 7, v0
    """)
    for b in range(4):
        a(f"v_xor_b32 v{VA+b}, {b*32}, v{VT}")
    S.sb_init(16)
    a(f"""
    s_lshr_b32 s97, s3, 1
    s_and_b32 s98, s3, 1
    s_lshl_b32 s98, s98, 3
    s_add_u32 s98, s98, s17
    s_mov_b32 s99, s18
    """)
    k2_scalars(a)
    k2_vregs(a, 6)
    a(f"""
    s_mul_i32 s51, s97, {1152*1152}
    s_mul_i32 s40, s99, 384
    s_add_u32 s28, s51, s40
    s_lshl_b32 s40, s18, 3
    s_add_u32 s40, s40, s17
    s_lshl_b32 s40, s40, 3
    s_add_u32 s40, s40, s16
    s_min_u32 s40, s40, 161
    s_lshl_b32 s40, s40, 13
    s_add_u32 s29, s51, s40
    """)
    srd(a, 20, 58, 4608 * 1152)
    NBLK = 27 * 8
    pre_slots = []; pre_when = []
    g2first = max(2, 9 - LD)
    free = []
    for st in range(0, 9):
        if st >= 2: free += [2 * (st - 2), 2 * (st - 2) + 1]
        if st == 3: free.append(18)
        if st >= g2first:
            n = 0
            while free and n < 3 and len(pre_slots) < NPRE:
                pre_slots.append(free.pop(0)); pre_when.append(st); n += 1
    avail = {s: -1 for s in range(NP)}
    for s in (14, 15): avail[s] = 0
    for s in (16, 17): avail[s] = 2
    plan = K2Plan(pre_slots, avail, [(-2, -1, 3), (0, 2, 6)])
    def line_of(st): return 3 * (st % 6) + st // 6
    def dma2(S, i):
        st, pn = plan.pieces[i]
        a(f"s_add_u32 m0, s35, {plan.slot[i]*8192}")
        a(f"s_add_u32 s41, s28, {line_of(st)*64*1152 + pn*128}")
        S.vmi(("W", i), f"buffer_load_dwordx4 v{VD}, s[20:23], s41 offen lds")
    def frbuf(f): return FR + (f % 8) * 4
    def rd2(S, f, k):
        if f >= 4 * plan.NPC: return
        i, b = divmod(f, 4); sl = plan.slot[i]
        buf = frbuf(f) + 2 * k
        S.lgi(("F2", f), f"ds_read_b64_tr_b16 v[{buf}:{buf+1}], v{VA2[sl//7] + b} offset:{(sl%7)*8192 + k*2048}")
    def hload_ops(S, st):
        ops = []
        for j in range(2):
            def f(j=j):
                r = hreg(st, j)
                a(f"s_add_u32 s36, s{30+j}, {line_of(st)*2048}")
                S.vmi(("H", st), f"buffer_load_dwordx4 v[{r}:{r+3}], v1, s[4:7], s36 offen sc1")
            ops.append(f)
        return ops
    def rd(gblk, k):
        if gblk >= NBLK:
            f = 2 * (gblk - NBLK) + k // 2
            if f < DF: rd2(S, f, k % 2)
            return
        gs, blk = divmod(gblk, 8)
        st = gs % 9
        u, m = divmod(blk, 2)
        s, e = divmod(k, 2)
        buf = FR + (gblk % 4) * 8 + s * 4 + e * 2
        off = (st % 3) * 16384 + m * 8192 + s * 4096 + e * 512
        S.lgi(("F", gblk), f"ds_read_b64_tr_b16 v[{buf}:{buf+1}], v{VA+u} offset:{off}")
        if st % 3 == 2 and m == 1 and k == 3 and gs < 26:
            a(f"v_add_u32 v{VA+u}, 49152, v{VA+u}" if st < 8 else f"v_subrev_u32 v{VA+u}, 98304, v{VA+u}")
    def acc(blk, j): return ACC + (blk * 2 + j) * 4
    def epi_ops(v, G):
        ops = []
        for j in range(2):
            for uu in range(2):
                g = acc(4 * v + 2 * uu, j); u = acc(4 * v + 2 * uu + 1, j)
                for r in range(4):
                    ops.append(lambda g=g, u=u, r=r: a(f"v_mul_f32 v{g+r}, v{g+r}, v{u+r}"))
            T_ = acc(4 * v + 1, j)
            g0 = acc(4 * v, j); g1 = acc(4 * v + 2, j)
            ops.append(lambda T_=T_, g=g0: a(f"v_cvt_pk_bf16_f32 v{T_}, v{g}, v{g+1}"))
            ops.append(lambda T_=T_, g=g0: a(f"v_cvt_pk_bf16_f32 v{T_+1}, v{g+2}, v{g+3}"))
            ops.append(lambda T_=T_, g=g1: a(f"v_cvt_pk_bf16_f32 v{T_+2}, v{g}, v{g+1}"))
            ops.append(lambda T_=T_, g=g1: a(f"v_cvt_pk_bf16_f32 v{T_+3}, v{g+2}, v{g+3}"))
            def st_(T_=T_, j=j):
                a(f"s_add_u32 s45, s39, {j*184320 + G*2048}")
                S.vmi(("S", G), f"buffer_store_dwordx4 v[{T_}:{T_+3}], v1, s[4:7], s45 offen offset:{1024*v} {HST}")
            ops.append(st_)
        return ops
    def publish(G):
        S.vmw({("S", G)}); flag_store(S, a, G + 1)
    def vd2():
        a(f"""
        v_lshrrev_b32 v{VD}, 3, v0
        s_lshl_b32 s40, s16, 3
        v_add_u32 v{VD}, s40, v{VD}
        v_mul_u32_u24 v{VD}, 1152, v{VD}
        v_lshrrev_b32 v{VT}, 4, v0
        v_lshlrev_b32 v{VT}, 1, v{VT}
        v_and_b32 v{VPF}, 7, v0
        v_xor_b32 v{VT}, v{VT}, v{VPF}
        v_lshl_add_u32 v{VD}, v{VT}, 4, v{VD}
        """)
    def va2_base():
        a(f"""
        v_lshrrev_b32 v{VPF}, 2, v0
        v_lshlrev_b32 v{VPF}, 7, v{VPF}
        v_bfe_u32 v{VT}, v0, 3, 2
        v_lshl_add_u32 v{VPF}, v{VT}, 5, v{VPF}
        v_and_b32 v{VT}, 3, v0
        v_lshl_add_u32 v{VPF}, v{VT}, 3, v{VPF}
        s_lshl_b32 s40, s26, 12
        s_add_u32 s40, s40, {LB}
        v_add_u32 v{VPF}, s40, v{VPF}
        """)
    def va2(region):
        for b in range(4):
            if region == 0: a(f"v_xor_b32 v{VA+b}, {b*32}, v{VPF}")
            else: a(f"v_add_u32 v{VA2[region]+b}, {57344*region}, v{VA+b}")
    stamp(a, 1)
    S.vmw({("X", 0), ("D", 0)}); S.lg0(); a("s_barrier")
    stamp(a, 2)
    for g in range(3):
        for k in range(4): rd(g, k)
    dnext = 2
    p1i, p1c = poll_ops(S, a, 1, VT)
    p2i, p2c = poll_ops(S, a, 2, VT if HPRE > 6 else VPF)
    for gs in range(27):
        G, st = divmod(gs, 9)
        side = {b: [] for b in range(8)}
        if st == 0 and G > 0:
            e = epi_ops(1, G - 1)
            for b in range(3): side[b] += spread(e, 3, b)
        if st == 2 and G > 0: side[7].append(lambda G=G: publish(G - 1))
        if st == 8:
            e = epi_ops(0, G)
            for b in range(3): side[5 + b] += spread(e, 3, b)
        if G == 0 and st + LX <= 8:
            x = xload_ops(S, st + LX)
            side[0] += x[:2]; side[1] += x[2:]
        for pos in (3, 6):
            if dnext <= min(gs + LD, 26):
                if pos == 6 and G == 0 and 1 <= st <= 5 and dnext >= gs + 3: continue
                side[pos] += dma_ops(dnext); dnext += 1
        if G == W2G and st < 8 and st % 2 == 0:
            def pf():
                a(f"s_mov_b32 m0, {JUNK}\ns_mov_b64 exec, 0xffff")
                S.vmi("P", f"buffer_load_dword v{VPF}, s[20:23], s29 offen lds")
                a(f"s_mov_b64 exec, -1\ns_add_u32 s29, s29, 2048")
            side[4].append(pf)
        if G == 2:
            if st == 0: side[4].append(p1i)
            if st == 1: side[4].append(p1c)
            if 1 <= st <= 3:
                side[5] += hload_ops(S, 2 * (st - 1)); side[6] += hload_ops(S, 2 * (st - 1) + 1)
            if HPRE > 6:
                if st == 5: side[1].append(p2i)
                if st == 6: side[0].append(p2c)
                hs = {6: [(3, 6), (6, 7), (7, 8)], 7: [(0, 9), (1, 10), (5, 11)]}.get(st, [])
                for b, hh in hs:
                    if hh < HPRE: side[b] += hload_ops(S, hh)
            if st == g2first: side[0].append(vd2)
            k = 0
            for i, w in enumerate(pre_when):
                if w == st:
                    side[(3, 4, 7)[k] if st < 8 else (1, 3, 4)[k]].append(lambda i=i: dma2(S, i)); k += 1
            if st == 6: side[1].append(va2_base)
        for blk in range(8):
            g = gs * 8 + blk
            if blk == 0: S.vmw({("X", gs)})
            if blk == 1:
                S.vmw({("D", gs + 1)} if gs < 26 else {("W", x) for x in range(4)}); S.arrive()
            if blk == 3: S.peek()
            if blk == 5:
                S.check()
                if gs == 26: va2(0)
            S.lgw({("F", g)})
            buf = FR + (g % 4) * 8
            k = 0
            for j in range(2):
                for s in range(2):
                    c = acc(blk, j)
                    src2 = "0" if (st == 0 and s == 0) else f"v[{c}:{c+3}]"
                    x = xreg(j, 2 * st + s)
                    a(f"{MFMA} v[{c}:{c+3}], v[{buf+4*s}:{buf+4*s+3}], v[{x}:{x+3}], {src2}")
                    rd(g + 3, k)
                    for o in spread(side[blk], 4, k): o()
                    k += 1
        if st == 8: stamp(a, 3 + G)
    e = epi_ops(1, 2)
    p3i, p3c = poll_ops(S, a, 3, VPF)
    p2c.pre = True; p3c.pre = True
    P3 = P("P3", 19)
    P2 = P("P2", 2); P2C = P("P2C", 5); PUB = P("PUB", 11); PB = P("PB", 8)
    def va12(): va2(1); va2(2)
    va12.pre = True
    extra0 = {0: [va12]}
    for k, v in ((0, spread(e, 2, 0)), (1, spread(e, 2, 1)), (P2, [p2i] if HPRE <= 6 else []), (P2C, [p2c] if HPRE <= 6 else []), (PUB, [lambda: publish(2)]),
              (P3, [p3i]), (P3 + 3, [p3c])):
        extra0.setdefault(k, []).extend(v)
    hgate = {st: P2C for st in range(6, 12)}; hgate.update({st: P3 + 3 for st in range(12, 18)})
    k2_main(a, S, plan, "ffn", dma2, rd2, hload_ops, [HPRE], frbuf, extra0, hgate)

    a.label("K1_ssm")
    NU = 5
    SACC = 32; SFR = 8
    BSZ = 576 * 1152
    S = Stream(a); S.pslow = []
    a(f"""
    s_cmp_lt_u32 s16, 4
    s_cselect_b32 s22, s28, s30
    s_cselect_b32 s23, s29, s31
    """)
    srd(a, 8, 22, BSZ)
    a(f"""
    s_load_dwordx4 s[28:31], s[0:1], 40
    s_lshl_b32 s40, s3, 2
    s_add_u32 s56, s56, s40
    s_add_u32 s56, s56, 96
    s_mul_i32 s39, s3, 5
    s_min_u32 s39, s39, 31                   ; ustart
    s_and_b32 s40, s16, 3
    s_lshl_b32 s41, s40, 3
    s_lshl_b32 s38, s39, 4
    s_add_u32 s41, s41, s38
    v_lshrrev_b32 v8, 3, v0
    v_add_u32 v8, s41, v8
    v_mul_u32_u24 v8, 1152, v8
    s_and_b32 s41, s16, 1
    s_lshl_b32 s41, s41, 2
    v_lshrrev_b32 v9, 4, v0
    v_add_u32 v9, s41, v9
    v_and_b32 v10, 7, v0
    v_xor_b32 v9, v9, v10
    v_and_b32 v10, 15, v0
    v_lshrrev_b32 v11, 1, v10
    v_lshrrev_b32 v12, 4, v0
    v_xor_b32 v11, v11, v12
    v_lshlrev_b32 v11, 4, v11
    v_lshl_add_u32 v{VA}, v10, 7, v11
    v_add_u32 v{VA}, {LB}, v{VA}
    v_xor_b32 v{VA+1}, 64, v{VA}
    v_add_u32 v{VA+2}, 49152, v{VA}
    v_add_u32 v{VA+3}, 49152, v{VA+1}
    v_add_u32 v{VA+4}, 98304, v{VA}
    v_add_u32 v{VA+5}, 98304, v{VA+1}
    v_lshl_add_u32 v0, v9, 4, v8
    s_lshr_b32 s41, s16, 2
    s_mul_i32 s41, s41, 12288
    s_lshl_b32 s43, s40, 10
    s_add_u32 s43, s43, s41
    s_add_u32 s43, s43, {LB}
    """)
    def sdma_ops(st):
        slot = st % 6
        ops = []
        for t in range(3):
            def f(t=t):
                a(f"s_add_u32 m0, s43, {slot*24576 + t*4096}")
                a(f"s_mov_b32 s41, {st*128 + t*36864}")
                S.vmi(("D", st), f"buffer_load_dwordx4 v0, s[8:11], s41 offen lds")
            ops.append(f)
        return ops
    for st in range(2):
        for f in xload_ops(S, st) + sdma_ops(st): f()
    a(f"""
    s_cmp_lt_u32 s16, 4
    s_cselect_b32 s22, s24, s26
    s_cselect_b32 s23, s25, s27
    """)
    srd(a, 12, 22, 576 * 9216)
    a(f"""
    v_lshrrev_b32 v10, 4, v1
    v_mul_u32_u24 v8, 86, v10
    v_lshrrev_b32 v8, 8, v8
    v_mul_u32_u24 v9, 3, v8
    v_sub_u32 v9, v10, v9
    v_min_u32 v8, 17, v8
    v_mul_u32_u24 v8, 9216, v8
    v_mul_u32_u24 v9, 384, v9
    v_add_u32 v8, v8, v9
    s_lshl_b32 s40, s17, 2
    s_and_b32 s41, s16, 3
    s_add_u32 s40, s40, s41
    s_mul_i32 s40, s40, {18*9216}
    s_mul_i32 s41, s3, 1152
    s_add_u32 s40, s40, s41
    s_mov_b32 m0, {JUNK}
    s_nop 0
    """)
    S.vmi("P", "buffer_load_dword v8, s[12:15], s40 offen offset:128 lds")
    S.vmi("P", "buffer_load_dword v8, s[12:15], s40 offen offset:256 lds")
    a("s_waitcnt lgkmcnt(0)")
    NB = 2 * NU
    def srd_(gblk, s):
        if gblk >= 9 * NB: return
        st, blk = divmod(gblk, NB)
        u, comp = divmod(blk, 2)
        slot = st % 6
        buf = SFR + (gblk % 3) * 8 + s * 4
        reg = VA + (slot // 2) * 2 + s
        off = (slot % 2) * 24576 + comp * 12288 + u * 2048
        S.lgi(("F", gblk), f"ds_read_b128 v[{buf}:{buf+3}], v{reg} offset:{off}")
    def sacc(u, comp, j): return SACC + ((u * 2 + comp) * 2 + j) * 4
    stamp(a, 1)
    S.vmw({("X", 0), ("D", 0)}); a("s_barrier")
    stamp(a, 2)
    for g in range(2):
        for s in range(2): srd_(g, s)
    CN = XR
    bar = {0: [1], 1: [2], 2: [3, 4, 5], 5: [6, 7, 8]}
    issue = {0: [("X", 2), ("D", 2), ("D", 3)], 1: [("X", 3), ("D", 4), ("D", 5)], 2: [("X", 4)], 3: [("X", 5), ("D", 6), ("D", 7)],
             4: [("X", 6), ("D", 8)], 5: [("X", 7)], 6: [("X", 8)]}
    for st in range(9):
        side = []
        for kind, t in issue.get(st, []):
            side += xload_ops(S, t) if kind == "X" else sdma_ops(t)
        for blk in range(NB):
            g = st * NB + blk
            if blk == 0: S.vmw({("X", st)})
            if blk == NB - 2 and st in bar:
                S.vmw({("D", t) for t in bar[st]})
                if st == 2: S.lg0()
                a("s_barrier")
            S.lgw({("F", g)})
            buf = SFR + (g % 3) * 8
            u, comp = divmod(blk, 2)
            k = 0
            for j in range(2):
                for s in range(2):
                    c = sacc(u, comp, j)
                    src2 = "0" if (st == 0 and s == 0) else f"v[{c}:{c+3}]"
                    x = xreg(j, 2 * st + s)
                    a(f"{MFMA} v[{c}:{c+3}], v[{x}:{x+3}], v[{buf+4*s}:{buf+4*s+3}], {src2}")
                    if k % 2 == 0: srd_(g + 2, k // 2)
                    if k == 1 and blk < 6:
                        for o in spread(side, 6, blk): o()
                    k += 1
            if blk == 7 and st == 6:
                a(f"""
                v_mbcnt_lo_u32_b32 v0, -1, 0
                v_mbcnt_hi_u32_b32 v0, -1, v0
                v_and_b32 v{CN+44}, 15, v0
                v_lshlrev_b32 v{CN+44}, 6, v{CN+44}
                v_lshrrev_b32 v{CN+45}, 4, v0
                v_lshl_add_u32 v{CN+45}, v{CN+45}, 3, v{CN+44}
                s_lshl_b32 s40, s39, 10
                s_add_u32 s40, s40, {WS_CONST}
                """)
                for u2 in range(NU):
                    b = CN + 8 * u2
                    a(f"s_add_u32 s41, s40, {u2*1024}")
                    S.vmi("C", f"buffer_load_dwordx4 v[{b}:{b+3}], v{CN+44}, s[4:7], s41 offen")
                    S.vmi("C", f"buffer_load_dwordx2 v[{b+4}:{b+5}], v{CN+44}, s[4:7], s41 offen offset:40")
                    S.vmi("C", f"buffer_load_dwordx2 v[{b+6}:{b+7}], v{CN+45}, s[4:7], s41 offen offset:32")
                a("s_min_u32 s46, s16, 4\ns_lshl_b32 s41, s46, 10\ns_add_u32 s41, s41, s40")
                S.vmi("C", f"buffer_load_dwordx4 v[{CN+40}:{CN+43}], v{CN+44}, s[4:7], s41 offen offset:16")
                srd(a, 8, 28, BSZ); srd(a, 12, 30, BSZ)
                a(f"""
                s_cmp_lt_u32 s16, 4
                s_cselect_b32 s22, s28, s30
                s_cselect_b32 s23, s29, s31
                s_mov_b32 s24, s22
                s_mov_b32 s25, s23
                s_mov_b32 s26, {BSZ}
                s_mov_b32 s27, 0x20000
                s_lshl_b32 s40, s17, 2
                s_and_b32 s41, s16, 3
                s_add_u32 s40, s40, s41
                s_mul_i32 s40, s40, {162*128}
                v_min_u32 v{CN+46}, 53, v0
                v_lshlrev_b32 v{CN+46}, 7, v{CN+46}
                s_mov_b32 m0, {JUNK}
                """)
                for t in range(3):
                    S.vmi("P", f"buffer_load_dword v{CN+46}, s[24:27], s40 offen lds")
                    a(f"s_add_u32 s40, s40, {54*128}")
    S.vmw({"C"})
    gen3.HST = HST
    ssm_post4(a, NU, SACC, CN, sacc, 39)
    a("s_waitcnt vmcnt(0)")
    S = Stream(a); S.sb_setup(VE, VR, VFA, 46); S.pslow = []
    flag_store(S, a, 3)
    stamp(a, 7)
    a(f"""
    s_cmp_ge_u32 s17, 6
    s_cbranch_scc1 K1_done
    s_mov_b32 s97, 4
    s_cmp_ge_u32 s17, 3
    s_cselect_b32 s40, 1, 0
    s_lshl_b32 s98, s3, 1
    s_add_u32 s98, s98, s40
    s_mul_i32 s40, s40, 3
    s_sub_u32 s99, s17, s40
    """)
    k2_scalars(a)
    k2_vregs(a, 8)
    plan_s = K2Plan([18, 17, 16, 15, 14, 13, 10], {s: -1 for s in range(NP)}, [(-2, -1, 3), (0, 2, 6)])
    a(f"""
    s_mul_i32 s40, s99, 192
    s_lshl_b32 s41, s16, 3
    s_add_u32 s40, s40, s41
    v_lshrrev_b32 v{VD}, 3, v0
    v_add_u32 v{VD}, s40, v{VD}
    v_mul_u32_u24 v{VD}, 1152, v{VD}
    s_and_b32 s41, s16, 1
    s_lshl_b32 s41, s41, 2
    v_lshrrev_b32 v{VT}, 4, v0
    v_add_u32 v{VT}, s41, v{VT}
    v_and_b32 v{VPF}, 7, v0
    v_xor_b32 v{VT}, v{VT}, v{VPF}
    v_lshl_add_u32 v{VD}, v{VT}, 4, v{VD}
    """)
    def dma_s(S, i):
        st, pn = plan_s.pieces[i]
        comp = st & 1
        a(f"s_add_u32 m0, s35, {plan_s.slot[i]*8192}")
        a(f"s_mov_b32 s41, {(st>>1)*128 + pn*64*1152}")
        S.vmi(("W", i), f"buffer_load_dwordx4 v{VD}, s[{8+4*comp}:{11+4*comp}], s41 offen lds")
    def rd_s(S, f, k):
        if k or f >= 4 * plan_s.NPC: return
        i, b = divmod(f, 4); sl = plan_s.slot[i]
        buf = frbuf(f)
        S.lgi(("F2", f), f"ds_read_b128 v[{buf}:{buf+3}], v{VA + sl//7} offset:{(sl%7)*8192 + b*2048}")
    def hload_s(S, st):
        ops = []
        for j in range(2):
            def f(j=j):
                r = hreg(st, j)
                a(f"s_add_u32 s36, s{30+j}, {st*2048}")
                S.vmi(("H", st), f"buffer_load_dwordx4 v[{r}:{r+3}], v1, s[4:7], s36 offen sc1")
            ops.append(f)
        return ops
    for i in range(7): dma_s(S, i)
    pi, pc = poll_ops(S, a, 3, 248)
    pi()
    a(f"""
    v_and_b32 v{VPF}, 15, v0
    v_lshrrev_b32 v{VT}, 1, v{VPF}
    v_lshrrev_b32 v{VA+1}, 4, v0
    s_lshl_b32 s40, s26, 2
    v_add_u32 v{VA+1}, s40, v{VA+1}
    v_xor_b32 v{VT}, v{VT}, v{VA+1}
    v_lshlrev_b32 v{VT}, 4, v{VT}
    v_lshl_add_u32 v{VA}, v{VPF}, 7, v{VT}
    v_add_u32 v{VA}, {LB}, v{VA}
    v_add_u32 v{VA+1}, 57344, v{VA}
    v_add_u32 v{VA+2}, 114688, v{VA}
    """)
    S.sb_init(16)
    pc()
    for st in range(3):
        for f in hload_s(S, st): f()
    S.lg0(); a("s_barrier")
    for f in range(DF): rd_s(S, f, 0)
    k2_main(a, S, plan_s, "ssm", dma_s, rd_s, hload_s, [3], frbuf, {}, {})

    a.label("K2_fin")
    stamp(a, 11)
    B0 = SP; B1 = SP + 8; L0 = 48
    srd(a, 8, 52, 2048 * 2304)
    a(f"""
    s_lshl_b32 s41, s97, 2
    s_add_u32 s40, s48, s41
    v_mov_b32 v3, 1
    v_min_u32 v4, 4, v0
    v_lshlrev_b32 v4, 2, v4
    s_mov_b32 s47, 0
    s_waitcnt vmcnt(0)
    s_barrier
    """)
    stamp(a, 12)
    BL = 208
    def base_ld():
        for x in range(2):
            a(f"s_add_u32 s44, s{60+x}, {WS_BASE}")
            a(f"buffer_load_dwordx4 v[{BL+8*x}:{BL+8*x+3}], v{VO}, s[4:7], s44 offen")
            a(f"buffer_load_dwordx4 v[{BL+8*x+4}:{BL+8*x+7}], v{VO}, s[4:7], s44 offen offset:64")
    a(f"""
    s_cmp_lg_u32 s16, 0
    s_cbranch_scc1 K2_go
    s_mov_b64 exec, 1
    buffer_store_dword v3, v1, s[4:7], s40 offen sc1
    s_mov_b64 exec, -1
    """)
    a.label("K2_poll")
    a(f"""
    buffer_load_dword v5, v4, s[4:7], s48 offen sc1
    s_waitcnt vmcnt(0)
    v_cmp_ne_u32 vcc, 1, v5
    s_cbranch_vccz K2_go
    s_sleep {POLLSLEEP}
    s_add_u32 s47, s47, 1
    s_cmp_lt_u32 s47, 0x40000
    s_cbranch_scc1 K2_poll
    """)
    a.label("K2_go")
    base_ld()
    a("s_barrier")
    stamp(a, 13)
    a("s_mov_b32 s45, s97")
    for k in range(4):
        a(f"""
        s_add_u32 s45, s45, 1
        s_cmp_eq_u32 s45, 5
        s_cselect_b32 s45, 0, s45
        s_mul_i32 s46, s45, {48*48*1024}
        s_add_u32 s47, s46, s62
        s_add_u32 s46, s46, s63
        """)
        for x in range(2):
            r = L0 + (k * 2 + x) * 4
            a(f"buffer_load_dwordx4 v[{r}:{r+3}], v1, s[4:7], s{47-x} offen sc1")
    a("v_mov_b32 v3, 0xffff0000")
    a("s_waitcnt vmcnt(8)")
    for r in range(16): a(f"v_add_f32 v{SP+r}, v{SP+r}, v{BL+r}")
    for sp in range(4):
        for x, b in ((0, B0), (1, B1)):
            r = L0 + (sp * 2 + x) * 4
            a(f"s_waitcnt vmcnt({7 - (sp*2+x)})")
            for k in range(4):
                a(f"v_lshlrev_b32 v5, 16, v{r+k}")
                a(f"v_and_b32 v6, v3, v{r+k}")
                a(f"v_add_f32 v{b+2*k}, v{b+2*k}, v5")
                a(f"v_add_f32 v{b+2*k+1}, v{b+2*k+1}, v6")
    for x, b in ((0, B0), (1, B1)):
        a(f"buffer_store_dwordx4 v[{b}:{b+3}], v{VO}, s[8:11], s{60+x} offen")
        a(f"buffer_store_dwordx4 v[{b+4}:{b+7}], v{VO}, s[8:11], s{60+x} offen offset:64")
    a.label("K1_done")
    if STAMP: a("s_waitcnt vmcnt(0)")
    stamp(a, 14); stamp_out(a, 1, 16)
    a.label("K1_end")
    a("s_endpgm")
    a.label("CODE_END")
    return ("k1_kernel", 256, 512, JUNK + 1024, a.text(), 256, 102, 256)

def ssm_post4(a, NU, ACC, CN, sacc, SU):
    b = Asm()
    gen3.ssm_post(b, NU, ACC, CN, sacc, SU)
    t = b.text().replace("    s_waitcnt vmcnt(0)\n    s_nop 7\n", "    s_nop 7\n", 1)
    a.lines += t.rstrip("\n").split("\n")

if __name__ == "__main__":
    out = sys.argv[1] if len(sys.argv) > 1 else "out.s"
    ks = [G1.gen_k0(), gen_main()]
    open(out, "w").write(build_file(ks))
```

```python
import sys, os, copy
from asmlib import *
import gen as G1
from gen import WS_X, WS_H, WS_BASE, WS_CONST, WS_E, WS_PART, WS_SIZE, WS_FLAG, srd, MFMA, P
from gen import stamp, stamp_init, stamp_out, STAMP, ST0, XR, xreg

HST = os.environ.get("HST", "sc1")
LD = P("LD", 5); LX = P("LX", 2)
W2PF = P("W2PF", 1); W2G = P("W2G", 1)
S0 = P("S0", 6)
LP = P("LP", 10)
LH = P("LH", 3)
POLLSLEEP = P("POLLSLEEP", 2)
PRIO = P("PRIO", 0)
SBP = P("SBP", 2); SBSL = P("SBSL", 1)
LB = 2048
JUNK = LB + 147456

def stampc(a, i):
    stamp(a, i)
    if STAMP: a(f"s_memtime s[{ST0+2*(i+8)}:{ST0+2*(i+8)+1}]")

class Stream:
    def __init__(self, a):
        self.a = a; self.vm = []; self.vd = 0; self.lg = []; self.ld = 0
        self.slow = []
    def fork(self):
        c = Stream(self.a); c.vm = list(self.vm); c.vd = self.vd; c.lg = list(self.lg); c.ld = self.ld; c.slow = self.slow
        return c
    def vmi(self, tag, text): self.a(text); self.vm.append(tag)
    def lgi(self, tag, text): self.a(text); self.lg.append(tag)
    def _w(self, ops, done, tags, cap):
        idx = [i for i, t in enumerate(ops) if t in tags]
        if not idx or max(idx) < done: return None
        return min(cap, len(ops) - 1 - max(idx))
    def vmw(self, tags):
        n = self._w(self.vm, self.vd, tags, 63)
        if n is not None:
            self.a(f"s_waitcnt vmcnt({n})"); self.vd = len(self.vm) - n
    def lgw(self, tags):
        n = self._w(self.lg, self.ld, tags, 15)
        if n is not None:
            self.a(f"s_waitcnt lgkmcnt({n})"); self.ld = len(self.lg) - n
    def vm0(self): self.a("s_waitcnt vmcnt(0)"); self.vd = len(self.vm)
    def lg0(self): self.a("s_waitcnt lgkmcnt(0)"); self.ld = len(self.lg)
    def sb_setup(self, vE, vR, vFA, sfl):
        self.vE, self.vR, self.vFA, self.sfl = vE, vR, vFA, sfl
    def fork2(self):
        c = self.fork(); c.sb_setup(self.vE, self.vR, self.vFA, self.sfl); return c
    def sb_init(self, swave):
        self.a(f"""
        s_lshl_b32 s{self.sfl}, s{swave}, 8
        v_mov_b32 v{self.vE}, 0
        s_mov_b32 m0, s{self.sfl}
        v_and_b32 v{self.vFA}, 7, v0
        v_mul_u32_u24 v{self.vFA}, 260, v{self.vFA}
        """)
        self.lgi("sbw", f"ds_write_addtid_b32 v{self.vE}")
    def arrive(self):
        self.a(f"s_mov_b32 m0, s{self.sfl}\nv_add_u32 v{self.vE}, 1, v{self.vE}")
        self.lgi("sbw", f"ds_write_addtid_b32 v{self.vE}")
        if SBP == 2: self.a("s_setprio 0")
    def peek(self):
        self.lgi("peek", f"ds_read_b32 v{self.vR}, v{self.vFA}")
    def check(self):
        self.lgw({"peek"})
        sl = self.a.newlabel("SBs"); bk = self.a.newlabel("SBb")
        self.a(f"v_cmp_gt_u32 vcc, v{self.vE}, v{self.vR}\ns_cbranch_vccnz {sl}")
        if SBP == 1: self.a("s_setprio 1")
        self.a.label(bk)
        if SBP == 2: self.a("s_setprio 1")
        self.slow.append((sl, bk, self.vE, self.vR, self.vFA))
    def emit_slow(self):
        for sl, bk, vE, vR, vFA in self.slow:
            self.a.label(sl)
            if SBP == 1: self.a("s_setprio 0")
            self.a(f"""
            s_sleep {SBSL}
            ds_read_b32 v{vR}, v{vFA}
            s_waitcnt lgkmcnt(0)
            v_cmp_gt_u32 vcc, v{vE}, v{vR}
            s_cbranch_vccnz {sl}
            s_branch {bk}
            """)
        self.slow.clear()

def spread(ops, n, k):
    return ops[len(ops) * k // n: len(ops) * (k + 1) // n]

def gen_k1():
    a = Asm()
    stamp_init(a); stamp(a, 0)
    a("""
    s_cmp_ge_u32 s2, 256
    s_cbranch_scc1 K1_end
    s_load_dwordx2 s[20:21], s[0:1], 120
    s_load_dwordx4 s[24:27], s[0:1], 80
    s_load_dwordx4 s[28:31], s[0:1], 24
    s_load_dwordx2 s[58:59], s[0:1], 96
    s_load_dwordx4 s[60:63], s[0:1], 40
    v_lshrrev_b32 v1, 6, v0
    v_and_b32 v0, 63, v0                     ; lane
    v_readfirstlane_b32 s16, v1              ; wave
    s_and_b32 s3, s2, 7                      ; xcd
    s_lshr_b32 s18, s2, 3
    s_and_b32 s17, s18, 7                    ; mt
    s_lshr_b32 s18, s18, 3                   ; k4
    v_lshlrev_b32 v1, 4, v0                  ; lane*16
    s_lshl_b32 s19, s17, 3
    s_add_u32 s19, s19, s16                  ; 8mt + w
    s_mul_i32 s32, s19, 36864
    s_add_u32 s33, s32, 18432
    s_mul_i32 s34, s19, 368640
    """)
    a(f"s_add_u32 s34, s34, {WS_H}")
    a(f"s_lshl_b32 s35, s16, 10\ns_add_u32 s35, s35, {LB}")
    a("s_waitcnt lgkmcnt(0)")
    srd(a, 4, 20, WS_SIZE)
    a("s_cmp_eq_u32 s18, 3\ns_cbranch_scc1 K1_ssm")

    def xload_ops(S, st):
        ops = []
        for j in range(2):
            for e in range(2):
                r = xreg(j, 2 * st + e)
                def f(j=j, e=e, r=r):
                    if e == 0: a(f"s_add_u32 s{36+j}, s{32+j}, {WS_X + st*2048}")
                    S.vmi(("X", st), f"buffer_load_dwordx4 v[{r}:{r+3}], v1, s[4:7], s{36+j} offen offset:{1024*e}")
                ops.append(f)
        return ops

    WSZ = 576 * 9216
    srd(a, 8, 24, WSZ)
    srd(a, 12, 26, WSZ)
    ACC = 48; FR = 24; VA = 2; VD = 14; T0 = 16
    S = Stream(a); S.sb_setup(15, 20, 21, 46)
    a(f"""
    s_mul_i32 s39, s3, 9
    s_mul_i32 s38, s18, 3
    s_add_u32 s39, s39, s38
    s_lshl_b32 s38, s39, 7                   ; line*128
    s_lshl_b32 s39, s39, 11
    s_add_u32 s39, s39, s34
    v_lshrrev_b32 v16, 3, v0
    s_lshl_b32 s40, s16, 3
    v_add_u32 v16, s40, v16
    v_mul_u32_u24 v16, 9216, v16
    v_bfe_u32 v17, v0, 4, 1
    s_and_b32 s40, s16, 1
    s_lshl_b32 s40, s40, 1
    v_or_b32 v17, s40, v17
    v_lshlrev_b32 v17, 1, v17
    v_and_b32 v18, 7, v0
    v_xor_b32 v17, v17, v18
    v_lshl_add_u32 v{VD}, v17, 4, v16
    """)
    def dma_ops(gs):
        G, st = divmod(gs, 9)
        ops = []
        for m in range(2):
            def f(m=m):
                a(f"s_add_u32 m0, s35, {st*16384 + m*8192}")
                a(f"s_add_u32 s41, s38, {G*128 + st*589824}")
                S.vmi(("D", gs), f"buffer_load_dwordx4 v{VD}, s[{8+4*m}:{11+4*m}], s41 offen lds")
            ops.append(f)
        return ops
    for st in range(2):
        for f in xload_ops(S, st) + dma_ops(st): f()
    for st in range(2, LX):
        for f in xload_ops(S, st): f()
    S.sb_init(16)
    a(f"""
    v_lshrrev_b32 v16, 4, v0
    v_lshlrev_b32 v16, 10, v16
    v_bfe_u32 v17, v0, 2, 2
    v_lshl_add_u32 v16, v17, 7, v16
    v_bfe_u32 v17, v0, 3, 2
    v_lshl_add_u32 v16, v17, 5, v16
    v_and_b32 v17, 3, v0
    v_lshl_add_u32 v16, v17, 3, v16
    v_add_u32 v16, {LB}, v16
    v_lshlrev_b32 v22, 7, v0
    """)
    for b in range(4):
        a(f"v_xor_b32 v{VA+b}, {b*32}, v16")
        a(f"v_add_u32 v{VA+4+b}, 49152, v{VA+b}")
        a(f"v_add_u32 v{VA+8+b}, 98304, v{VA+b}")
    if W2PF:
        a(f"""
        s_lshl_b32 s40, s18, 3
        s_add_u32 s40, s40, s17
        s_lshl_b32 s40, s40, 3
        s_add_u32 s40, s40, s16
        s_min_u32 s40, s40, 161
        """)
        for x in range(2):
            a(f"""
            s_mul_i32 s41, s3, 30
            s_add_u32 s41, s41, {29*x}
            s_mul_i32 s41, s41, 1366
            s_lshr_b32 s41, s41, 16              ; split
            s_cmp_ge_u32 s40, 81
            s_cselect_b32 s22, s62, s60
            s_cselect_b32 s23, s63, s61
            s_cselect_b32 s42, 81, 0
            s_sub_u32 s42, s40, s42
            s_lshl_b32 s42, s42, 13
            s_mul_i32 s47, s41, {1152*1152}
            s_lshl_b32 s45, s40, 13
            s_add_u32 s47, s47, s45
            s_cmp_eq_u32 s41, 4
            s_cselect_b32 s{48+4*x}, s22, s58
            s_cselect_b32 s{49+4*x}, s23, s59
            s_cselect_b32 s{56+x}, s42, s47
            s_mov_b32 s{50+4*x}, {4608*1152}
            s_cselect_b32 s{50+4*x}, {576*1152}, s{50+4*x}
            s_mov_b32 s{51+4*x}, 0x20000
            """)
    NBLK = 27 * 8
    def rd(gblk, k):
        if gblk >= NBLK: return
        gs, blk = divmod(gblk, 8)
        st = gs % 9
        u, m = divmod(blk, 2)
        s, e = divmod(k, 2)
        buf = FR + (gblk % 3) * 8 + s * 4 + e * 2
        reg = VA + (st // 3) * 4 + u
        off = (st % 3) * 16384 + m * 8192 + s * 4096 + e * 512
        S.lgi(("F", gblk), f"ds_read_b64_tr_b16 v[{buf}:{buf+1}], v{reg} offset:{off}")
    def acc(blk, j):
        return ACC + (blk * 2 + j) * 4
    def epi_ops(v, G):
        ops = []
        for j in range(2):
            for uu in range(2):
                g = acc(4 * v + 2 * uu, j); u = acc(4 * v + 2 * uu + 1, j)
                for r in range(4):
                    ops.append(lambda g=g, u=u, r=r: a(f"v_mul_f32 v{g+r}, v{g+r}, v{u+r}"))
            T = acc(4 * v + 1, j)
            g0 = acc(4 * v, j); g1 = acc(4 * v + 2, j)
            ops.append(lambda T=T, g=g0: a(f"v_cvt_pk_bf16_f32 v{T}, v{g}, v{g+1}"))
            ops.append(lambda T=T, g=g0: a(f"v_cvt_pk_bf16_f32 v{T+1}, v{g+2}, v{g+3}"))
            ops.append(lambda T=T, g=g1: a(f"v_cvt_pk_bf16_f32 v{T+2}, v{g}, v{g+1}"))
            ops.append(lambda T=T, g=g1: a(f"v_cvt_pk_bf16_f32 v{T+3}, v{g+2}, v{g+3}"))
            def st_(T=T, j=j):
                a(f"s_add_u32 s45, s39, {j*184320 + G*2048}")
                S.vmi("S", f"buffer_store_dwordx4 v[{T}:{T+3}], v1, s[4:7], s45 offen offset:{1024*v} {HST}")
            ops.append(st_)
        return ops
    stamp(a, 1)
    S.vmw({("X", 0), ("D", 0)}); S.lg0(); a("s_barrier")
    stamp(a, 2)
    for g in range(2):
        for k in range(4): rd(g, k)
    dnext = 2
    for gs in range(27):
        G, st = divmod(gs, 9)
        side = {b: [] for b in range(8)}
        if st == 0 and G > 0:
            e = epi_ops(1, G - 1)
            for b in range(3): side[b] += spread(e, 3, b)
        if st == 8:
            e = epi_ops(0, G)
            for b in range(3): side[5 + b] += spread(e, 3, b)
        if G == 0 and st + LX <= 8:
            x = xload_ops(S, st + LX)
            side[0] += x[:2]; side[1] += x[2:]
        for pos in (3, 6):
            if dnext <= min(gs + LD, 26) and (pos == 3 or dnext < gs + LD or True):
                if pos == 6 and G == 0 and 1 <= st <= 5 and dnext >= gs + 3: continue
                side[pos] += dma_ops(dnext); dnext += 1
        if W2PF and G == W2G and st < 8:
            def pf(x=st & 1):
                a(f"s_mov_b32 m0, {JUNK}\ns_mov_b64 exec, 0xffff")
                S.vmi("P", f"buffer_load_dword v22, s[{48+4*x}:{51+4*x}], s{56+x} offen lds")
                a(f"s_mov_b64 exec, -1\ns_add_u32 s{56+x}, s{56+x}, 2048")
            side[4].append(pf)
        for blk in range(8):
            g = gs * 8 + blk
            if blk == 0: S.vmw({("X", gs)})
            if gs < 26:
                if blk == 2:
                    S.vmw({("D", gs + 1)}); S.arrive()
                if blk == 5: S.peek()
                if blk == 6: S.check()
            S.lgw({("F", g)})
            buf = FR + (g % 3) * 8
            k = 0
            for j in range(2):
                for s in range(2):
                    c = acc(blk, j)
                    src2 = "0" if (st == 0 and s == 0) else f"v[{c}:{c+3}]"
                    x = xreg(j, 2 * st + s)
                    a(f"{MFMA} v[{c}:{c+3}], v[{buf+4*s}:{buf+4*s+3}], v[{x}:{x+3}], {src2}")
                    rd(g + 2, k)
                    for o in spread(side[blk], 4, k): o()
                    k += 1
        if st == 8: stampc(a, 3 + G)
    a("s_nop 7")
    for o in epi_ops(1, 2): o()
    if STAMP: a("s_waitcnt vmcnt(0)")
    stamp(a, 6); stamp_out(a, 1, 16)
    a("s_endpgm")
    S.emit_slow()

    a.label("K1_ssm")
    NU = 5
    ACC = 32; FR = 8; VA = 2
    BSZ = 576 * 1152
    S = Stream(a)
    a(f"""
    s_cmp_lt_u32 s16, 4
    s_cselect_b32 s22, s28, s30
    s_cselect_b32 s23, s29, s31
    """)
    srd(a, 8, 22, BSZ)
    a(f"""
    s_mul_i32 s39, s3, 5
    s_min_u32 s39, s39, 31                   ; ustart
    s_and_b32 s40, s16, 3
    s_lshl_b32 s41, s40, 3
    s_lshl_b32 s38, s39, 4
    s_add_u32 s41, s41, s38                  ; 16*ustart + 8*(w&3)
    v_lshrrev_b32 v8, 3, v0
    v_add_u32 v8, s41, v8
    v_mul_u32_u24 v8, 1152, v8
    s_and_b32 s41, s16, 1
    s_lshl_b32 s41, s41, 2
    v_lshrrev_b32 v9, 4, v0
    v_add_u32 v9, s41, v9
    v_and_b32 v10, 7, v0
    v_xor_b32 v9, v9, v10
    v_and_b32 v10, 15, v0
    v_lshrrev_b32 v11, 1, v10
    v_lshrrev_b32 v12, 4, v0
    v_xor_b32 v11, v11, v12
    v_lshlrev_b32 v11, 4, v11
    v_lshl_add_u32 v{VA}, v10, 7, v11
    v_add_u32 v{VA}, {LB}, v{VA}
    v_xor_b32 v{VA+1}, 64, v{VA}
    v_add_u32 v{VA+2}, 49152, v{VA}
    v_add_u32 v{VA+3}, 49152, v{VA+1}
    v_add_u32 v{VA+4}, 98304, v{VA}
    v_add_u32 v{VA+5}, 98304, v{VA+1}
    v_lshl_add_u32 v0, v9, 4, v8
    s_lshr_b32 s41, s16, 2
    s_mul_i32 s41, s41, 12288
    s_lshl_b32 s35, s40, 10
    s_add_u32 s35, s35, s41
    s_add_u32 s35, s35, {LB}
    """)
    def sdma_ops(st):
        slot = st % 6
        ops = []
        for t in range(3):
            def f(t=t):
                a(f"s_add_u32 m0, s35, {slot*24576 + t*4096}")
                a(f"s_mov_b32 s41, {st*128 + t*36864}")
                S.vmi(("D", st), f"buffer_load_dwordx4 v0, s[8:11], s41 offen lds")
            ops.append(f)
        return ops
    for st in range(2):
        for f in xload_ops(S, st) + sdma_ops(st): f()
    a(f"""
    s_cmp_lt_u32 s16, 4
    s_cselect_b32 s22, s24, s26
    s_cselect_b32 s23, s25, s27
    """)
    srd(a, 12, 22, 576 * 9216)
    a(f"""
    v_lshrrev_b32 v10, 4, v1
    v_mul_u32_u24 v8, 86, v10
    v_lshrrev_b32 v8, 8, v8
    v_mul_u32_u24 v9, 3, v8
    v_sub_u32 v9, v10, v9
    v_min_u32 v8, 17, v8
    v_mul_u32_u24 v8, 9216, v8
    v_mul_u32_u24 v9, 384, v9
    v_add_u32 v8, v8, v9
    s_lshl_b32 s40, s17, 2
    s_and_b32 s41, s16, 3
    s_add_u32 s40, s40, s41
    s_mul_i32 s40, s40, {18*9216}
    s_mul_i32 s41, s3, 1152
    s_add_u32 s40, s40, s41
    s_mov_b32 m0, {JUNK}
    s_nop 0
    """)
    S.vmi("P", "buffer_load_dword v8, s[12:15], s40 offen offset:128 lds")
    S.vmi("P", "buffer_load_dword v8, s[12:15], s40 offen offset:256 lds")
    NB = 2 * NU
    def srd_(gblk, s):
        if gblk >= 9 * NB: return
        st, blk = divmod(gblk, NB)
        u, comp = divmod(blk, 2)
        slot = st % 6
        buf = FR + (gblk % 3) * 8 + s * 4
        reg = VA + (slot // 2) * 2 + s
        off = (slot % 2) * 24576 + comp * 12288 + u * 2048
        S.lgi(("F", gblk), f"ds_read_b128 v[{buf}:{buf+3}], v{reg} offset:{off}")
    def sacc(u, comp, j):
        return ACC + ((u * 2 + comp) * 2 + j) * 4
    stamp(a, 1)
    S.vmw({("X", 0), ("D", 0)}); a("s_barrier")
    stamp(a, 2)
    for g in range(2):
        for s in range(2): srd_(g, s)
    CN = XR
    bar = {0: [1], 1: [2], 2: [3, 4, 5], 5: [6, 7, 8]}
    issue = {0: [("X", 2), ("D", 2), ("D", 3)], 1: [("X", 3), ("D", 4), ("D", 5)], 2: [("X", 4)], 3: [("X", 5), ("D", 6), ("D", 7)],
             4: [("X", 6), ("D", 8)], 5: [("X", 7)], 6: [("X", 8)]}
    for st in range(9):
        side = []
        for kind, t in issue.get(st, []):
            side += xload_ops(S, t) if kind == "X" else sdma_ops(t)
        for blk in range(NB):
            g = st * NB + blk
            if blk == 0: S.vmw({("X", st)})
            if blk == NB - 2 and st in bar:
                S.vmw({("D", t) for t in bar[st]})
                if st == 2: S.lg0()
                a("s_barrier")
            S.lgw({("F", g)})
            buf = FR + (g % 3) * 8
            u, comp = divmod(blk, 2)
            k = 0
            for j in range(2):
                for s in range(2):
                    c = sacc(u, comp, j)
                    src2 = "0" if (st == 0 and s == 0) else f"v[{c}:{c+3}]"
                    x = xreg(j, 2 * st + s)
                    a(f"{MFMA} v[{c}:{c+3}], v[{x}:{x+3}], v[{buf+4*s}:{buf+4*s+3}], {src2}")
                    if k % 2 == 0: srd_(g + 2, k // 2)
                    if k == 1 and blk < 6:
                        for o in spread(side, 6, blk): o()
                    k += 1
            if blk == 7 and st == 6:
                a(f"""
                v_mbcnt_lo_u32_b32 v0, -1, 0
                v_mbcnt_hi_u32_b32 v0, -1, v0
                v_and_b32 v{CN+44}, 15, v0
                v_lshlrev_b32 v{CN+44}, 6, v{CN+44}
                v_lshrrev_b32 v{CN+45}, 4, v0
                v_lshl_add_u32 v{CN+45}, v{CN+45}, 3, v{CN+44}
                s_lshl_b32 s40, s39, 10
                s_add_u32 s40, s40, {WS_CONST}
                """)
                for u2 in range(NU):
                    b = CN + 8 * u2
                    a(f"s_add_u32 s41, s40, {u2*1024}")
                    S.vmi("C", f"buffer_load_dwordx4 v[{b}:{b+3}], v{CN+44}, s[4:7], s41 offen")
                    S.vmi("C", f"buffer_load_dwordx2 v[{b+4}:{b+5}], v{CN+44}, s[4:7], s41 offen offset:40")
                    S.vmi("C", f"buffer_load_dwordx2 v[{b+6}:{b+7}], v{CN+45}, s[4:7], s41 offen offset:32")
                a("s_min_u32 s46, s16, 4\ns_lshl_b32 s41, s46, 10\ns_add_u32 s41, s41, s40")
                S.vmi("C", f"buffer_load_dwordx4 v[{CN+40}:{CN+43}], v{CN+44}, s[4:7], s41 offen offset:16")
    ssm_post(a, NU, ACC, CN, sacc, 39)
    if STAMP: a("s_waitcnt vmcnt(0)")
    stamp(a, 7); stamp_out(a, 1, 16)
    a.label("K1_end")
    a("s_endpgm")
    return ("k1_kernel", 256, 512, JUNK + 1024, a.text(), 256, 100, 256)

def ssm_post(a, NU, ACC, CN, sacc, SU):
    TP = XR + 48
    B0 = LB + 3 * 24576
    EQ, TT, SW = B0, B0 + 20480, B0 + 25600
    P_ = TP; E = TP + 10; t0 = TP + 20
    stamp(a, 3)
    a("s_waitcnt vmcnt(0)\ns_nop 7")
    stamp(a, 4)
    def breg(u, comp, i): return sacc(u, comp, i // 4) + (i % 4)
    def cmadd(dr, di, lr, li, xr, xi, br, bi, t):
        a(f"v_fma_f32 v{t}, v{lr}, v{xr}, v{br}")
        a(f"v_fma_f32 v{t+1}, v{lr}, v{xi}, v{bi}")
        a(f"v_fma_f32 v{t+1}, v{li}, v{xr}, v{t+1}")
        a(f"v_fma_f32 v{dr}, -v{li}, v{xi}, v{t}")
        a(f"v_mov_b32 v{di}, v{t+1}")
    def cmadd4(dr, di, lr, li, xr, xi, br, bi):
        if dr == br:
            a(f"v_fmac_f32 v{dr}, v{lr}, v{xr}")
            a(f"v_fmac_f32 v{di}, v{lr}, v{xi}")
        else:
            a(f"v_fma_f32 v{dr}, v{lr}, v{xr}, v{br}")
            a(f"v_fma_f32 v{di}, v{lr}, v{xi}, v{bi}")
        a(f"v_fma_f32 v{dr}, -v{li}, v{xi}, v{dr}")
        a(f"v_fmac_f32 v{di}, v{li}, v{xr}")
    E2 = t0 + 8
    for i in range(1, 8):
        for u in range(NU):
            lr, li = CN + 8 * u, CN + 8 * u + 1
            if i == 1: xr, xi = breg(u, 0, 0), breg(u, 1, 0)
            else:
                src = (E if (i - 1) % 2 == 1 else E2) + 2 * u
                xr, xi = src, src + 1
            dst = (E if i % 2 == 1 else E2) + 2 * u
            cmadd4(dst, dst + 1, lr, li, xr, xi, breg(u, 0, i), breg(u, 1, i))
    for u in range(NU):
        cr, ci = CN + 8 * u + 2, CN + 8 * u + 3
        br, bi = E + 2 * u, E + 2 * u + 1
        t = E2 + 2 * u
        a(f"v_mul_f32 v{t}, v{ci}, v{bi}")
        a(f"v_mul_f32 v{t+1}, v{ci}, v{br}")
        a(f"v_fma_f32 v{br}, v{cr}, v{br}, -v{t}")
        a(f"v_fma_f32 v{bi}, v{cr}, v{bi}, v{t+1}")
    A0 = t0 + 18; A1 = t0 + 19; A2 = t0 + 20; A3 = t0 + 21
    a(f"""
    v_and_b32 v{A2}, 15, v0
    v_lshrrev_b32 v{A3}, 4, v0
    s_lshl_b32 s40, s16, 9
    s_add_u32 s40, s40, {B0}
    v_lshl_add_u32 v{A0}, v{A2}, 5, s40          ; w*512 + p*32
    v_lshl_add_u32 v{A1}, v{A3}, 3, v{A0}        ; + q*8
    v_cmp_eq_u32 s[50:51], 1, v{A3}
    v_cmp_eq_u32 s[52:53], 2, v{A3}
    v_cmp_eq_u32 s[54:55], 3, v{A3}
    """)
    for u in range(NU):
        a(f"ds_write_b64 v{A1}, v[{E+2*u}:{E+2*u+1}] offset:{u*4096}")
    Q = t0 + 24
    a("s_waitcnt lgkmcnt(0)")
    for u in range(NU):
        a(f"ds_read_b128 v[{Q+8*u}:{Q+8*u+3}], v{A0} offset:{u*4096}")
        a(f"ds_read_b128 v[{Q+8*u+4}:{Q+8*u+7}], v{A0} offset:{u*4096 + 16}")
    a(f"s_lshl_b32 s40, s16, 3\ns_add_u32 s40, s40, {TT}\nv_lshl_add_u32 v{A1}, v{A2}, 6, s40")
    a("s_waitcnt lgkmcnt(0)")
    for step in range(1, 4):
        for u in range(NU):
            q = Q + 8 * u
            lr, li = CN + 8 * u + 4, CN + 8 * u + 5
            cmadd4(q + 2 * step, q + 2 * step + 1, lr, li, q + 2 * step - 2, q + 2 * step - 1, q + 2 * step, q + 2 * step + 1)
    for u in range(NU):
        q = Q + 8 * u
        a(f"ds_write_b64 v{A1}, v[{q+6}:{q+7}] offset:{u*1024}")
    for u in range(NU):
        q = Q + 8 * u
        for c in range(2):
            a(f"v_cndmask_b32 v{P_+2*u+c}, 0, v{q+c}, s[50:51]")
            a(f"v_cndmask_b32 v{P_+2*u+c}, v{P_+2*u+c}, v{q+2+c}, s[52:53]")
            a(f"v_cndmask_b32 v{P_+2*u+c}, v{P_+2*u+c}, v{q+4+c}, s[54:55]")
    a("s_waitcnt lgkmcnt(0)\ns_barrier")
    stamp(a, 5)
    def scale_all():
        for u in range(NU):
            cr, ci = CN + 8 * u + 2, CN + 8 * u + 3
            for i in range(8):
                br, bi = breg(u, 0, i), breg(u, 1, i)
                t = E2 + 2 * (i % 4)
                a(f"v_mul_f32 v{t}, v{ci}, v{bi}")
                a(f"v_mul_f32 v{t+1}, v{ci}, v{br}")
                a(f"v_fma_f32 v{br}, v{cr}, v{br}, -v{t}")
                a(f"v_fma_f32 v{bi}, v{cr}, v{bi}, v{t+1}")
    L32r, L32i, L256r, L256i = CN + 40, CN + 41, CN + 42, CN + 43
    TW = Q; G = Q + 16; S_ = t0
    a("s_cmp_ge_u32 s16, 5\ns_cbranch_scc1 K1_pub")
    a(f"""
    s_lshl_b32 s40, s16, 10
    s_add_u32 s40, s40, {TT}
    v_lshl_add_u32 v{A1}, v{A2}, 6, s40          ; u*1024 + p*64
    """)
    for k in range(4):
        a(f"ds_read_b128 v[{TW+4*k}:{TW+4*k+3}], v{A1} offset:{16*k}")
    a(f"""
    s_add_u32 s40, s{SU}, s16
    s_lshl_b32 s40, s40, 11
    s_add_u32 s40, s40, {WS_E}
    v_lshlrev_b32 v{A0}, 4, v{A2}
    s_waitcnt lgkmcnt(0)
    """)
    cur = (TW, TW + 1)
    for w in range(1, 8):
        d = S_ + 2 * (w % 2)
        cmadd4(d, d + 1, L32r, L32i, cur[0], cur[1], TW + 2 * w, TW + 2 * w + 1)
        cur = (d, d + 1)
    a(f"""
    v_mov_b32 v{G}, v{cur[0]}
    v_mov_b32 v{G+1}, 1
    v_mov_b32 v{G+2}, v{cur[1]}
    v_mov_b32 v{G+3}, 1
    s_lshl_b32 s41, s17, 8
    s_add_u32 s41, s41, s40
    s_mov_b64 exec, 0xffff
    buffer_store_dwordx4 v[{G}:{G+3}], v{A0}, s[4:7], s41 offen sc1
    s_mov_b64 exec, -1
    """)
    a.label("K1_pub")
    scale_all()
    a("s_cmp_ge_u32 s16, 5\ns_cbranch_scc1 K1_join")
    a(f"""
    v_mov_b32 v{S_}, 0
    v_mov_b32 v{S_+1}, 0
    s_mov_b32 s47, 0
    s_cmp_eq_u32 s17, 0
    s_cbranch_scc1 K1_lbdone
    """)
    a.label("K1_lbloop")
    for k in range(7):
        a(f"buffer_load_dwordx4 v[{G+4*k}:{G+4*k+3}], v{A0}, s[4:7], s40 offen offset:{256*k} sc1")
    a(f"""
    v_mov_b32 v{S_}, 0
    v_mov_b32 v{S_+1}, 0
    v_mov_b32 v{S_+4}, 1
    s_waitcnt vmcnt(0)
    """)
    for k in range(7):
        a(f"v_and_b32 v{S_+4}, v{S_+4}, v{G+4*k+1}")
        a(f"v_and_b32 v{S_+4}, v{S_+4}, v{G+4*k+3}")
        cmadd(S_, S_ + 1, L256r, L256i, S_, S_ + 1, G + 4 * k, G + 4 * k + 2, S_ + 2)
        if k < 6:
            a(f"s_cmp_eq_u32 s17, {k+1}\ns_cbranch_scc1 K1_lbchk")
    a.label("K1_lbchk")
    a(f"""
    v_cmp_ne_u32 vcc, 1, v{S_+4}
    s_cbranch_vccz K1_lbdone
    s_sleep 2
    s_add_u32 s47, s47, 1
    s_cmp_lt_u32 s47, 0x40000
    s_cbranch_scc1 K1_lbloop
    """)
    a.label("K1_lbdone")
    a(f"""
    s_lshl_b32 s40, s16, 10
    s_add_u32 s40, s40, {SW}
    v_lshl_add_u32 v{A1}, v{A2}, 3, s40
    ds_write_b64 v{A1}, v[{S_}:{S_+1}]
    """)
    cur = (S_, S_ + 1)
    for w in range(7):
        cmadd4(TW + 2 * w, TW + 2 * w + 1, L32r, L32i, cur[0], cur[1], TW + 2 * w, TW + 2 * w + 1)
        cur = (TW + 2 * w, TW + 2 * w + 1)
        a(f"ds_write_b64 v{A1}, v[{cur[0]}:{cur[1]}] offset:{128*(w+1)}")
    a.label("K1_join")
    a("s_waitcnt lgkmcnt(0)\ns_barrier")
    stamp(a, 6)
    a(f"""
    s_lshl_b32 s40, s16, 7
    s_add_u32 s40, s40, {SW}
    v_lshl_add_u32 v{A1}, v{A2}, 3, s40
    """)
    for u in range(NU):
        a(f"ds_read_b64 v[{E+2*u}:{E+2*u+1}], v{A1} offset:{u*1024}")
    a(f"""
    s_mul_i32 s40, s16, 10240
    s_add_u32 s40, s40, {LB}
    v_lshl_add_u32 v{A0}, v{A2}, 6, s40
    v_lshl_add_u32 v{A0}, v{A3}, 4, v{A0}
    v_lshl_add_u32 v{A1}, v{A3}, 9, s40
    v_bfe_u32 v{A2}, v0, 2, 2
    v_lshl_add_u32 v{A1}, v{A2}, 6, v{A1}
    v_and_b32 v{A2}, 3, v0
    v_lshl_add_u32 v{A1}, v{A2}, 4, v{A1}
    v_lshrrev_b32 v{A2}, 5, v0
    v_lshlrev_b32 v{A2}, 11, v{A2}
    v_and_b32 v{A3}, 31, v0
    v_lshl_add_u32 v{A2}, v{A3}, 4, v{A2}
    s_waitcnt lgkmcnt(0)
    """)
    for u in range(NU):
        cmadd4(P_ + 2 * u, P_ + 2 * u + 1, CN + 8 * u + 6, CN + 8 * u + 7, E + 2 * u, E + 2 * u + 1, P_ + 2 * u, P_ + 2 * u + 1)
    for i in range(8):
        for u in range(NU):
            lr, li = CN + 8 * u, CN + 8 * u + 1
            if i == 0: xr, xi = P_ + 2 * u, P_ + 2 * u + 1
            else: xr, xi = breg(u, 0, i - 1), breg(u, 1, i - 1)
            cmadd4(breg(u, 0, i), breg(u, 1, i), lr, li, xr, xi, breg(u, 0, i), breg(u, 1, i))
    for u in range(NU):
        q = Q + 8 * u
        for k in range(4):
            a(f"v_cvt_pk_bf16_f32 v{q+k}, v{breg(u,0,2*k)}, v{breg(u,0,2*k+1)}")
            a(f"v_cvt_pk_bf16_f32 v{q+4+k}, -v{breg(u,1,2*k)}, -v{breg(u,1,2*k+1)}")
        a(f"ds_write_b128 v{A0}, v[{q}:{q+3}] offset:{u*2048}")
        a(f"ds_write_b128 v{A0}, v[{q+4}:{q+7}] offset:{u*2048+1024}")
    a("s_waitcnt lgkmcnt(0)")
    for u in range(NU):
        for j in range(2):
            o = ACC + (u * 2 + j) * 4
            for e in range(2):
                a(f"ds_read_b64_tr_b16 v[{o+2*e}:{o+2*e+1}], v{A1} offset:{u*2048 + e*256 + j*8}")
    for u in range(NU):
        a(f"""
        s_add_u32 s40, s{SU}, {u}
        s_lshr_b32 s41, s40, 2
        s_lshl_b32 s41, s41, 12
        s_and_b32 s42, s40, 3
        s_lshl_b32 s42, s42, 9
        s_add_u32 s41, s41, s42
        s_add_u32 s41, s41, s34
        s_add_u32 s41, s41, {144*1024}
        s_add_u32 s42, s41, 184320
        s_waitcnt lgkmcnt({min(15, 4*(NU-1-u))})
        """)
        for j in range(2):
            o = ACC + (u * 2 + j) * 4
            a(f"buffer_store_dwordx4 v[{o}:{o+3}], v{A2}, s[4:7], s{41+j} offen {HST}")


def gen_k2():
    a = Asm()
    stamp_init(a); stamp(a, 0)
    a("""
    s_cmp_ge_u32 s2, 240
    s_cbranch_scc1 K2_end
    s_load_dwordx2 s[20:21], s[0:1], 120
    s_load_dwordx2 s[24:25], s[0:1], 96      ; w_down
    s_load_dwordx4 s[28:31], s[0:1], 40
    s_load_dwordx2 s[52:53], s[0:1], 104
    v_lshrrev_b32 v1, 6, v0
    v_and_b32 v0, 63, v0
    v_readfirstlane_b32 s16, v1              ; wave8
    s_and_b32 s3, s2, 7
    s_mul_i32 s3, s3, 30
    s_lshr_b32 s17, s2, 3
    s_add_u32 s3, s3, s17                    ; item
    s_mul_i32 s17, s3, 1366
    s_lshr_b32 s17, s17, 16                  ; split
    s_mul_i32 s18, s17, 48
    s_sub_u32 s18, s3, s18                   ; tile
    s_mul_i32 s19, s18, 21846
    s_lshr_b32 s19, s19, 16                  ; mt2
    s_mul_i32 s22, s19, 3
    s_sub_u32 s22, s18, s22                  ; nt
    s_and_b32 s23, s16, 3                    ; wm
    s_lshr_b32 s26, s16, 2                   ; h
    v_lshlrev_b32 v1, 4, v0
    s_lshl_b32 s32, s19, 2
    s_add_u32 s32, s32, s23
    s_mul_i32 s32, s32, 360
    s_mul_i32 s33, s17, 36
    s_add_u32 s32, s32, s33
    s_add_u32 s32, s32, s26
    s_lshl_b32 s32, s32, 10
    """)
    a(f"s_add_u32 s32, s32, {WS_H}\ns_add_u32 s33, s32, 184320")
    a(f"s_lshl_b32 s35, s16, 10\ns_add_u32 s35, s35, {LB}\ns_waitcnt lgkmcnt(0)")
    srd(a, 4, 20, WS_SIZE)
    T = 18 - S0
    ACC = 32; HF = 128; FR = HF + 8 * T; VA = 2; VD = 14; VO = 15; VC0 = 19; VC1 = 20
    BS = FR + 24
    assert BS + 16 <= 256 or True
    NP = 19; CA = 11
    pieces = []
    for st in range(S0): pieces += [(st, 0), (st, 1), (st, 2)]
    for st in range(S0, 18): pieces += [(st, 0), (st, 1)]
    PH2 = len(pieces)
    for st in range(S0, 18): pieces += [(st, 2)]
    NPC = len(pieces)
    def acc(nb, j): return ACC + (nb * 2 + j) * 4
    def hreg(st, j): return HF + (st % T) * 8 + j * 4
    sync = [(0, 1, 3), (2, 3, 5)]
    A = 3
    cov = 5
    while cov < NPC - 1:
        c = cov
        ar = max(sync[-1][1] + 0, c - 2)
        ncov = min(cov + 3, NPC - 1)
        if cov < PH2 <= ncov + 1 and False: pass
        sync.append((ar, c, ncov)); cov = ncov
    ev = sorted(sync)
    ev = [e for e in ev if e[1] <= PH2]
    cov = ev[-1][2]
    assert cov >= PH2 + 2, (cov, PH2)
    ev.append((PH2 + 1, PH2 + 2, min(NPC - 1, PH2 + 5))); cov = ev[-1][2]
    while cov < NPC - 1:
        ncov = min(cov + 3, NPC - 1)
        ev.append((max(ev[-1][1], cov - 2), cov, ncov)); cov = ncov
    arr = {e[0]: e for e in ev}; chk = {e[1]: e for e in ev}
    assert len(arr) == len(ev) and len(chk) == len(ev)
    for x, y in zip(ev, ev[1:]): assert x[1] <= y[0] and y[0] < y[1] and y[1] <= x[2], (x, y)
    def safe_after(p):
        for ar, c, _ in ev:
            if ar >= p: return c
        return 10 ** 9
    issue_at = {}
    npro = 4
    nxt = npro
    slot_of = {}; free_at = {s: -1 for s in range(NP)}
    def alloc(i, t):
        cands = [s for s in range(NP) if free_at[s] <= t]
        if safe_after(i) > PH2 - 0: cands = [s for s in cands if s < CA]
        else: cands = sorted(cands, key=lambda s: -s)
        if not cands: return None
        s = cands[0]; slot_of[i] = s; free_at[s] = safe_after(i); return s
    for i in range(npro): alloc(i, -1)
    for t in range(NPC):
        n = 0
        issue_at[t] = []
        while nxt < NPC and nxt <= t + LP and n < 2:
            if alloc(nxt, t) is None: break
            issue_at[t].append(nxt); nxt += 1; n += 1
    assert nxt == NPC
    for ar, c, cv in ev:
        for i in range(cv + 1):
            if i >= npro: assert min(t for t in issue_at if i in issue_at[t]) < ar, (i, ar)
    first_piece = {}
    for i, (st, pn) in enumerate(pieces): first_piece.setdefault(st, i)
    a(f"""
    v_bfe_u32 v16, v0, 2, 2
    v_lshlrev_b32 v16, 3, v16
    v_and_b32 v17, 3, v0
    v_add_u32 v16, v16, v17
    v_mul_u32_u24 v16, 2304, v16
    v_lshrrev_b32 v17, 4, v0
    v_lshl_add_u32 v{VO}, v17, 4, v16
    """)
    a("s_cmp_eq_u32 s17, 4\ns_cbranch_scc1 K2_ssm")
    for kind in ("ffn", "ssm"):
        S = Stream(a); S.sb_setup(16, 17, 18, 46)
        if kind == "ffn":
            srd(a, 8, 24, 4608 * 1152)
            a(f"""
            v_lshrrev_b32 v21, 3, v0
            s_lshl_b32 s40, s16, 3
            v_add_u32 v21, s40, v21
            v_mul_u32_u24 v21, 1152, v21
            v_lshrrev_b32 v22, 4, v0
            v_lshlrev_b32 v22, 1, v22
            v_and_b32 v23, 7, v0
            v_xor_b32 v22, v22, v23
            v_lshl_add_u32 v{VD}, v22, 4, v21
            s_mul_i32 s38, s17, {1152*1152}
            s_mul_i32 s40, s22, 384
            s_add_u32 s38, s38, s40
            """)
            def setup2():
                a(f"""
                v_lshrrev_b32 v21, 2, v0
                v_lshlrev_b32 v21, 7, v21
                v_bfe_u32 v22, v0, 3, 2
                v_lshl_add_u32 v21, v22, 5, v21
                v_and_b32 v22, 3, v0
                v_lshl_add_u32 v21, v22, 3, v21
                s_lshl_b32 s40, s26, 12
                s_add_u32 s40, s40, {LB}
                v_add_u32 v21, s40, v21
                """)
                for b in range(4):
                    a(f"v_xor_b32 v{VA+b}, {b*32}, v21")
                    a(f"v_add_u32 v{VA+4+b}, 57344, v{VA+b}")
                    a(f"v_add_u32 v{VA+8+b}, 114688, v{VA+b}")
            def dma(S, i):
                st, pn = pieces[i]
                a(f"s_add_u32 m0, s35, {slot_of[i]*8192}")
                a(f"s_add_u32 s41, s38, {st*64*1152 + pn*128}")
                S.vmi(("W", i), f"buffer_load_dwordx4 v{VD}, s[8:11], s41 offen lds")
            def rd(S, f, k):
                if f >= 4 * NPC: return
                i, b = divmod(f, 4); sl = slot_of[i]
                buf = FR + (f % 6) * 4 + 2 * k
                S.lgi(("F", f), f"ds_read_b64_tr_b16 v[{buf}:{buf+1}], v{VA + (sl//7)*4 + b} offset:{(sl%7)*8192 + k*2048}")
        else:
            a.label("K2_ssm")
            srd(a, 8, 28, 576 * 1152)
            srd(a, 12, 30, 576 * 1152)
            a(f"""
            s_mul_i32 s40, s22, 192
            s_lshl_b32 s41, s16, 3
            s_add_u32 s40, s40, s41
            v_lshrrev_b32 v21, 3, v0
            v_add_u32 v21, s40, v21
            v_mul_u32_u24 v21, 1152, v21
            s_and_b32 s41, s16, 1
            s_lshl_b32 s41, s41, 2
            v_lshrrev_b32 v22, 4, v0
            v_add_u32 v22, s41, v22
            v_and_b32 v23, 7, v0
            v_xor_b32 v22, v22, v23
            v_lshl_add_u32 v{VD}, v22, 4, v21
            """)
            def setup2():
                a(f"""
                v_and_b32 v21, 15, v0
                v_lshrrev_b32 v22, 1, v21
                v_lshrrev_b32 v23, 4, v0
                s_lshl_b32 s40, s26, 2
                v_add_u32 v23, s40, v23
                v_xor_b32 v22, v22, v23
                v_lshlrev_b32 v22, 4, v22
                v_lshl_add_u32 v{VA}, v21, 7, v22
                v_add_u32 v{VA}, {LB}, v{VA}
                v_add_u32 v{VA+1}, 57344, v{VA}
                v_add_u32 v{VA+2}, 114688, v{VA}
                """)
            def dma(S, i):
                st, pn = pieces[i]
                comp = st & 1
                a(f"s_add_u32 m0, s35, {slot_of[i]*8192}")
                a(f"s_mov_b32 s41, {(st>>1)*128 + pn*64*1152}")
                S.vmi(("W", i), f"buffer_load_dwordx4 v{VD}, s[{8+4*comp}:{11+4*comp}], s41 offen lds")
            def rd(S, f, k):
                if k or f >= 4 * NPC: return
                i, b = divmod(f, 4); sl = slot_of[i]
                buf = FR + (f % 6) * 4
                S.lgi(("F", f), f"ds_read_b128 v[{buf}:{buf+3}], v{VA + sl//7} offset:{(sl%7)*8192 + b*2048}")
        def hload_ops(S, st):
            ops = []
            for j in range(2):
                def f(j=j):
                    r = hreg(st, j)
                    a(f"s_add_u32 s36, s{32+j}, {st*2048}")
                    S.vmi(("H", st), f"buffer_load_dwordx4 v[{r}:{r+3}], v1, s[4:7], s36 offen")
                ops.append(f)
            return ops
        for f in hload_ops(S, 0): f()
        dma(S, 0); dma(S, 1); dma(S, 2)
        for f in hload_ops(S, 1): f()
        dma(S, 3)
        S.sb_init(16)
        setup2()
        unit_setup(a, VC0, VC1, CA)
        stamp(a, 1)
        S.vmw({("H", 0), ("W", 0), ("W", 1)}); S.lg0(); a("s_barrier")
        stamp(a, 2)
        for f in range(4):
            for k in range(2): rd(S, f, k)
        hn = [2]
        def piece(S, i, extra):
            st, pn = pieces[i]
            side = []
            if i < PH2:
                n = 0
                while hn[0] < 18 and hn[0] <= st + LH and n < 1:
                    side += hload_ops(S, hn[0]); hn[0] += 1; n += 1
            for x in issue_at[i]: side.append(lambda x=x: dma(S, x))
            side += extra
            if i in chk: S.check()
            if i in arr:
                S.vmw({("W", x) for x in range(arr[i][2] + 1)}); S.arrive()
            S.vmw({("H", st)})
            for b in range(4):
                f = 4 * i + b
                if b == 2 and (i + 1) in chk: S.peek()
                S.lgw({("F", f)})
                buf = FR + (f % 6) * 4
                for j in range(2):
                    c = acc(4 * pn + b, j); h = hreg(st, j)
                    src2 = "0" if st == 0 else f"v[{c}:{c+3}]"
                    a(f"{MFMA} v[{c}:{c+3}], v[{buf}:{buf+3}], v[{h}:{h+3}], {src2}")
                    rd(S, f + 4, j)
                    for o in spread(side, 8, 2 * b + j): o()
        for i in range(PH2):
            piece(S, i, [])
            if i == 17: stampc(a, 3)
        stampc(a, 4)
        a(f"s_cmp_eq_u32 s26, 1\ns_cbranch_scc1 K2_{kind}_h1")
        S_ = S
        for h in range(2):
            S = S_.fork2()
            if h == 1: a.label(f"K2_{kind}_h1")
            keep = ACC + 32 * h; send = ACC + 32 * (1 - h)
            ex = {}
            nop = [lambda: None] * 4
            ex[PH2] = nop + [lambda k=k: S.lgi("cw", f"ds_write_b128 v{VC0}, v[{send+4*k}:{send+4*k+3}] offset:{k*1024}") for k in range(8)]
            ex[PH2 + 2] = [lambda k=k: S.lgi(("cr", k), f"ds_read_b128 v[{send+4*k}:{send+4*k+3}], v{VC1} offset:{k*1024}") for k in range(8)]
            adds = []
            for k in range(8):
                def f(k=k):
                    S.lgw({("cr", k)})
                    for r in range(4): a(f"v_add_f32 v{keep+4*k+r}, v{keep+4*k+r}, v{send+4*k+r}")
                adds.append(f)
            ex[PH2 + 3] = adds
            B0 = hreg(S0, 0); B1 = hreg(S0 + 1, 0)
            def bl():
                for x, b in ((0, B0), (1, B1)):
                    a(f"s_add_u32 s44, s{60+x}, {WS_BASE}")
                    S.vmi("B", f"buffer_load_dwordx4 v[{b}:{b+3}], v{VO}, s[4:7], s44 offen")
                    S.vmi("B", f"buffer_load_dwordx4 v[{b+4}:{b+7}], v{VO}, s[4:7], s44 offen offset:64")
            ex[PH2 + 2] = ex[PH2 + 2] + [bl]
            OWN = hreg(S0 + 2, 0)
            def unit_out(un, src0, src1, T_, dst):
                nx = a.newlabel("K2_nx")
                for x, s_ in enumerate((src0, src1)):
                    a(f"v_cvt_pk_bf16_f32 v{T_+2*x}, v{s_}, v{s_+1}")
                    a(f"v_cvt_pk_bf16_f32 v{T_+2*x+1}, v{s_+2}, v{s_+3}")
                a(f"s_cmp_eq_u32 s49, {un % 5}\ns_cselect_b32 s44, 0x7ff00000, s{54 + un//3}")
                S.vmi("U", f"buffer_store_dwordx4 v[{T_}:{T_+3}], v1, s[4:7], s44 offen offset:{(un%3)*1024} sc1")
                a(f"s_cbranch_scc0 {nx}")
                for x, s_ in enumerate((src0, src1)):
                    for r in range(4): a(f"v_mov_b32 v{dst+4*x+r}, v{s_+r}")
                a.label(nx)
            outs = []
            for nbp in range(2):
                for j in range(2):
                    un = nbp * 2 + j
                    outs.append(lambda un=un, nbp=nbp, j=j: unit_out(un, keep + ((2*nbp)*2 + j)*4, keep + ((2*nbp+1)*2 + j)*4, send + 4*un, OWN))
            def zown():
                for r in range(8): a(f"v_mov_b32 v{OWN+r}, 0")
            ex[PH2 + 4] = [zown] + outs
            for i in range(PH2, NPC):
                piece(S, i, ex.get(i, []))
            stampc(a, 5)
            keep2 = ACC + 64 + 16 * h; send2 = ACC + 64 + 16 * (1 - h)
            a("s_nop 7")
            for k in range(4):
                a(f"ds_write_b128 v{VC0}, v[{send2+4*k}:{send2+4*k+3}] offset:{k*1024}")
            S.vmw({"B"})
            for r in range(8): a(f"v_add_f32 v{B0+r}, v{B0+r}, v{OWN+r}")
            a("s_waitcnt lgkmcnt(0)\ns_barrier")
            for k in range(4):
                a(f"ds_read_b128 v[{send2+4*k}:{send2+4*k+3}], v{VC1} offset:{k*1024}")
            for r in range(8): a(f"v_mov_b32 v{OWN+r}, 0")
            for k in range(4):
                a(f"s_waitcnt lgkmcnt({3-k})")
                for r in range(4): a(f"v_add_f32 v{keep2+4*k+r}, v{keep2+4*k+r}, v{send2+4*k+r}")
            for j in range(2):
                unit_out(4 + j, keep2 + j * 4, keep2 + 8 + j * 4, send2 + 4 * j, OWN)
            for r in range(8): a(f"v_add_f32 v{B1+r}, v{B1+r}, v{OWN+r}")
            a("s_branch K2_fin")
        S_.emit_slow()
    a.label("K2_fin")
    stamp(a, 6)
    B0 = hreg(S0, 0); B1 = hreg(S0 + 1, 0)
    srd(a, 8, 52, 2048 * 2304)
    a(f"""
    s_lshl_b32 s41, s17, 2
    s_add_u32 s40, s48, s41
    v_mov_b32 v2, 0
    v_mov_b32 v3, 1
    v_min_u32 v4, 4, v0
    v_lshlrev_b32 v4, 2, v4
    s_mov_b32 s47, 0
    s_waitcnt vmcnt(0)
    s_barrier
    """)
    stamp(a, 7)
    a(f"""
    s_cmp_lg_u32 s16, 0
    s_cbranch_scc1 K2_go
    s_mov_b64 exec, 1
    buffer_store_dword v3, v2, s[4:7], s40 offen sc1
    s_mov_b64 exec, -1
    """)
    a.label("K2_poll")
    a(f"""
    buffer_load_dword v5, v4, s[4:7], s48 offen sc1
    s_waitcnt vmcnt(0)
    v_cmp_ne_u32 vcc, 1, v5
    s_cbranch_vccz K2_go
    s_sleep {POLLSLEEP}
    s_add_u32 s47, s47, 1
    s_cmp_lt_u32 s47, 0x40000
    s_cbranch_scc1 K2_poll
    """)
    a.label("K2_go")
    a("s_barrier")
    stamp(a, 8)
    a("s_mov_b32 s45, s17")
    for k in range(4):
        a(f"""
        s_add_u32 s45, s45, 1
        s_cmp_eq_u32 s45, 5
        s_cselect_b32 s45, 0, s45
        s_mul_i32 s46, s45, {48*48*1024}
        s_add_u32 s47, s46, s62
        s_add_u32 s46, s46, s63
        """)
        for x in range(2):
            r = ACC + (k * 2 + x) * 4
            a(f"buffer_load_dwordx4 v[{r}:{r+3}], v1, s[4:7], s{47-x} offen sc1")
    a("v_mov_b32 v3, 0xffff0000")
    for sp in range(4):
        for x, b in ((0, B0), (1, B1)):
            r = ACC + (sp * 2 + x) * 4
            a(f"s_waitcnt vmcnt({7 - (sp*2+x)})")
            for k in range(4):
                a(f"v_lshlrev_b32 v5, 16, v{r+k}")
                a(f"v_and_b32 v6, v3, v{r+k}")
                a(f"v_add_f32 v{b+2*k}, v{b+2*k}, v5")
                a(f"v_add_f32 v{b+2*k+1}, v{b+2*k+1}, v6")
    for x, b in ((0, B0), (1, B1)):
        a(f"buffer_store_dwordx4 v[{b}:{b+3}], v{VO}, s[8:11], s{60+x} offen")
        a(f"buffer_store_dwordx4 v[{b+4}:{b+7}], v{VO}, s[8:11], s{60+x} offen offset:64")
    if STAMP: a("s_waitcnt vmcnt(0)")
    stamp(a, 9); stamp_out(a, 2, 16)
    a.label("K2_end")
    a("s_endpgm")
    a.label("CODE_END")
    return ("k2_kernel", 240, 512, LB + NP * 8192, a.text(), 256, 100, 256)

def unit_setup(a, VC0, VC1, CA):
    a(f"""
    s_add_u32 s49, s17, 10
    s_sub_u32 s49, s49, s16
    s_mul_i32 s47, s49, 52
    s_lshr_b32 s47, s47, 8
    s_mul_i32 s47, s47, 5
    s_sub_u32 s49, s49, s47                  ; (split - w8) mod 5
    s_lshl_b32 s47, s19, 7
    s_lshl_b32 s50, s23, 5
    s_add_u32 s47, s47, s50
    s_mul_i32 s47, s47, 2304
    s_mul_i32 s50, s22, 768
    s_add_u32 s47, s47, s50                  ; tile/wave row base
    ; early
    s_lshl_b32 s50, s26, 8
    s_add_u32 s60, s47, s50
    s_and_b32 s50, s49, 1
    s_mul_i32 s50, s50, {4*2304}
    s_add_u32 s60, s60, s50
    s_lshr_b32 s50, s49, 1
    s_lshl_b32 s50, s50, 7
    s_add_u32 s60, s60, s50
    ; late
    s_lshl_b32 s50, s26, 7
    s_add_u32 s61, s47, s50
    s_add_u32 s61, s61, 512
    s_cmp_eq_u32 s49, 0
    s_cselect_b32 s50, {4*2304}, 0
    s_add_u32 s61, s61, s50
    ; partial bases
    s_lshl_b32 s47, s18, 3
    s_add_u32 s47, s47, s16
    s_mul_i32 s47, s47, 6144
    s_add_u32 s47, s47, {WS_PART}
    s_mul_i32 s54, s17, {48*48*1024}
    s_add_u32 s54, s54, s47
    s_add_u32 s55, s54, 3072
    s_lshl_b32 s50, s49, 10
    s_add_u32 s62, s47, s50
    s_cmp_eq_u32 s49, 0
    s_cselect_b32 s50, 5120, 4096
    s_add_u32 s63, s47, s50
    s_cmp_lt_u32 s49, 4
    s_cselect_b32 s60, s60, 0x7ff00000
    s_cselect_b32 s62, s62, 0x7ff00000
    s_and_b32 s50, s49, 3
    s_cmp_eq_u32 s50, 0
    s_cselect_b32 s61, s61, 0x7ff00000
    s_cselect_b32 s63, s63, 0x7ff00000
    s_lshl_b32 s47, s18, 8
    s_add_u32 s48, s47, {WS_FLAG}
    s_lshl_b32 s47, s16, 13
    s_add_u32 s47, s47, {LB + CA*8192}
    v_add_u32 v{VC0}, s47, v1
    s_xor_b32 s50, s16, 4
    s_lshl_b32 s50, s50, 13
    s_add_u32 s50, s50, {LB + CA*8192}
    v_add_u32 v{VC1}, s50, v1
    """.replace("s_cselect_b32 s50, 5120, 4096", "s_mov_b32 s50, 4096\n    s_cselect_b32 s50, 5120, s50"))

if __name__ == "__main__":
    out = sys.argv[1] if len(sys.argv) > 1 else "out.s"
    ks = [G1.gen_k0(), gen_k1(), gen_k2()]
    open(out, "w").write(build_file(ks))
```

```python
import sys, os
from asmlib import *
import gen as G1
from gen import WS_X, WS_H, WS_BASE, WS_CONST, WS_E, WS_PART, WS_SIZE, WS_FLAG, srd, MFMA, P
from gen import stamp, stamp_init, stamp_out, STAMP, ST0, XR, xreg
import gen3
from gen3 import Stream, spread, stampc, LB

HST = "sc1"
LD = P("LD", 5); LX = P("LX", 2)
W2G = P("W2G", 1)
S0 = P("S0", 6); LP = P("LP", 14); LH = P("LH", 4)
POLLSLEEP = P("POLLSLEEP", 2)
SPC = [int(x) for x in os.environ.get("SPC", "4,8,12").split(",")]
NPRE = P("NPRE", 12); HPRE = P("HPRE", 6)
XNOLD = P("XNOLD", 0); XNOSB = P("XNOSB", 0); XNOW = P("XNOW", 0)
GSP = [int(x) for x in os.environ.get("GSP", "-1").split(",")]
OST = os.environ.get("OST", "")
NP = 19; CA = 11
JUNK = LB + NP * 8192
WS_PF = WS_FLAG + 16384
OOB = "0x7ff00000"
KNAME = "parallel_sum__ssm_conv_s5__glu_gated_bilinear__prompt_kernel"
PS0 = P("PS0", 8); PS1 = P("PS1", 4); RSH = P("RSH", 7); WPF = P("WPF", 0); ND0 = P("ND0", 2); SPF = P("SPF", 2); DBGT = P("DBGT", 0); EPF = P("EPF", 1); WPS = P("WPS", 7); NDE = P("NDE", 0); NDS = P("NDS", 3)
WS_RDY = WS_FLAG + 32768
VA = 2; VD = 6; VE = 7; VR = 8; VFA = 9; VO = 10; VC0 = 11; VC1 = 12; VPA = 13; VPF = 14; VT = 15
FR = 16; HF = XR; T = 18 - S0
DF = P("DF", 6)
VA2 = [VA, 240, 244]
PANEL = [208, 48, 80]
SP = XR + (S0 % (18 - S0)) * 8
assert T <= 12

def poll_ops(S, a, need, res):
    def issue():
        S.vmi(("poll", need), f"buffer_load_dword v{res}, v{VPA}, s[4:7], s57 offen sc1")
    def check():
        S.vmw({("poll", need)})
        sl = a.newlabel("PLs"); bk = a.newlabel("PLb")
        a(f"v_cmp_gt_u32 vcc, {need}, v{res}\ns_cbranch_vccnz {sl}")
        a.label(bk)
        S.pslow.append((sl, bk, need, res))
    return issue, check
def allset_ops(S, a, res, vtmp):
    ld = f"buffer_load_dword v{res}, v{vtmp}, s[24:27], 0 offen offset:128 sc1"
    def issue():
        a(f"v_and_b32 v{vtmp}, 7, v0\nv_lshlrev_b32 v{vtmp}, 2, v{vtmp}")
        S.vmi("allset", ld)
    def check():
        S.vmw({"allset"})
        sl = a.newlabel("ASs"); bk = a.newlabel("ASb")
        a(f"v_cmp_ne_u32 vcc, 1, v{res}\ns_cbranch_vccnz {sl}")
        a.label(bk)
        S.aslow.append((sl, bk, ld, res))
    return issue, check
def emit_pslow(S, a):
    for sl, bk, ld, res in getattr(S, "aslow", []):
        lp = a.newlabel("ASl")
        a.label(sl)
        a("s_mov_b32 s47, 0")
        a.label(lp)
        a(f"""
        s_sleep 4
        {ld}
        s_waitcnt vmcnt(0)
        v_cmp_ne_u32 vcc, 1, v{res}
        s_cbranch_vccz {bk}
        s_add_u32 s47, s47, 1
        s_cmp_lt_u32 s47, 0x40000
        s_cbranch_scc1 {lp}
        s_branch {bk}
        """)
    S.aslow = []
    for sl, bk, need, res in S.pslow:
        lp = a.newlabel("PLl")
        a.label(sl)
        a("s_mov_b32 s47, 0")
        a.label(lp)
        a(f"""
        s_sleep 4
        buffer_load_dword v{res}, v{VPA}, s[4:7], s57 offen sc1
        s_waitcnt vmcnt(0)
        v_cmp_gt_u32 vcc, {need}, v{res}
        s_cbranch_vccz {bk}
        s_add_u32 s47, s47, 1
        s_cmp_lt_u32 s47, 0x40000
        s_cbranch_scc1 {lp}
        s_branch {bk}
        """)
    S.pslow.clear()
def flag_store(S, a, val):
    a(f"v_mov_b32 v{VT}, {val}\ns_mov_b64 exec, 1")
    S.vmi("flag", f"buffer_store_dword v{VT}, v1, s[4:7], s56 offen sc1")
    a("s_mov_b64 exec, -1")

class K2Plan:
    def __init__(self, pre, avail, first_sync):
        pc = []
        for st in range(S0): pc += [(st, 0), (st, 1), (st, 2)]
        for st in range(S0, 18): pc += [(st, 0), (st, 1)]
        self.PH2 = PH2 = len(pc)
        for st in range(S0, 18): pc += [(st, 2)]
        self.pieces = pc; self.NPC = NPC = len(pc)
        ev = list(first_sync); cov = ev[-1][2]
        while True:
            c = cov - 1; ar = max(ev[-1][1], c - 2, 0)
            if c > PH2: break
            ncov = cov + 3
            if ncov > PH2 + 1: ncov = PH2 + 4
            ev.append((ar, c, ncov)); cov = ncov
        assert cov == PH2 + 4
        ev.append((PH2, PH2 + 1, PH2 + 5))
        ev.append((PH2 + 2, PH2 + 3, min(NPC - 1, PH2 + 8))); cov = ev[-1][2]
        ev.append((PH2 + 5, PH2 + 7, NPC - 1))
        self.ev = ev
        self.arr = {e[0]: e for e in ev if e[0] >= 0}; self.chk = {e[1]: e for e in ev if e[1] >= 0}
        for x, y in zip(ev, ev[1:]): assert x[1] <= y[0] < y[1] and (y[1] < x[2] or x[2] == NPC - 1), (x, y)
        def safe_after(p):
            for ar, c, _ in ev:
                if ar >= p: return c
            return 10 ** 9
        self.slot = {}; free_at = dict(avail)
        def alloc(i, t, forced=None):
            cands = [s for s in range(NP) if free_at[s] <= t]
            if safe_after(i) > PH2: cands = [s for s in cands if s < CA]
            else:
                cands = sorted(cands, key=lambda s: -s)
                if forced is None and i >= PH2 - 14 and i > t + 9: cands = [s for s in cands if s >= CA]
            if forced is not None: cands = [forced]
            if not cands: return None
            s = cands[0]; self.slot[i] = s; free_at[s] = safe_after(i); return s
        for i, s in enumerate(pre): alloc(i, -1, s)
        nxt = len(pre); self.issue_at = {}
        for t in range(NPC):
            self.issue_at[t] = []
            while nxt < NPC and nxt <= t + LP and len(self.issue_at[t]) < 2:
                if alloc(nxt, t) is None: break
                self.issue_at[t].append(nxt); nxt += 1
        assert nxt == NPC
        for ar, c, cv in ev:
            for i in range(len(pre), cv + 1):
                assert min(t for t in self.issue_at if i in self.issue_at[t]) < ar, (i, ar)

def k2acc(nb, j): return PANEL[nb // 4] + ((nb % 4) * 2 + j) * 4
def hreg(st, j): return HF + (st % T) * 8 + j * 4

def k2_main(a, S, plan, kind, dma, rd, hload_ops, hn, frbuf, extra0, hgate):
    PH2, NPC, pieces = plan.PH2, plan.NPC, plan.pieces
    def piece(S, i, extra):
        st, pn = pieces[i]
        pre, side = [], []
        for o in extra:
            (pre if getattr(o, "pre", False) else side).append(o)
        ld = []
        if hn[0] < 18 and (hn[0] <= st + LH) and i >= hgate.get(hn[0], 0) and i < PH2:
            ld += hload_ops(S, hn[0]); hn[0] += 1
        for x in plan.issue_at[i]: ld.append(lambda x=x: dma(S, x))
        if XNOLD and 12 <= i:
            for o in ld:
                sv = a.lines[:]; o(); a.lines[:] = sv
            S.vd = len(S.vm); ld = []
        side = ld + side
        if XNOSB and 12 <= i < PH2 - 3: pass
        elif i in plan.chk: S.check()
        if XNOSB and 12 <= i < PH2 - 3: pass
        elif i in plan.arr:
            S.vmw({("W", x) for x in range(plan.arr[i][2] + 1)}); S.arrive()
        for o in pre: o()
        assert ("H", st) in S.vm, (i, st)
        S.vmw({("H", st)})
        for b in range(4):
            f = 4 * i + b
            if b == 1 and (i + 1) in plan.chk and not (XNOSB and 12 <= i + 1 < PH2 - 3): S.peek()
            if not (XNOW and b % 2): S.lgw({("F2", f + XNOW)})
            buf = frbuf(f)
            for j in range(2):
                c = k2acc(4 * pn + b, j); h = hreg(st, j)
                src2 = "0" if st == 0 else f"v[{c}:{c+3}]"
                a(f"{MFMA} v[{c}:{c+3}], v[{buf}:{buf+3}], v[{h}:{h+3}], {src2}")
                rd(S, f + DF, j)
                for o in spread(side, 8, 2 * b + j): o()
    for i in range(PH2):
        piece(S, i, extra0.get(i, []))
        if i == 17: stamp(a, 8)
        if kind == "ffn":
            for si, pi_ in zip((6, 7, 15), SPC):
                if i == pi_: stamp(a, si)
    stamp(a, 9)
    a(f"s_cmp_eq_u32 s42, 1\ns_cbranch_scc1 K2_{kind}_h1")
    S_ = S
    B0 = SP; B1 = SP + 8
    for h in range(2):
        S = S_.fork2(); S.pslow = S_.pslow
        if h == 1: a.label(f"K2_{kind}_h1")
        keep = PANEL[h]; send = PANEL[1 - h]
        ex = {}
        nop = [lambda: None]
        wr = [lambda k=k: S.lgi("cw", f"ds_write_b128 v{VC0}, v[{send+4*k}:{send+4*k+3}] offset:{k*1024}") for k in range(8)]
        ex[PH2] = nop * 2 + wr[:4]; ex[PH2 + 1] = wr[4:]
        ex[PH2 + 2] = [lambda r=r: a(f"v_mov_b32 v{SP+2*r}, 0\nv_mov_b32 v{SP+2*r+1}, 0") for r in range(8)]
        ex[PH2 + 3] = [lambda k=k: S.lgi(("cr", k), f"ds_read_b128 v[{send+4*k}:{send+4*k+3}], v{VC1} offset:{k*1024}") for k in range(8)]
        def add2(k, r0):
            S.lgw({("cr", k)})
            for r in (r0, r0 + 1): a(f"v_add_f32 v{keep+4*k+r}, v{keep+4*k+r}, v{send+4*k+r}")
        def unit_ops(un, src0, src1, T_, dst):
            ops = []
            for x, s_ in enumerate((src0, src1)):
                ops.append(lambda x=x, s_=s_: a(f"v_cvt_pk_bf16_f32 v{T_+2*x}, v{s_}, v{s_+1}\nv_cvt_pk_bf16_f32 v{T_+2*x+1}, v{s_+2}, v{s_+3}"))
            def fin():
                nx = a.newlabel("K2_nx")
                a(f"s_cmp_eq_u32 s49, {un % 5}\ns_cselect_b32 s44, {OOB}, s{54 + un//3}")
                S.vmi("U", f"buffer_store_dwordx4 v[{T_}:{T_+3}], v1, s[4:7], s44 offen offset:{(un%3)*1024} sc1")
                a(f"s_cbranch_scc0 {nx}")
                for x, s_ in enumerate((src0, src1)):
                    for r in range(4): a(f"v_add_f32 v{dst+4*x+r}, v{dst+4*x+r}, v{s_+r}")
                a.label(nx)
            ops.append(fin)
            return ops
        for nbp in range(2):
            ops = []
            for k in range(4 * nbp, 4 * nbp + 4):
                ops += [lambda k=k: add2(k, 0), lambda k=k: add2(k, 2)]
            ex[PH2 + 4 + 2 * nbp] = ops
            o2 = []
            for j in range(2):
                o2 += unit_ops(2 * nbp + j, keep + (4*nbp + j) * 4, keep + (4*nbp + 2 + j) * 4, send + (4*nbp + j) * 4, B0)
            ex[PH2 + 5 + 2 * nbp] = o2
        for i in range(PH2, NPC):
            piece(S, i, ex.get(i, []))
        stamp(a, 10)
        keep2 = PANEL[2] + 16 * h; send2 = PANEL[2] + 16 * (1 - h)
        a("s_nop 7")
        for k in range(4):
            a(f"ds_write_b128 v{VC0}, v[{send2+4*k}:{send2+4*k+3}] offset:{k*1024}")
        a("s_waitcnt lgkmcnt(0)\ns_barrier")
        for k in range(4):
            a(f"ds_read_b128 v[{send2+4*k}:{send2+4*k+3}], v{VC1} offset:{k*1024}")
        for k in range(4):
            a(f"s_waitcnt lgkmcnt({3-k})")
            for r in range(4): a(f"v_add_f32 v{keep2+4*k+r}, v{keep2+4*k+r}, v{send2+4*k+r}")
        for j in range(2):
            for o in unit_ops(4 + j, keep2 + j * 4, keep2 + 8 + j * 4, send2 + 4 * j, B1): o()
        a("s_branch K2_fin")
    S_.emit_slow(); emit_pslow(S_, a)

def base_load(S, a):
    for x in range(2):
        b = SP + 8 * x
        a(f"s_add_u32 s44, s{60+x}, {WS_BASE}")
        S.vmi("B", f"buffer_load_dwordx4 v[{b}:{b+3}], v{VO}, s[4:7], s44 offen")
        S.vmi("B", f"buffer_load_dwordx4 v[{b+4}:{b+7}], v{VO}, s[4:7], s44 offen offset:64")

def k2_scalars(a):
    a(f"""
    s_and_b32 s23, s16, 3
    s_lshr_b32 s42, s16, 2
    s_lshl_b32 s30, s98, 2
    s_add_u32 s30, s30, s23
    s_mul_i32 s30, s30, 360
    s_mul_i32 s31, s97, 36
    s_add_u32 s30, s30, s31
    s_add_u32 s30, s30, s42
    s_lshl_b32 s30, s30, 10
    s_add_u32 s30, s30, {WS_H}
    s_add_u32 s31, s30, 184320
    s_lshl_b32 s57, s98, 2
    s_add_u32 s57, s57, s23
    s_lshl_b32 s57, s57, 7
    s_mul_i32 s47, s97, 24
    s_add_u32 s57, s57, s47
    s_add_u32 s57, s57, {WS_PF}
    s_mul_i32 s43, s98, 3
    s_add_u32 s43, s43, s99                  ; tile
    s_add_u32 s49, s97, 10
    s_sub_u32 s49, s49, s16
    s_mul_i32 s47, s49, 52
    s_lshr_b32 s47, s47, 8
    s_mul_i32 s47, s47, 5
    s_sub_u32 s49, s49, s47
    s_lshl_b32 s47, s98, 7
    s_lshl_b32 s50, s23, 5
    s_add_u32 s47, s47, s50
    s_mul_i32 s47, s47, 2304
    s_mul_i32 s50, s99, 768
    s_add_u32 s47, s47, s50
    s_lshl_b32 s50, s42, 8
    s_add_u32 s60, s47, s50
    s_and_b32 s50, s49, 1
    s_mul_i32 s50, s50, {4*2304}
    s_add_u32 s60, s60, s50
    s_lshr_b32 s50, s49, 1
    s_lshl_b32 s50, s50, 7
    s_add_u32 s60, s60, s50
    s_lshl_b32 s50, s42, 7
    s_add_u32 s61, s47, s50
    s_add_u32 s61, s61, 512
    s_cmp_eq_u32 s49, 0
    s_cselect_b32 s50, {4*2304}, 0
    s_add_u32 s61, s61, s50
    s_lshl_b32 s47, s43, 3
    s_add_u32 s47, s47, s16
    s_mul_i32 s47, s47, 6144
    s_add_u32 s47, s47, {WS_PART}
    s_mul_i32 s54, s97, {48*48*1024}
    s_add_u32 s54, s54, s47
    s_add_u32 s55, s54, 3072
    s_lshl_b32 s50, s49, 10
    s_add_u32 s62, s47, s50
    s_cmp_eq_u32 s49, 0
    s_mov_b32 s50, 4096
    s_cselect_b32 s50, 5120, s50
    s_add_u32 s63, s47, s50
    s_cmp_lt_u32 s49, 4
    s_cselect_b32 s60, s60, {OOB}
    s_cselect_b32 s62, s62, {OOB}
    s_and_b32 s50, s49, 3
    s_cmp_eq_u32 s50, 0
    s_cselect_b32 s61, s61, {OOB}
    s_cselect_b32 s63, s63, {OOB}
    s_lshl_b32 s47, s43, 8
    s_add_u32 s48, s47, {WS_FLAG}
    """)
def k2_vregs(a, npoll):
    a(f"""
    v_bfe_u32 v{VO}, v0, 2, 2
    v_lshlrev_b32 v{VO}, 3, v{VO}
    v_and_b32 v{VT}, 3, v0
    v_add_u32 v{VO}, v{VO}, v{VT}
    v_mul_u32_u24 v{VO}, 2304, v{VO}
    v_lshrrev_b32 v{VT}, 4, v0
    v_lshl_add_u32 v{VO}, v{VT}, 4, v{VO}
    s_lshl_b32 s47, s16, 13
    s_add_u32 s47, s47, {LB + CA*8192}
    v_add_u32 v{VC0}, s47, v1
    s_xor_b32 s50, s16, 4
    s_lshl_b32 s50, s50, 13
    s_add_u32 s50, s50, {LB + CA*8192}
    v_add_u32 v{VC1}, s50, v1
    v_min_u32 v{VPA}, {npoll-1}, v0
    v_lshlrev_b32 v{VPA}, 2, v{VPA}
    """)

STG = LB + 131072
CT = LB + 147456
LNR = 48

def ln_issue(a, S):
    a(f"""
    s_lshl_b32 s40, s3, 2
    s_add_u32 s40, s40, s18                  ; c = 4xcd + k4
    s_lshr_b32 s41, s40, 1
    s_lshl_b32 s44, s17, 4
    s_add_u32 s44, s44, s41                  ; mb
    s_and_b32 s45, s40, 1                    ; half
    s_lshl_b32 s47, s45, 3
    s_add_u32 s47, s47, s16                  ; i
    s_lshr_b32 s50, s44, 1
    s_lshl_b32 s50, s50, 5
    s_and_b32 s51, s44, 1
    s_lshl_b32 s51, s51, 2
    s_add_u32 s50, s50, s51
    s_lshr_b32 s51, s47, 2
    s_lshl_b32 s51, s51, 3
    s_add_u32 s50, s50, s51
    s_and_b32 s51, s47, 3
    s_add_u32 s50, s50, s51                  ; t
    s_mul_i32 s50, s50, 1152
    v_cmp_gt_u32 vcc, 36, v0
    v_mov_b32 v{LNR+40}, 0x7ffffff0
    s_mul_i32 s100, s44, 18432
    s_lshl_b32 s45, s45, 7
    v_cndmask_b32 v{LNR+41}, v{LNR+40}, v1, vcc
    s_add_u32 s100, s100, s45
    s_lshl_b32 s101, s17, 5
    s_add_u32 s101, s101, s40
    s_waitcnt lgkmcnt(0)
    """)
    srd(a, 8, 48, 2048 * 1152)
    S.vmi("x", f"buffer_load_dwordx4 v[{LNR}:{LNR+3}], v{LNR+41}, s[8:11], s50 offen")
    S.vmi("x", f"buffer_load_dwordx4 v[{LNR+4}:{LNR+7}], v{LNR+41}, s[8:11], s50 offen offset:576")

def ln_compute(a, S, hook=None):
    X = LNR + 8; M = LNR + 24; MK = LNR + 42
    a(f"v_mov_b32 v{MK}, 0xffff0000\nv_cmp_gt_u32 vcc, 36, v0")
    S.vmw({"x"})
    if STAMP and SPC[0] < 0: stamp(a, 6)
    a(f"v_mov_b32 v{LNR+49}, 0\ns_lshr_b32 s45, s16, 1\ns_lshl_b32 s45, s45, 8")
    S.vmi("z", f"buffer_load_dwordx2 v[{LNR+50}:{LNR+51}], v{LNR+49}, s[24:27], s45 offen sc1")
    if hook: hook()
    for k in range(8):
        a(f"v_lshlrev_b32 v{X+2*k}, 16, v{LNR+k}\nv_and_b32 v{X+2*k+1}, v{MK}, v{LNR+k}")
    def reduce64(r, t):
        a(f"""
        s_nop 1
        v_add_f32_dpp v{t}, v{r}, v{r} quad_perm:[1,0,3,2] row_mask:0xf bank_mask:0xf
        s_nop 1
        v_add_f32_dpp v{r}, v{t}, v{t} quad_perm:[2,3,0,1] row_mask:0xf bank_mask:0xf
        s_nop 1
        v_add_f32_dpp v{t}, v{r}, v{r} row_half_mirror row_mask:0xf bank_mask:0xf
        s_nop 1
        v_add_f32_dpp v{r}, v{t}, v{t} row_mirror row_mask:0xf bank_mask:0xf
        s_nop 0
        v_mov_b32 v{t}, v{r}
        s_nop 1
        v_permlane16_swap_b32 v{r}, v{t}
        s_nop 1
        v_add_f32 v{r}, v{r}, v{t}
        s_nop 0
        v_mov_b32 v{t}, v{r}
        s_nop 1
        v_permlane32_swap_b32 v{r}, v{t}
        s_nop 1
        v_add_f32 v{r}, v{r}, v{t}
        """)
    for c in range(4): a(f"v_add_f32 v{M+c}, v{X+c}, v{X+4+c}")
    for k in range(2, 4):
        for c in range(4): a(f"v_add_f32 v{M+c}, v{M+c}, v{X+4*k+c}")
    a(f"v_add_f32 v{M}, v{M}, v{M+1}\nv_add_f32 v{M+2}, v{M+2}, v{M+3}\nv_add_f32 v{M}, v{M}, v{M+2}")
    reduce64(M, M + 1)
    a(f"v_mul_f32 v{M}, 0x3ae38e39, v{M}")
    V = M + 4; D = M + 8
    for k in range(4):
        for c in range(4):
            a(f"v_sub_f32 v{D+c}, v{X+4*k+c}, v{M}")
            a(f"v_mul_f32 v{V+c}, v{D+c}, v{D+c}" if k == 0 else f"v_fmac_f32 v{V+c}, v{D+c}, v{D+c}")
    a(f"v_add_f32 v{V}, v{V}, v{V+1}\nv_add_f32 v{V+2}, v{V+2}, v{V+3}\nv_add_f32 v{V}, v{V}, v{V+2}")
    a(f"v_cndmask_b32 v{V}, 0, v{V}, vcc")
    reduce64(V, V + 1)
    a(f"""
    v_mul_f32 v{V}, 0x3ae38e39, v{V}
    v_cvt_pk_bf16_f32 v{M+2}, v{M}, v{V}
    v_lshlrev_b32 v{M}, 16, v{M+2}
    v_and_b32 v{V}, v{MK}, v{M+2}
    v_add_f32 v{V}, 0x3727c5ac, v{V}
    v_cvt_pk_bf16_f32 v{V}, v{V}, v{V}
    v_and_b32 v{V}, v{MK}, v{V}
    v_sqrt_f32 v{V}, v{V}
    s_lshl_b32 s40, s16, 4
    v_cvt_pk_bf16_f32 v{V}, v{V}, v{V}
    v_and_b32 v{V}, v{MK}, v{V}
    v_rcp_f32 v{V}, v{V}
    s_add_u32 s40, s40, {STG}
    v_lshl_add_u32 v{MK+1}, v1, 3, s40
    """)
    for k in range(8):
        a(f"v_sub_f32 v{X+2*k}, v{X+2*k}, v{M}\nv_sub_f32 v{X+2*k+1}, v{X+2*k+1}, v{M}")
    for k in range(8):
        a(f"v_cvt_pk_bf16_f32 v{LNR+k}, v{X+2*k}, v{X+2*k+1}")
    for k in range(8):
        a(f"v_lshlrev_b32 v{X+2*k}, 16, v{LNR+k}\nv_and_b32 v{X+2*k+1}, v{MK}, v{LNR+k}")
    for k in range(16):
        a(f"v_mul_f32 v{X+k}, v{X+k}, v{V}")
    for k in range(8):
        a(f"v_cvt_pk_bf16_f32 v{LNR+k}, v{X+2*k}, v{X+2*k+1}")
    a(f"""
    s_mov_b64 exec, 0xfffffffff
    ds_write_b128 v{MK+1}, v[{LNR}:{LNR+3}]
    ds_write_b128 v{MK+1}, v[{LNR+4}:{LNR+7}] offset:4608
    s_mov_b64 exec, -1
    s_lshl_b32 s40, s16, 10
    s_add_u32 s40, s40, {STG}
    v_add_u32 v{MK+1}, s40, v1
    v_add_u32 v{MK+2}, {STG + 8192}, v1
    v_lshrrev_b32 v{MK+3}, 3, v0
    v_lshlrev_b32 v{MK+3}, 8, v{MK+3}
    v_and_b32 v{MK+4}, 7, v0
    v_lshl_add_u32 v{MK+3}, v{MK+4}, 4, v{MK+3}
    s_lshl_b32 s40, s16, 11
    s_add_u32 s40, s40, s100
    s_add_u32 s41, s100, 16384
    s_cmp_eq_u32 s16, 0
    s_cselect_b32 s41, s41, {OOB}
    {"s_memrealtime s[78:79]" if STAMP == 1 and SPC[0] < 0 else ""}
    s_waitcnt lgkmcnt(0)
    s_barrier
    {"s_memrealtime s[94:95]" if STAMP == 1 and SPC[0] < 0 else ""}
    ds_read_b128 v[{LNR}:{LNR+3}], v{MK+1}
    ds_read_b128 v[{LNR+4}:{LNR+7}], v{MK+2}
    s_waitcnt lgkmcnt(1)
    """.replace("s_mov_b64 exec, 0xfffffffff", "s_mov_b32 exec_hi, 15"))
    S.vmi("xs", f"buffer_store_dwordx4 v[{LNR}:{LNR+3}], v{MK+3}, s[4:7], s40 offen sc1")
    a("s_waitcnt lgkmcnt(0)")
    S.vmi("xs", f"buffer_store_dwordx4 v[{LNR+4}:{LNR+7}], v{MK+3}, s[4:7], s41 offen sc1")
    S.ld = len(S.lg)

def nonce_get(a):
    sk = a.newlabel("NCs"); lp = a.newlabel("NCl")
    n = LNR + 50
    a(f"""
    s_mov_b32 s47, 0
    """)
    a.label(lp)
    a(f"""
    v_cmp_eq_u32 vcc, 0, v{n+1}
    s_cbranch_vccz {sk}
    buffer_load_dwordx2 v[{n}:{n+1}], v{LNR+49}, s[24:27], 0 offen sc1
    s_waitcnt vmcnt(0)
    s_add_u32 s47, s47, 1
    s_cmp_lt_u32 s47, 0x40000
    s_cbranch_scc1 {lp}
    """)
    a.label(sk)

def ln_handshake(a, S, tag, between):
    t = LNR + 52; n = LNR + 50
    go = a.newlabel("LNgo"); lp = a.newlabel("LNp"); ok = a.newlabel("LNok"); w1 = a.newlabel("LNw1"); nn = a.newlabel("LNnn")
    a(f"""
    s_lshl_b32 s41, s101, {RSH}
    s_add_u32 s41, s41, {WS_RDY}
    v_and_b32 v{t}, 31, v0
    v_lshlrev_b32 v{t}, {RSH}, v{t}
    s_lshl_b32 s40, s17, {RSH+5}
    s_add_u32 s40, s40, {WS_RDY}
    """)
    S.vmw({"xs", "z"})
    a(f"s_cmp_ge_u32 s16, 2\ns_cbranch_scc1 {nn}")
    nonce_get(a)
    a.label(nn)
    a("s_barrier")
    stamp(a, 1)
    a(f"""
    s_cmp_lg_u32 s16, 0
    s_cbranch_scc1 {w1}
    s_mov_b64 exec, 1
    buffer_store_dwordx2 v[{n}:{n+1}], v1, s[4:7], s41 offen sc1
    s_mov_b64 exec, -1
    s_branch {go}
    """)
    a.label(w1)
    a(f"""
    s_cmp_lg_u32 s16, 1
    s_cbranch_scc1 {go}
    s_mov_b32 s47, 0
    s_sleep {PS0}
    """)
    NPL = 4
    for k in range(NPL - 1):
        a(f"buffer_load_dwordx2 v[{t+2+2*k}:{t+3+2*k}], v{t}, s[4:7], s40 offen sc1\ns_sleep {PS1}")
    a.label(lp)
    for k in range(NPL):
        kk = (k + NPL - 1) % NPL
        a(f"""
        buffer_load_dwordx2 v[{t+2+2*kk}:{t+3+2*kk}], v{t}, s[4:7], s40 offen sc1
        s_waitcnt vmcnt({NPL-1})
        v_cmp_ne_u64 vcc, v[{n}:{n+1}], v[{t+2+2*k}:{t+3+2*k}]
        s_cbranch_vccz {ok}
        """)
    a(f"""
    s_add_u32 s47, s47, 1
    s_cmp_lt_u32 s47, 0x20000
    s_cbranch_scc1 {lp}
    """)
    a.label(ok)
    if STAMP == 1 and SPC[0] < 0: a("s_memrealtime s[76:77]")
    a(f"""
    s_and_b32 s40, s101, 31
    s_cmp_lg_u32 s40, 0
    s_cbranch_scc1 {go}
    s_lshl_b32 s40, s17, 2
    v_mov_b32 v{t}, 1
    s_mov_b64 exec, 1
    buffer_store_dword v{t}, v1, s[24:27], s40 offen offset:128 sc1
    s_mov_b64 exec, -1
    """)
    a.label(go)
    between()
    S.lg0()
    a("s_barrier")

def zero_word(a, S, sreg):
    S.vmi("z", f"buffer_store_dword v{LNR+46}, v1, s[4:7], s{sreg} offen sc1")

def code_prefetch(a, S):
    a(f"""
    s_getpc_b64 s[60:61]
    CP_pc:
    s_sub_u32 s60, s60, CP_pc-{KNAME}
    s_subb_u32 s61, s61, 0
    s_mov_b32 s62, CODE_END-{KNAME}
    s_mov_b32 s63, 0x20000
    s_lshr_b32 s40, s2, 3
    s_lshl_b32 s40, s40, 3
    s_add_u32 s40, s40, s16
    s_lshl_b32 s40, s40, 8
    s_mul_i32 s41, s40, 3
    s_lshr_b32 s41, s41, 1
    v_lshlrev_b32 v{LNR+47}, 3, v1
    s_mov_b32 m0, {JUNK}
    s_mov_b64 exec, 7
    """)
    S.vmi("P", f"buffer_load_dword v{LNR+47}, s[60:63], s41 offen lds")
    a("s_mov_b64 exec, -1")

def const_table(a, CR):
    lre, lim, ldt = CR + 3, CR + 4, CR + 5
    t = CR + 6; Tb = CR + 16
    a(f"""
    v_lshlrev_b32 v{lre}, 16, v{lre}
    v_lshlrev_b32 v{lim}, 16, v{lim}
    v_lshlrev_b32 v{ldt}, 16, v{ldt}
    v_mul_f32 v{ldt}, 0x3fb8aa3b, v{ldt}
    v_exp_f32 v{ldt}, v{ldt}
    s_nop 0
    v_cvt_pk_bf16_f32 v{ldt}, v{ldt}, v{ldt}
    v_and_b32 v{ldt}, 0xffff0000, v{ldt}
    v_mul_f32 v{t}, v{ldt}, v{lre}
    v_mul_f32 v{t+1}, v{ldt}, v{lim}
    v_mul_f32 v{t}, 0x3fb8aa3b, v{t}
    v_exp_f32 v{t}, v{t}
    v_mul_f32 v{t+1}, 0x3e22f983, v{t+1}
    v_fract_f32 v{t+1}, v{t+1}
    v_cos_f32 v{t+2}, v{t+1}
    v_sin_f32 v{t+3}, v{t+1}
    s_nop 0
    v_mul_f32 v{Tb}, v{t}, v{t+2}
    v_mul_f32 v{Tb+1}, v{t}, v{t+3}
    v_add_f32 v{t}, -1.0, v{Tb}
    v_mul_f32 v{t+1}, v{lre}, v{lre}
    v_fmac_f32 v{t+1}, v{lim}, v{lim}
    v_rcp_f32 v{t+1}, v{t+1}
    v_mul_f32 v{t+2}, v{t}, v{lre}
    v_fmac_f32 v{t+2}, v{Tb+1}, v{lim}
    v_mul_f32 v{t+3}, v{Tb+1}, v{lre}
    v_fma_f32 v{t+3}, -v{t}, v{lim}, v{t+3}
    v_add_f32 v{t+1}, v{t+1}, v{t+1}
    v_mul_f32 v{Tb+2}, v{t+2}, v{t+1}
    v_mul_f32 v{Tb+3}, v{t+3}, v{t+1}
    """)
    def csq(d, s_):
        a(f"""
        v_mul_f32 v{t+4}, v{s_+1}, v{s_+1}
        v_mul_f32 v{t+5}, v{s_}, v{s_+1}
        v_fma_f32 v{d}, v{s_}, v{s_}, -v{t+4}
        v_add_f32 v{d+1}, v{t+5}, v{t+5}
        """)
    csq(t, Tb); csq(t + 2, t); csq(Tb + 10, t + 2); csq(Tb + 12, Tb + 10)
    a(f"""
    v_mul_f32 v{t+4}, v{Tb+13}, v{Tb+11}
    v_fma_f32 v{Tb+14}, v{Tb+12}, v{Tb+10}, -v{t+4}
    v_mul_f32 v{t+4}, v{Tb+12}, v{Tb+11}
    v_fma_f32 v{Tb+15}, v{Tb+13}, v{Tb+10}, v{t+4}
    v_mov_b32 v{Tb+8}, 1.0
    v_mov_b32 v{Tb+9}, 0
    """)
    csq(Tb + 4, Tb + 12); csq(t, Tb + 4); csq(t + 2, t); csq(Tb + 6, t + 2)
    a(f"v_lshlrev_b32 v{CR}, 6, v{CR}\nv_add_u32 v{CR}, {CT}, v{CR}")
    for k in range(4):
        a(f"ds_write_b128 v{CR}, v[{Tb+4*k}:{Tb+4*k+3}] offset:{16*k}")

def gen_main():
    a = Asm()
    stamp_init(a); stamp(a, 0)
    a(f"""
    s_cmp_ge_u32 s2, 256
    s_cbranch_scc1 K1_end
    s_load_dwordx2 s[48:49], s[0:1], 0       ; x
    s_load_dwordx4 s[20:23], s[0:1], 112
    s_load_dwordx4 s[52:55], s[0:1], 80
    s_load_dwordx4 s[28:31], s[0:1], 24
    s_load_dwordx2 s[58:59], s[0:1], 96      ; w_down
    v_lshrrev_b32 v1, 6, v0
    v_and_b32 v0, 63, v0                     ; lane
    v_readfirstlane_b32 s16, v1              ; wave
    s_and_b32 s3, s2, 7                      ; xcd
    s_lshr_b32 s18, s2, 3
    s_and_b32 s17, s18, 7                    ; mt
    s_lshr_b32 s18, s18, 3                   ; k4
    v_lshlrev_b32 v1, 4, v0                  ; lane*16
    """)
    S0_ = Stream(a)
    ln_issue(a, S0_)
    a(f"""
    s_lshl_b32 s19, s17, 3
    s_add_u32 s19, s19, s16                  ; 8mt + w
    s_mul_i32 s32, s19, 36864
    s_add_u32 s33, s32, 18432
    s_mul_i32 s34, s19, 368640
    s_add_u32 s34, s34, {WS_H}
    s_lshl_b32 s35, s16, 10
    s_add_u32 s35, s35, {LB}
    s_lshl_b32 s56, s19, 7
    s_add_u32 s56, s56, {WS_PF}
    v_mov_b32 v{LNR+46}, 0
    s_lshl_b32 s46, s16, 8
    """)
    srd(a, 4, 22, WS_SIZE)
    srd(a, 24, 20, 256)
    a(f"""
    s_or_b32 s40, s2, s16
    s_cmp_lg_u32 s40, 0
    s_cbranch_scc1 NONCE_done
    s_memrealtime s[40:41]
    s_waitcnt lgkmcnt(0)
    s_or_b32 s41, s41, 0x80000000
    v_mov_b32 v{LNR+44}, s40
    v_mov_b32 v{LNR+45}, s41
    s_mov_b64 exec, 1
    buffer_store_dwordx2 v[{LNR+44}:{LNR+45}], v1, s[24:27], 0 offen sc1
    s_mov_b64 exec, -1
    """)
    a.label("NONCE_done")
    code_prefetch(a, S0_)
    a("s_cmp_eq_u32 s18, 3\ns_cbranch_scc1 K1_ssm")

    def xload_ops(S, st):
        ops = []
        for j in range(2):
            for e in range(2):
                r = xreg(j, 2 * st + e)
                def f(j=j, e=e, r=r):
                    if e == 0: a(f"s_add_u32 s{36+j}, s{32+j}, {WS_X + st*2048}")
                    S.vmi(("X", st), f"buffer_load_dwordx4 v[{r}:{r+3}], v1, s[4:7], s{36+j} offen offset:{1024*e} sc1")
                ops.append(f)
        return ops

    WSZ = 576 * 9216
    srd(a, 8, 52, WSZ)
    srd(a, 12, 54, WSZ)
    ACC = 48
    S = S0_.fork(); S.slow = []; S.sb_setup(VE, VR, VFA, 46); S.pslow = []; S.aslow = []
    a(f"""
    s_mul_i32 s39, s3, 3
    s_add_u32 s39, s39, s18
    s_lshl_b32 s40, s39, 2
    s_add_u32 s56, s56, s40
    s_mul_i32 s39, s39, 3
    s_lshl_b32 s38, s39, 7
    s_lshl_b32 s39, s39, 11
    s_add_u32 s39, s39, s34
    v_lshrrev_b32 v16, 3, v0
    s_lshl_b32 s40, s16, 3
    v_add_u32 v16, s40, v16
    v_mul_u32_u24 v16, 9216, v16
    v_bfe_u32 v17, v0, 4, 1
    s_and_b32 s40, s16, 1
    s_lshl_b32 s40, s40, 1
    v_or_b32 v17, s40, v17
    v_lshlrev_b32 v17, 1, v17
    v_and_b32 v18, 7, v0
    v_xor_b32 v17, v17, v18
    v_lshl_add_u32 v{VD}, v17, 4, v16
    """)
    def dma_ops(gs):
        G, st = divmod(gs, 9)
        ops = []
        for m in range(2):
            def f(m=m):
                a(f"s_add_u32 m0, s35, {st*16384 + m*8192}")
                a(f"s_add_u32 s41, s38, {G*128 + st*589824}")
                S.vmi(("D", gs), f"buffer_load_dwordx4 v{VD}, s[{8+4*m}:{11+4*m}], s41 offen lds")
            ops.append(f)
        return ops
    for st in range(NDE):
        for f in dma_ops(st): f()
    a(f"""
    v_lshrrev_b32 v{VT}, 4, v0
    v_lshlrev_b32 v{VT}, 10, v{VT}
    v_bfe_u32 v17, v0, 2, 2
    v_lshl_add_u32 v{VT}, v17, 7, v{VT}
    v_bfe_u32 v17, v0, 3, 2
    v_lshl_add_u32 v{VT}, v17, 5, v{VT}
    v_and_b32 v17, 3, v0
    v_lshl_add_u32 v{VT}, v17, 3, v{VT}
    v_add_u32 v{VT}, {LB}, v{VT}
    v_lshlrev_b32 v{VPF}, 7, v0
    """)
    for b in range(4):
        a(f"v_xor_b32 v{VA+b}, {b*32}, v{VT}")
    S.sb_init(16)
    a(f"""
    s_lshr_b32 s97, s3, 1
    s_and_b32 s98, s3, 1
    s_lshl_b32 s98, s98, 3
    s_add_u32 s98, s98, s17
    s_mov_b32 s99, s18
    """)
    k2_scalars(a)
    k2_vregs(a, 6)
    a(f"""
    s_mul_i32 s51, s97, {1152*1152}
    s_mul_i32 s40, s99, 384
    s_add_u32 s28, s51, s40
    s_lshl_b32 s40, s18, 3
    s_add_u32 s40, s40, s17
    s_lshl_b32 s40, s40, 3
    s_add_u32 s40, s40, s16
    s_min_u32 s40, s40, 161
    s_lshl_b32 s40, s40, 13
    s_add_u32 s29, s51, s40
    """)
    srd(a, 20, 58, 4608 * 1152)
    a("s_lshl_b32 s41, s97, 2\ns_add_u32 s40, s48, s41\ns_mov_b64 exec, 1")
    zero_word(a, S, 56); zero_word(a, S, 40)
    a("s_mov_b64 exec, -1")
    def wpf(lines=None, reg=VT):
        if lines is None: lines = [2] if WPF == 1 else [1, 2]
        a(f"""
        v_min_u32 v{reg}, 8, v0
        v_mul_u32_u24 v{reg}, 9216, v{reg}
        s_mul_i32 s40, s19, {9*9216}
        s_add_u32 s40, s40, s38
        s_mov_b32 m0, {JUNK}
        s_mov_b64 exec, 0x1ff
        """)
        for ln in lines:
            S.vmi("P", f"buffer_load_dword v{reg}, s[8:11], s40 offen offset:{128*ln} lds")
            S.vmi("P", f"buffer_load_dword v{reg}, s[12:15], s40 offen offset:{128*ln} lds")
        a("s_mov_b64 exec, -1")
    ln_compute(a, S, (lambda: wpf(list(range(EPF)))) if EPF else None)
    for st in range(NDE, 2):
        for f in dma_ops(st): f()
    def between():
        for st in range(2, ND0):
            for f in dma_ops(st): f()
        S.vmw({("D", 0)})
    ln_handshake(a, S, "f", between)
    for st in range(LX):
        for f in xload_ops(S, st): f()
    NBLK = 27 * 8
    pre_slots = []; pre_when = []
    g2first = max(2, 9 - LD)
    free = []
    for st in range(0, 9):
        if st >= 2: free += [2 * (st - 2), 2 * (st - 2) + 1]
        if st == 3: free.append(18)
        if st >= g2first:
            n = 0
            while free and n < 3 and len(pre_slots) < NPRE:
                pre_slots.append(free.pop(0)); pre_when.append(st); n += 1
    avail = {s: -1 for s in range(NP)}
    for s in (14, 15): avail[s] = 0
    for s in (16, 17): avail[s] = 2
    plan = K2Plan(pre_slots, avail, [(-2, -1, 3), (0, 2, 6)])
    def line_of(st): return 3 * (st % 6) + st // 6
    def dma2(S, i):
        st, pn = plan.pieces[i]
        a(f"s_add_u32 m0, s35, {plan.slot[i]*8192}")
        a(f"s_add_u32 s41, s28, {line_of(st)*64*1152 + pn*128}")
        S.vmi(("W", i), f"buffer_load_dwordx4 v{VD}, s[20:23], s41 offen lds")
    def frbuf(f): return FR + (f % 8) * 4
    def rd2(S, f, k):
        if f >= 4 * plan.NPC: return
        i, b = divmod(f, 4); sl = plan.slot[i]
        buf = frbuf(f) + 2 * k
        S.lgi(("F2", f), f"ds_read_b64_tr_b16 v[{buf}:{buf+1}], v{VA2[sl//7] + b} offset:{(sl%7)*8192 + k*2048}")
    def hload_ops(S, st):
        ops = []
        for j in range(2):
            def f(j=j):
                r = hreg(st, j)
                a(f"s_add_u32 s36, s{30+j}, {line_of(st)*2048}")
                S.vmi(("H", st), f"buffer_load_dwordx4 v[{r}:{r+3}], v1, s[4:7], s36 offen sc1")
            ops.append(f)
        return ops
    def rd(gblk, k):
        if gblk >= NBLK:
            f = 2 * (gblk - NBLK) + k // 2
            if f < DF: rd2(S, f, k % 2)
            return
        gs, blk = divmod(gblk, 8)
        st = gs % 9
        u, m = divmod(blk, 2)
        s, e = divmod(k, 2)
        buf = FR + (gblk % 4) * 8 + s * 4 + e * 2
        off = (st % 3) * 16384 + m * 8192 + s * 4096 + e * 512
        S.lgi(("F", gblk), f"ds_read_b64_tr_b16 v[{buf}:{buf+1}], v{VA+u} offset:{off}")
        if st % 3 == 2 and m == 1 and k == 3 and gs < 26:
            a(f"v_add_u32 v{VA+u}, 49152, v{VA+u}" if st < 8 else f"v_subrev_u32 v{VA+u}, 98304, v{VA+u}")
    def acc(blk, j): return ACC + (blk * 2 + j) * 4
    def epi_ops(v, G):
        ops = []
        for j in range(2):
            for uu in range(2):
                g = acc(4 * v + 2 * uu, j); u = acc(4 * v + 2 * uu + 1, j)
                for r in range(4):
                    ops.append(lambda g=g, u=u, r=r: a(f"v_mul_f32 v{g+r}, v{g+r}, v{u+r}"))
            T_ = acc(4 * v + 1, j)
            g0 = acc(4 * v, j); g1 = acc(4 * v + 2, j)
            ops.append(lambda T_=T_, g=g0: a(f"v_cvt_pk_bf16_f32 v{T_}, v{g}, v{g+1}"))
            ops.append(lambda T_=T_, g=g0: a(f"v_cvt_pk_bf16_f32 v{T_+1}, v{g+2}, v{g+3}"))
            ops.append(lambda T_=T_, g=g1: a(f"v_cvt_pk_bf16_f32 v{T_+2}, v{g}, v{g+1}"))
            ops.append(lambda T_=T_, g=g1: a(f"v_cvt_pk_bf16_f32 v{T_+3}, v{g+2}, v{g+3}"))
            def st_(T_=T_, j=j):
                a(f"s_add_u32 s45, s39, {j*184320 + G*2048}")
                S.vmi(("S", G), f"buffer_store_dwordx4 v[{T_}:{T_+3}], v1, s[4:7], s45 offen offset:{1024*v} {HST}")
            ops.append(st_)
        return ops
    def publish(G):
        S.vmw({("S", G)}); flag_store(S, a, G + 1)
    def vd2():
        a(f"""
        v_lshrrev_b32 v{VD}, 3, v0
        s_lshl_b32 s40, s16, 3
        v_add_u32 v{VD}, s40, v{VD}
        v_mul_u32_u24 v{VD}, 1152, v{VD}
        v_lshrrev_b32 v{VT}, 4, v0
        v_lshlrev_b32 v{VT}, 1, v{VT}
        v_and_b32 v{VPF}, 7, v0
        v_xor_b32 v{VT}, v{VT}, v{VPF}
        v_lshl_add_u32 v{VD}, v{VT}, 4, v{VD}
        """)
    def va2_base():
        a(f"""
        v_lshrrev_b32 v{VPF}, 2, v0
        v_lshlrev_b32 v{VPF}, 7, v{VPF}
        v_bfe_u32 v{VT}, v0, 3, 2
        v_lshl_add_u32 v{VPF}, v{VT}, 5, v{VPF}
        v_and_b32 v{VT}, 3, v0
        v_lshl_add_u32 v{VPF}, v{VT}, 3, v{VPF}
        s_lshl_b32 s40, s42, 12
        s_add_u32 s40, s40, {LB}
        v_add_u32 v{VPF}, s40, v{VPF}
        """)
    def va2(region):
        for b in range(4):
            if region == 0: a(f"v_xor_b32 v{VA+b}, {b*32}, v{VPF}")
            else: a(f"v_add_u32 v{VA2[region]+b}, {57344*region}, v{VA+b}")
    stamp(a, 2)
    for g in range(3):
        for k in range(4): rd(g, k)
    dnext = ND0
    asi, asc = allset_ops(S, a, VT, VPA)
    p1i, p1c = poll_ops(S, a, 1, VT)
    p2i, p2c = poll_ops(S, a, 2, VT if HPRE > 6 else VPF)
    for gs in range(27):
        G, st = divmod(gs, 9)
        side = {b: [] for b in range(8)}
        if st == 0 and G > 0:
            e = epi_ops(1, G - 1)
            for b in range(3): side[b] += spread(e, 3, b)
        if st == 2 and G > 0: side[7].append(lambda G=G: publish(G - 1))
        if st == 8:
            e = epi_ops(0, G)
            for b in range(3): side[5 + b] += spread(e, 3, b)
        if G == 0 and st + LX <= 8:
            x = xload_ops(S, st + LX)
            side[0] += x[:2]; side[1] += x[2:]
        for pos in (3, 6):
            if dnext <= min(gs + LD, 26):
                if pos == 6 and G == 0 and 1 <= st <= 5 and dnext >= gs + 3: continue
                side[pos] += dma_ops(dnext); dnext += 1
        if G == W2G and st < 8 and st % 2 == 0:
            def pf():
                a(f"s_mov_b32 m0, {JUNK}\ns_mov_b64 exec, 0xffff")
                S.vmi("P", f"buffer_load_dword v{VPF}, s[20:23], s29 offen lds")
                a(f"s_mov_b64 exec, -1\ns_add_u32 s29, s29, 2048")
            side[4].append(pf)
        if gs == WPS and WPF: side[4].append(wpf)
        if G == 1 and st == 4: side[7].append(asi)
        if G == 1 and st == 6:
            side[7] += [asc, lambda: a(f"v_min_u32 v{VPA}, 5, v0\nv_lshlrev_b32 v{VPA}, 2, v{VPA}")]
        if G == 2:
            if st == 0: side[4].append(p1i)
            if st == 1: side[4].append(p1c)
            if 1 <= st <= 3:
                side[5] += hload_ops(S, 2 * (st - 1)); side[6] += hload_ops(S, 2 * (st - 1) + 1)
            if HPRE > 6:
                if st == 5: side[1].append(p2i)
                if st == 6: side[0].append(p2c)
                hs = {6: [(3, 6), (6, 7), (7, 8)], 7: [(0, 9), (1, 10), (5, 11)]}.get(st, [])
                for b, hh in hs:
                    if hh < HPRE: side[b] += hload_ops(S, hh)
            if st == g2first: side[0].append(vd2)
            k = 0
            for i, w in enumerate(pre_when):
                if w == st:
                    side[(3, 4, 7)[k] if st < 8 else (1, 3, 4)[k]].append(lambda i=i: dma2(S, i)); k += 1
            if st == 6: side[1].append(va2_base)
        for blk in range(8):
            g = gs * 8 + blk
            if blk == 0: S.vmw({("X", gs)})
            if blk == 1:
                S.vmw({("D", gs + 1)} if gs < 26 else {("W", x) for x in range(4)}); S.arrive()
            if blk == 3: S.peek()
            if blk == 5:
                S.check()
                if gs == 26: va2(0)
            S.lgw({("F", g)})
            buf = FR + (g % 4) * 8
            k = 0
            for j in range(2):
                for s in range(2):
                    c = acc(blk, j)
                    src2 = "0" if (st == 0 and s == 0) else f"v[{c}:{c+3}]"
                    x = xreg(j, 2 * st + s)
                    a(f"{MFMA} v[{c}:{c+3}], v[{buf+4*s}:{buf+4*s+3}], v[{x}:{x+3}], {src2}")
                    rd(g + 3, k)
                    for o in spread(side[blk], 4, k): o()
                    k += 1
        if st == 8: stamp(a, 3 + G)
        for si, g_ in zip((6, 7, 15), GSP):
            if gs == g_: stamp(a, si)
    e = epi_ops(1, 2)
    p3i, p3c = poll_ops(S, a, 3, VPF)
    p2c.pre = True; p3c.pre = True
    P3 = P("P3", 19)
    P2 = P("P2", 2); P2C = P("P2C", 5); PUB = P("PUB", 11); PB = P("PB", 8)
    def va12(): va2(1); va2(2)
    va12.pre = True
    extra0 = {0: [va12]}
    for k, v in ((0, spread(e, 2, 0)), (1, spread(e, 2, 1)), (P2, [p2i] if HPRE <= 6 else []), (P2C, [p2c] if HPRE <= 6 else []), (PUB, [lambda: publish(2)]),
              (P3, [p3i]), (P3 + 3, [p3c])):
        extra0.setdefault(k, []).extend(v)
    hgate = {st: P2C for st in range(6, 12)}; hgate.update({st: P3 + 3 for st in range(12, 18)})
    k2_main(a, S, plan, "ffn", dma2, rd2, hload_ops, [HPRE], frbuf, extra0, hgate)

    a.label("K1_ssm")
    NU = 5
    SACC = 32; SFR = 8
    BSZ = 576 * 1152
    S = S0_.fork(); S.slow = []; S.pslow = []; S.aslow = []
    a(f"""
    s_cmp_lt_u32 s16, 4
    s_cselect_b32 s22, s28, s30
    s_cselect_b32 s23, s29, s31
    """)
    srd(a, 8, 22, BSZ)
    a(f"""
    s_load_dwordx4 s[28:31], s[0:1], 40
    s_lshl_b32 s40, s3, 2
    s_add_u32 s56, s56, s40
    s_add_u32 s56, s56, 96
    s_mul_i32 s39, s3, 5
    s_min_u32 s39, s39, 31                   ; ustart
    s_and_b32 s40, s16, 3
    s_lshl_b32 s41, s40, 3
    s_lshl_b32 s38, s39, 4
    s_add_u32 s41, s41, s38
    v_lshrrev_b32 v8, 3, v0
    v_add_u32 v8, s41, v8
    v_mul_u32_u24 v8, 1152, v8
    s_and_b32 s41, s16, 1
    s_lshl_b32 s41, s41, 2
    v_lshrrev_b32 v9, 4, v0
    v_add_u32 v9, s41, v9
    v_and_b32 v10, 7, v0
    v_xor_b32 v9, v9, v10
    v_and_b32 v10, 15, v0
    v_lshrrev_b32 v11, 1, v10
    v_lshrrev_b32 v12, 4, v0
    v_xor_b32 v11, v11, v12
    v_lshlrev_b32 v11, 4, v11
    v_lshl_add_u32 v{VA}, v10, 7, v11
    v_add_u32 v{VA}, {LB}, v{VA}
    v_xor_b32 v{VA+1}, 64, v{VA}
    v_add_u32 v{VA+2}, 49152, v{VA}
    v_add_u32 v{VA+3}, 49152, v{VA+1}
    v_add_u32 v{VA+4}, 98304, v{VA}
    v_add_u32 v{VA+5}, 98304, v{VA+1}
    v_lshl_add_u32 v255, v9, 4, v8
    s_lshr_b32 s41, s16, 2
    s_mul_i32 s41, s41, 12288
    s_lshl_b32 s43, s40, 10
    s_add_u32 s43, s43, s41
    s_add_u32 s43, s43, {LB}
    """)
    def sdma_ops(st):
        slot = st % 6
        ops = []
        for t in range(3):
            def f(t=t):
                a(f"s_add_u32 m0, s43, {slot*24576 + t*4096}")
                a(f"s_mov_b32 s41, {st*128 + t*36864}")
                S.vmi(("D", st), f"buffer_load_dwordx4 v255, s[8:11], s41 offen lds")
            ops.append(f)
        return ops
    for st in range(NDE):
        for f in sdma_ops(st): f()
    CR = 16
    a(f"""
    s_load_dwordx4 s[60:63], s[0:1], 8
    s_load_dwordx2 s[44:45], s[0:1], 56      ; log_dt
    s_and_b32 s40, s16, 1
    s_lshl_b32 s40, s40, 6
    v_add_u32 v{CR}, s40, v0
    v_min_u32 v{CR}, 79, v{CR}
    v_add_u32 v{CR+1}, s38, v{CR}
    v_lshlrev_b32 v{CR+1}, 1, v{CR+1}
    s_cmp_ge_u32 s17, 3
    s_cselect_b32 s40, 1, 0
    s_lshl_b32 s98, s3, 1
    s_add_u32 s98, s98, s40
    s_mul_i32 s40, s40, 3
    s_sub_u32 s99, s17, s40
    s_mov_b32 s97, 4
    s_mul_i32 s40, s98, 3
    s_add_u32 s40, s40, s99
    s_lshl_b32 s40, s40, 8
    s_add_u32 s40, s40, {WS_FLAG + 16}
    s_cmp_lt_u32 s17, 6
    s_cselect_b32 s40, s40, {OOB}
    s_mul_i32 s57, s3, 5
    s_add_u32 s41, s57, s16
    s_lshl_b32 s41, s41, 11
    s_lshl_b32 s47, s17, 8
    s_add_u32 s41, s41, s47
    s_add_u32 s41, s41, {WS_E}
    s_cmp_lt_u32 s16, 5
    s_cselect_b32 s41, s41, {OOB}
    v_lshrrev_b32 v{CR+2}, 2, v1
    s_waitcnt lgkmcnt(0)
    """)
    S.vmi("z", f"buffer_store_dword v{LNR+46}, v{CR+2}, s[4:7], s41 offen sc1")
    a("s_mov_b64 exec, 1")
    zero_word(a, S, 56); zero_word(a, S, 40)
    a("s_mov_b64 exec, -1")
    for k, ptr in enumerate((60, 62, 44)):
        srd(a, 12, ptr, 1152)
        S.vmi("lam", f"buffer_load_ushort v{CR+3+k}, v{CR+1}, s[12:15], 0 offen")
    ln_compute(a, S)
    for st in range(NDE, 2):
        for f in sdma_ops(st): f()
    def between_s():
        sk = a.newlabel("CTs")
        a(f"s_cmp_lt_u32 s16, 2\ns_cbranch_scc1 {sk}")
        const_table(a, CR)
        a.label(sk)
        for st in range(2, NDS):
            for f in sdma_ops(st): f()
        S.vmw({("D", 0)})
    ln_handshake(a, S, "s", between_s)
    for st in range(2):
        for f in xload_ops(S, st): f()
    if SPF:
        a(f"""
        s_cmp_lt_u32 s16, 4
        s_cselect_b32 s22, s52, s54
        s_cselect_b32 s23, s53, s55
        """)
        srd(a, 12, 22, 576 * 9216)
        a(f"""
        v_mul_u32_u24 v8, 86, v0
        v_lshrrev_b32 v8, 8, v8
        v_mul_u32_u24 v9, 3, v8
        v_sub_u32 v9, v0, v9
        v_min_u32 v8, 17, v8
        v_mul_u32_u24 v8, 9216, v8
        v_mul_u32_u24 v9, 384, v9
        v_add_u32 v8, v8, v9
        s_lshl_b32 s40, s17, 2
        s_and_b32 s41, s16, 3
        s_add_u32 s40, s40, s41
        s_mul_i32 s40, s40, {18*9216}
        s_mul_i32 s41, s3, 1152
        s_add_u32 s40, s40, s41
        s_mov_b32 m0, {JUNK}
        s_nop 0
        """)
        S.vmi("P", "buffer_load_dword v8, s[12:15], s40 offen offset:128 lds")
        if SPF == 2: S.vmi("P", "buffer_load_dword v8, s[12:15], s40 offen offset:256 lds")
    NB = 2 * NU
    def srd_(gblk, s):
        if gblk >= 9 * NB: return
        st, blk = divmod(gblk, NB)
        u, comp = divmod(blk, 2)
        slot = st % 6
        buf = SFR + (gblk % 3) * 8 + s * 4
        reg = VA + (slot // 2) * 2 + s
        off = (slot % 2) * 24576 + comp * 12288 + u * 2048
        S.lgi(("F", gblk), f"ds_read_b128 v[{buf}:{buf+3}], v{reg} offset:{off}")
    def sacc(u, comp, j): return SACC + ((u * 2 + comp) * 2 + j) * 4
    stamp(a, 2)
    for g in range(2):
        for s in range(2): srd_(g, s)
    CN = XR
    bar = {0: [1, 2], 2: [3, 4, 5], 5: [6, 7, 8]}
    issue = {0: [("X", 2)] + [("D", t) for t in range(NDS, 4)], 1: [("X", 3)] + [("D", t) for t in range(max(NDS, 4), 6)], 2: [("X", 4)], 3: [("X", 5), ("D", 6), ("D", 7)],
             4: [("X", 6), ("D", 8)], 5: [("X", 7)], 6: [("X", 8)]}
    for st in range(9):
        side = []
        for kind, t in issue.get(st, []):
            side += xload_ops(S, t) if kind == "X" else sdma_ops(t)
        for blk in range(NB):
            g = st * NB + blk
            if blk == 0: S.vmw({("X", st)})
            if blk == NB - 2 and st in bar:
                S.vmw({("D", t) for t in bar[st]})
                if st == 2: S.lg0()
                a("s_barrier")
            S.lgw({("F", g)})
            buf = SFR + (g % 3) * 8
            u, comp = divmod(blk, 2)
            k = 0
            for j in range(2):
                for s in range(2):
                    c = sacc(u, comp, j)
                    src2 = "0" if (st == 0 and s == 0) else f"v[{c}:{c+3}]"
                    x = xreg(j, 2 * st + s)
                    a(f"{MFMA} v[{c}:{c+3}], v[{x}:{x+3}], v[{buf+4*s}:{buf+4*s+3}], {src2}")
                    if k % 2 == 0: srd_(g + 2, k // 2)
                    if k == 1 and blk < 6:
                        for o in spread(side, 6, blk): o()
                    k += 1
            if blk == 7 and st == 6:
                a(f"""
                v_and_b32 v{CN+44}, 15, v0
                v_lshlrev_b32 v{CN+44}, 6, v{CN+44}
                v_add_u32 v{CN+44}, {CT}, v{CN+44}
                v_lshrrev_b32 v{CN+45}, 4, v0
                v_lshl_add_u32 v{CN+45}, v{CN+45}, 3, v{CN+44}
                s_min_u32 s46, s16, 4
                s_lshl_b32 s41, s46, 10
                v_add_u32 v{CN+46}, s41, v{CN+44}
                """)
                for u2 in range(NU):
                    b = CN + 8 * u2
                    S.lgi("C", f"ds_read_b128 v[{b}:{b+3}], v{CN+44} offset:{u2*1024}")
                    S.lgi("C", f"ds_read_b64 v[{b+4}:{b+5}], v{CN+44} offset:{u2*1024+40}")
                    S.lgi("C", f"ds_read_b64 v[{b+6}:{b+7}], v{CN+45} offset:{u2*1024+32}")
                S.lgi("C", f"ds_read_b128 v[{CN+40}:{CN+43}], v{CN+46} offset:16")
                srd(a, 8, 28, BSZ); srd(a, 12, 30, BSZ)
                a(f"""
                s_mul_i32 s40, s19, {81*128}
                v_min_u32 v{CN+47}, 40, v0
                v_lshlrev_b32 v{CN+47}, 7, v{CN+47}
                s_add_u32 s41, s40, {40*128}
                s_mov_b32 m0, {JUNK}
                """)
                asi, asc = allset_ops(S, a, CN + 48, CN + 49)
                asi()
                for c in range(2):
                    for t in range(2):
                        S.vmi("P", f"buffer_load_dword v{CN+47}, s[{8+4*c}:{11+4*c}], s{40+t} offen lds")
    S.lg0()
    asc()
    S_k1 = S
    gen3.HST = HST
    ssm_post4(a, NU, SACC, CN, sacc, 39)
    a("s_waitcnt vmcnt(0)")
    S = Stream(a); S.sb_setup(VE, VR, VFA, 46); S.pslow = []; S.aslow = S_k1.aslow
    flag_store(S, a, 3)
    stamp(a, 7)
    a(f"""
    s_cmp_ge_u32 s17, 6
    s_cbranch_scc1 K1_done
    """)
    k2_scalars(a)
    k2_vregs(a, 8)
    plan_s = K2Plan([18, 17, 16, 15, 14, 13, 10], {s: -1 for s in range(NP)}, [(-2, -1, 3), (0, 2, 6)])
    a(f"""
    s_mul_i32 s40, s99, 192
    s_lshl_b32 s41, s16, 3
    s_add_u32 s40, s40, s41
    v_lshrrev_b32 v{VD}, 3, v0
    v_add_u32 v{VD}, s40, v{VD}
    v_mul_u32_u24 v{VD}, 1152, v{VD}
    s_and_b32 s41, s16, 1
    s_lshl_b32 s41, s41, 2
    v_lshrrev_b32 v{VT}, 4, v0
    v_add_u32 v{VT}, s41, v{VT}
    v_and_b32 v{VPF}, 7, v0
    v_xor_b32 v{VT}, v{VT}, v{VPF}
    v_lshl_add_u32 v{VD}, v{VT}, 4, v{VD}
    """)
    def dma_s(S, i):
        st, pn = plan_s.pieces[i]
        comp = st & 1
        a(f"s_add_u32 m0, s35, {plan_s.slot[i]*8192}")
        a(f"s_mov_b32 s41, {(st>>1)*128 + pn*64*1152}")
        S.vmi(("W", i), f"buffer_load_dwordx4 v{VD}, s[{8+4*comp}:{11+4*comp}], s41 offen lds")
    def rd_s(S, f, k):
        if k or f >= 4 * plan_s.NPC: return
        i, b = divmod(f, 4); sl = plan_s.slot[i]
        buf = frbuf(f)
        S.lgi(("F2", f), f"ds_read_b128 v[{buf}:{buf+3}], v{VA + sl//7} offset:{(sl%7)*8192 + b*2048}")
    def hload_s(S, st):
        ops = []
        for j in range(2):
            def f(j=j):
                r = hreg(st, j)
                a(f"s_add_u32 s36, s{30+j}, {st*2048}")
                S.vmi(("H", st), f"buffer_load_dwordx4 v[{r}:{r+3}], v1, s[4:7], s36 offen sc1")
            ops.append(f)
        return ops
    for i in range(7): dma_s(S, i)
    pi, pc = poll_ops(S, a, 3, 248)
    pi()
    a(f"""
    v_and_b32 v{VPF}, 15, v0
    v_lshrrev_b32 v{VT}, 1, v{VPF}
    v_lshrrev_b32 v{VA+1}, 4, v0
    s_lshl_b32 s40, s42, 2
    v_add_u32 v{VA+1}, s40, v{VA+1}
    v_xor_b32 v{VT}, v{VT}, v{VA+1}
    v_lshlrev_b32 v{VT}, 4, v{VT}
    v_lshl_add_u32 v{VA}, v{VPF}, 7, v{VT}
    v_add_u32 v{VA}, {LB}, v{VA}
    v_add_u32 v{VA+1}, 57344, v{VA}
    v_add_u32 v{VA+2}, 114688, v{VA}
    """)
    S.sb_init(16)
    pc()
    for st in range(3):
        for f in hload_s(S, st): f()
    S.lg0(); a("s_barrier")
    for f in range(DF): rd_s(S, f, 0)
    k2_main(a, S, plan_s, "ssm", dma_s, rd_s, hload_s, [3], frbuf, {}, {})

    a.label("K2_fin")
    stamp(a, 11)
    B0 = SP; B1 = SP + 8; L0 = 48
    a(f"""
    s_load_dwordx2 s[52:53], s[0:1], 104     ; out
    s_load_dwordx2 s[28:29], s[0:1], 0       ; x
    s_load_dwordx2 s[30:31], s[0:1], 64      ; Dskip
    s_lshl_b32 s41, s97, 2
    s_add_u32 s40, s48, s41
    v_mov_b32 v3, 1
    v_min_u32 v4, 4, v0
    v_lshlrev_b32 v4, 2, v4
    v_lshrrev_b32 v7, 1, v{VO}               ; x voffset
    v_lshrrev_b32 v8, 4, v0
    v_lshlrev_b32 v9, 3, v8
    v_lshrrev_b32 v11, 1, v8
    v_lshlrev_b32 v11, 8, v11
    v_and_b32 v12, 15, v0
    v_lshl_add_u32 v11, v12, 4, v11
    v_and_b32 v12, 1, v8
    v_lshl_add_u32 v11, v12, 3, v11
    s_mul_i32 s32, s99, 6
    s_lshl_b32 s33, s42, 1
    s_add_u32 s34, s32, s33
    s_lshr_b32 s33, s49, 1
    s_add_u32 s34, s34, s33
    s_add_u32 s35, s32, s42
    s_add_u32 s35, s35, 4
    s_lshl_b32 s32, s98, 2
    s_and_b32 s33, s16, 3
    s_add_u32 s32, s32, s33
    s_mul_i32 s32, s32, 36
    s_and_b32 s33, s49, 1
    s_mul_i32 s33, s33, 18
    s_add_u32 s36, s32, s33
    s_add_u32 s36, s36, s34
    s_lshl_b32 s36, s36, 10
    s_cmp_eq_u32 s49, 0
    s_cselect_b32 s33, 18, 0
    s_add_u32 s37, s32, s33
    s_add_u32 s37, s37, s35
    s_lshl_b32 s37, s37, 10
    s_lshl_b32 s34, s34, 6
    s_lshl_b32 s35, s35, 6
    s_lshr_b32 s38, s60, 1
    s_lshr_b32 s39, s61, 1
    s_mov_b32 s47, 0
    s_waitcnt lgkmcnt(0)
    """)
    srd(a, 8, 52, 2048 * 2304)
    srd(a, 12, 28, 2048 * 1152)
    srd(a, 20, 30, 1152)
    a("s_waitcnt vmcnt(0)\ns_barrier")
    stamp(a, 12)
    BL = 208
    def base_ld():
        for x in range(2):
            for n in range(2):
                r = BL + 12 * x + 6 * n
                a(f"buffer_load_dwordx2 v[{r}:{r+1}], v7, s[12:15], s{38+x} offen offset:{32*n}")
                a(f"buffer_load_dwordx2 v[{r+2}:{r+3}], v11, s[4:7], s{36+x} offen offset:{512*n} sc1")
                a(f"buffer_load_dwordx2 v[{r+4}:{r+5}], v9, s[20:23], s{34+x} offen offset:{32*n}")
    a(f"""
    s_cmp_lg_u32 s16, 0
    s_cbranch_scc1 K2_go
    s_mov_b64 exec, 1
    buffer_store_dword v3, v1, s[4:7], s40 offen sc1
    s_mov_b64 exec, -1
    """)
    a.label("K2_poll")
    a(f"""
    buffer_load_dword v5, v4, s[4:7], s48 offen sc1
    s_waitcnt vmcnt(0)
    v_cmp_ne_u32 vcc, 1, v5
    s_cbranch_vccz K2_go
    s_sleep {POLLSLEEP}
    s_add_u32 s47, s47, 1
    s_cmp_lt_u32 s47, 0x40000
    s_cbranch_scc1 K2_poll
    """)
    a.label("K2_go")
    base_ld()
    a("s_barrier")
    stamp(a, 13)
    a("s_mov_b32 s45, s97")
    for k in range(4):
        a(f"""
        s_add_u32 s45, s45, 1
        s_cmp_eq_u32 s45, 5
        s_cselect_b32 s45, 0, s45
        s_mul_i32 s46, s45, {48*48*1024}
        s_add_u32 s47, s46, s62
        s_add_u32 s46, s46, s63
        """)
        for x in range(2):
            r = L0 + (k * 2 + x) * 4
            a(f"buffer_load_dwordx4 v[{r}:{r+3}], v1, s[4:7], s{47-x} offen sc1")
    a("v_mov_b32 v3, 0xffff0000")
    a("s_waitcnt vmcnt(8)")
    for x in range(2):
        for n in range(2):
            r = BL + 12 * x + 6 * n
            for k in range(2):
                d = SP + 8 * x + 4 * n + 2 * k
                a(f"""
                v_lshlrev_b32 v5, 16, v{r+k}
                v_and_b32 v6, v3, v{r+k}
                v_add_f32 v{d}, v{d}, v5
                v_add_f32 v{d+1}, v{d+1}, v6
                v_lshlrev_b32 v5, 16, v{r+2+k}
                v_and_b32 v6, v3, v{r+2+k}
                v_lshlrev_b32 v12, 16, v{r+4+k}
                v_and_b32 v13, v3, v{r+4+k}
                v_fmac_f32 v{d}, v5, v12
                v_fmac_f32 v{d+1}, v6, v13
                """)
    for sp in range(4):
        for x, b in ((0, B0), (1, B1)):
            r = L0 + (sp * 2 + x) * 4
            a(f"s_waitcnt vmcnt({7 - (sp*2+x)})")
            for k in range(4):
                a(f"v_lshlrev_b32 v5, 16, v{r+k}")
                a(f"v_and_b32 v6, v3, v{r+k}")
                a(f"v_add_f32 v{b+2*k}, v{b+2*k}, v5")
                a(f"v_add_f32 v{b+2*k+1}, v{b+2*k+1}, v6")
    for x, b in ((0, B0), (1, B1)):
        a(f"buffer_store_dwordx4 v[{b}:{b+3}], v{VO}, s[8:11], s{60+x} offen {OST}")
        a(f"buffer_store_dwordx4 v[{b+4}:{b+7}], v{VO}, s[8:11], s{60+x} offen offset:64 {OST}")
    a.label("K1_done")
    if STAMP: a("s_waitcnt vmcnt(0)")
    stamp(a, 14)
    if DBGT:
        a(f"s_waitcnt lgkmcnt(0)\ns_cmp_lg_u32 s2, {DBGT}\ns_cbranch_scc1 K1_end\ns_cmp_lg_u32 s16, 2\ns_cbranch_scc1 K1_end")
        for i in range(1, 15):
            a(f"s_sub_u32 s40, s{ST0+2*i}, s{ST0}\nv_mov_b32 v2, s40\ns_mov_b64 exec, 1\nbuffer_store_dword v2, v1, s[24:27], 0 offen offset:{4*(i+1)}\ns_mov_b64 exec, -1\ns_nop 1")
    else:
        stamp_out(a, 1, 16)
    a.label("K1_end")
    a("s_endpgm")
    a.label("CODE_END")
    return (KNAME, 256, 512, JUNK + 1024, a.text(), 256, 102, 256)

def ssm_post4(a, NU, ACC, CN, sacc, SU):
    b = Asm()
    gen3.ssm_post(b, NU, ACC, CN, sacc, SU)
    t = b.text().replace("    s_waitcnt vmcnt(0)\n    s_nop 7\n", "    s_nop 7\n", 1)
    assert "    s_add_u32 s40, s39, s16\n" in t
    t = t.replace("    s_add_u32 s40, s39, s16\n", "    s_add_u32 s40, s57, s16\n", 1)
    a.lines += t.rstrip("\n").split("\n")

if __name__ == "__main__":
    out = sys.argv[1] if len(sys.argv) > 1 else "out.s"
    k = gen_main()
    t = build_file([k]).replace(f"@launch kernel={KNAME} ", "@launch ", 1)
    open(out, "w").write(t)
```

```python
import sys
from asmlib import *

WS_X = 0
WS_H = 128 * 18 * 1024
WS_BASE = WS_H + 128 * 180 * 1024
WS_CONST = WS_BASE + 2048 * 576 * 4
WS_E = WS_CONST + 576 * 64
WS_PART = WS_E + 40 * 8 * 256
WS_SIZE = 0x10000000
import os
H_STORE_FLAGS = os.environ.get("HST", "sc1")

def vr(b, n=1):
    return f"v{b}" if n == 1 else f"v[{b}:{b+n-1}]"
def sr(b, n=1):
    return f"s{b}" if n == 1 else f"s[{b}:{b+n-1}]"

def srd(a, d, ptr, size):
    a(f"s_mov_b32 s{d}, s{ptr}\ns_mov_b32 s{d+1}, s{ptr+1}\ns_mov_b32 s{d+2}, {size}\ns_mov_b32 s{d+3}, 0x20000")

MFMA = "v_mfma_f32_16x16x32_bf16"
import os
def P(name, default):
    return int(os.environ.get(name, str(default)))
LD = P("LD", 4)
LX = P("LX", 2)
PD0 = P("PD0", 2)
LH = P("LH", 3)
LW = P("LW", 3)
CODEPF = P("CODEPF", 1)
W2PF = P("W2PF", 1)
POLLSLEEP = P("POLLSLEEP", 2)
W2G = P("W2G", 1)
PRIO = P("PRIO", 1)
PFALL = P("PFALL", 0)
WS_FLAG = WS_PART + 5 * 48 * 48 * 1024

class VM:
    def __init__(self):
        self.ops = []
        self.sites = {}
    def op(self, tag, n=1):
        self.ops += [tag] * n
    def need(self, tags):
        idx = [i for i, t in enumerate(self.ops) if t in tags]
        if not idx: return 63
        return min(63, len(self.ops) - 1 - max(idx))
class Null:
    def __call__(self, s): pass
    def label(self, n): pass
    def newlabel(self, p="L"): return "X"
STAMP = int(os.environ.get("STAMP", "0"))
WS_DBG = 0x4000000
ST0 = 64
PAD = dict((int(x.split(":")[0]), int(x.split(":")[1])) for x in os.environ.get("PAD", "").split(",") if x)
def stamp(a, i):
    if PAD and i == 0: a("s_memrealtime s[92:93]")
    if i in PAD:
        lab = a.newlabel("PAD")
        a.label(lab)
        a(f"s_sleep 1\ns_memrealtime s[94:95]\ns_waitcnt lgkmcnt(0)\ns_sub_u32 s94, s94, s92\ns_cmp_lt_u32 s94, {PAD[i]}\ns_cbranch_scc1 {lab}")
    if STAMP: a(f"{'s_memtime' if STAMP == 2 else 's_memrealtime'} s[{ST0+2*i}:{ST0+2*i+1}]")
def stamp_init(a):
    if STAMP:
        for i in range(32): a(f"s_mov_b32 s{ST0+i}, 0")
def stamp_dyn(a, base, sreg, n):
    if STAMP:
        for k in range(n):
            lab = a.newlabel("ST")
            a(f"s_cmp_lg_u32 s{sreg}, {k}\ns_cbranch_scc1 {lab}")
            stamp(a, base + k)
            a(f"s_memtime s[{ST0+2*(base+k+8)}:{ST0+2*(base+k+8)+1}]")
            a.label(lab)
def stamp_out(a, kidx, wave_sreg, srd_base=4):
    if STAMP:
        a("s_waitcnt lgkmcnt(0)")
        a("s_mov_b64 exec, -1")
        for i in range(16): a(f"v_mov_b32 v{i}, s{ST0+2*i}")
        a(f"s_lshl_b32 s96, s2, 3\ns_add_u32 s96, s96, s{wave_sreg}\ns_lshl_b32 s96, s96, 6\ns_add_u32 s96, s96, {WS_DBG + kidx*0x100000}")
        a("v_mov_b32 v16, 0\ns_mov_b64 exec, 1")
        for i in range(4): a(f"buffer_store_dwordx4 v[{4*i}:{4*i+3}], v16, s[{srd_base}:{srd_base+3}], s96 offen offset:{16*i}")

def gen_k0():
    a = Asm()
    a("""
    s_load_dwordx2 s[4:5], s[0:1], 0
    s_load_dwordx2 s[6:7], s[0:1], 64
    s_load_dwordx2 s[8:9], s[0:1], 120
    s_load_dwordx4 s[40:43], s[0:1], 80
    s_load_dwordx4 s[44:47], s[0:1], 24
    s_cmp_ge_u32 s2, 256
    s_cbranch_scc1 K0_const
    """)
    a("""
    v_and_b32 v1, 31, v0                 ; c
    v_lshrrev_b32 v2, 5, v0              ; 2w+hw
    s_and_b32 s3, s2, 1
    s_lshl_b32 s3, s3, 3
    v_add_u32 v2, s3, v2
    s_lshr_b32 s20, s2, 1                ; mb
    s_lshr_b32 s21, s20, 1
    s_lshl_b32 s21, s21, 5               ; 32*(mb>>1)
    s_and_b32 s22, s20, 1
    s_lshl_b32 s22, s22, 2
    s_add_u32 s21, s21, s22              ; + 4*(mb&1)
    v_lshrrev_b32 v3, 2, v2
    v_lshlrev_b32 v3, 3, v3
    v_and_b32 v4, 3, v2
    v_add3_u32 v3, v3, v4, s21           ; t
    v_mul_u32_u24 v4, 1152, v3
    v_lshlrev_b32 v5, 4, v1              ; c*16
    v_add_u32 v4, v4, v5                 ; x offset
    v_cmp_gt_u32 vcc, 24, v1
    v_mov_b32 v6, 0x7ffffff0
    s_nop 1
    v_cndmask_b32 v4, v6, v4, vcc
    v_cndmask_b32 v5, v6, v5, vcc
    s_waitcnt lgkmcnt(0)
    """)
    srd(a, 12, 4, 2048 * 1152)
    srd(a, 16, 6, 1152)
    srd(a, 24, 8, WS_SIZE)
    for k in range(3):
        a(f"buffer_load_dwordx4 v[{16+4*k}:{19+4*k}], v4, s[12:15], 0 offen offset:{384*k}")
    for k in range(3):
        a(f"buffer_load_dwordx4 v[{28+4*k}:{31+4*k}], v5, s[16:19], 0 offen offset:{384*k}")
    npf = 3 if PFALL else 1
    a(f"""
    v_readfirstlane_b32 s30, v0
    v_and_b32 v11, 63, v0
    s_and_b32 s31, s2, 7
    s_lshr_b32 s32, s2, 3
    s_lshr_b32 s30, s30, 6
    s_cmp_eq_u32 s30, 1
    s_cselect_b32 s36, s42, s40
    s_cselect_b32 s37, s43, s41
    s_cmp_eq_u32 s30, 2
    s_cselect_b32 s36, s44, s36
    s_cselect_b32 s37, s45, s37
    s_cmp_eq_u32 s30, 3
    s_cselect_b32 s36, s46, s36
    s_cselect_b32 s37, s47, s37
    s_cmp_lt_u32 s30, 2
    s_mov_b32 s38, {576*1152}
    s_cselect_b32 s38, {576*9216}, s38
    s_mov_b32 s39, 0x20000
    s_cbranch_scc0 K0_pfb
    ; row = 18a + lane/3 ; line = 9j + 3*(lane%3) (+k)
    v_mul_u32_u24 v12, 86, v11
    v_lshrrev_b32 v12, 8, v12
    v_mul_u32_u24 v13, 3, v12
    v_sub_u32 v13, v11, v13
    v_mul_u32_u24 v12, 9216, v12
    v_mul_u32_u24 v13, 384, v13
    v_add_u32 v12, v12, v13
    s_mul_i32 s33, s32, {18*9216}
    s_mul_i32 s34, s31, 1152
    s_add_u32 s33, s33, s34
    v_cmp_gt_u32 s[34:35], 54, v11
    s_branch K0_pfgo
    """)
    a.label("K0_pfb")
    a(f"""
    s_mul_i32 s33, s31, 5
    s_min_u32 s33, s33, 31
    s_lshl_b32 s33, s33, 4
    s_mul_i32 s34, s32, 3
    s_add_u32 s33, s33, s34
    s_mul_i32 s33, s33, 1152
    v_lshlrev_b32 v12, 7, v11
    v_cmp_gt_u32 s[34:35], 27, v11
    """)
    a.label("K0_pfgo")
    a("s_nop 1\nv_cndmask_b32 v12, v6, v12, s[34:35]")
    for k in range(npf):
        a(f"buffer_load_dword v{13+k}, v12, s[36:39], s33 offen offset:{128*k}")
    if CODEPF:
        a(f"""
        s_getpc_b64 s[48:49]
        K0_pc:
        s_add_u32 s48, s48, k1_kernel-K0_pc
        s_addc_u32 s49, s49, 0
        s_mov_b32 s50, CODE_END-k1_kernel
        s_mov_b32 s51, 0x20000
        s_lshl_b32 s33, s32, 2
        s_add_u32 s33, s33, s30
        s_lshl_b32 s33, s33, 9
        v_and_b32 v12, 3, v11
        v_lshlrev_b32 v12, 7, v12
        buffer_load_dword v77, v12, s[48:51], s33 offen
        """)
        npf += 1
    a(f"""
    v_lshrrev_b32 v7, 2, v1
    v_lshlrev_b32 v7, 10, v7
    v_and_b32 v8, 3, v1
    v_lshlrev_b32 v8, 8, v8
    v_lshlrev_b32 v9, 4, v2
    v_add3_u32 v7, v7, v8, v9
    v_cndmask_b32 v7, v6, v7, vcc
    s_mul_i32 s23, s20, {18*1024}
    v_mul_u32_u24 v8, 2304, v3
    v_lshlrev_b32 v9, 5, v1
    v_add_u32 v8, v8, v9
    v_cndmask_b32 v8, v6, v8, vcc
    v_mov_b32 v10, 0xffff0000
    s_waitcnt vmcnt({3+npf})
    """)
    X = 40
    for k in range(12):
        a(f"v_lshlrev_b32 v{X+2*k}, 16, v{16+k}")
        a(f"v_and_b32 v{X+2*k+1}, v10, v{16+k}")
    def reduce32(r, t):
        a(f"""
        s_nop 1
        v_add_f32_dpp v{t}, v{r}, v{r} quad_perm:[1,0,3,2] row_mask:0xf bank_mask:0xf
        s_nop 1
        v_add_f32_dpp v{r}, v{t}, v{t} quad_perm:[2,3,0,1] row_mask:0xf bank_mask:0xf
        s_nop 1
        v_add_f32_dpp v{t}, v{r}, v{r} row_half_mirror row_mask:0xf bank_mask:0xf
        s_nop 1
        v_add_f32_dpp v{r}, v{t}, v{t} row_mirror row_mask:0xf bank_mask:0xf
        s_nop 0
        v_mov_b32 v{t}, v{r}
        s_nop 1
        v_permlane16_swap_b32 v{r}, v{t}
        s_nop 1
        v_add_f32 v{r}, v{r}, v{t}
        """)
    for c in range(4):
        a(f"v_add_f32 v{64+c}, v{X+c}, v{X+4+c}")
    for k in range(2, 6):
        for c in range(4):
            a(f"v_add_f32 v{64+c}, v{64+c}, v{X+4*k+c}")
    a("v_add_f32 v64, v64, v65\nv_add_f32 v66, v66, v67\nv_add_f32 v64, v64, v66")
    reduce32(64, 65)
    a(f"v_mul_f32 v64, {1.0/576!r}, v64".replace(repr(1.0/576), "0x3ae38e39"))
    for c in range(4):
        a(f"v_sub_f32 v{72+c}, v{X+c}, v64")
        a(f"v_mul_f32 v{68+c}, v{72+c}, v{72+c}")
    for k in range(1, 6):
        for c in range(4):
            a(f"v_sub_f32 v{72+c}, v{X+4*k+c}, v64")
            a(f"v_fmac_f32 v{68+c}, v{72+c}, v{72+c}")
    a("v_add_f32 v68, v68, v69\nv_add_f32 v70, v70, v71\nv_add_f32 v68, v68, v70")
    a("v_cndmask_b32 v68, 0, v68, vcc")
    reduce32(68, 69)
    a("""
    v_mul_f32 v68, 0x3ae38e39, v68       ; var
    v_cvt_pk_bf16_f32 v66, v64, v68
    v_lshlrev_b32 v64, 16, v66
    v_and_b32 v68, v10, v66
    v_add_f32 v68, 0x3727c5ac, v68       ; + 1e-5
    v_cvt_pk_bf16_f32 v68, v68, v68
    v_and_b32 v68, v10, v68
    v_sqrt_f32 v68, v68
    s_nop 0
    v_cvt_pk_bf16_f32 v68, v68, v68
    v_and_b32 v68, v10, v68
    v_rcp_f32 v68, v68
    """)
    a(f"s_waitcnt vmcnt({npf})")
    for k in range(12):
        x0, x1 = X + 2 * k, X + 2 * k + 1
        a(f"""
        v_sub_f32 v72, v{x0}, v64
        v_sub_f32 v73, v{x1}, v64
        v_cvt_pk_bf16_f32 v74, v72, v73
        v_lshlrev_b32 v72, 16, v74
        v_and_b32 v73, v10, v74
        v_mul_f32 v72, v72, v68
        v_mul_f32 v73, v73, v68
        v_cvt_pk_bf16_f32 v{16+k}, v72, v73
        v_lshlrev_b32 v75, 16, v{28+k}
        v_and_b32 v76, v10, v{28+k}
        v_lshlrev_b32 v72, 16, v{16+k}
        v_and_b32 v73, v10, v{16+k}
        v_fmac_f32 v{x0}, v72, v75
        v_fmac_f32 v{x1}, v73, v76
        """)
        if k % 4 == 3:
            kk = k // 4
            a(f"s_add_u32 s28, s23, {WS_X + kk*6*1024}")
            a(f"buffer_store_dwordx4 v[{16+4*kk}:{19+4*kk}], v7, s[24:27], s28 offen")
            a(f"s_mov_b32 s29, {WS_BASE}")
            a(f"buffer_store_dwordx4 v[{X+8*kk}:{X+8*kk+3}], v8, s[24:27], s29 offen offset:{768*kk}")
            a(f"buffer_store_dwordx4 v[{X+8*kk+4}:{X+8*kk+7}], v8, s[24:27], s29 offen offset:{768*kk+16}")
    a("s_endpgm")
    a.label("K0_const")
    a("""
    s_cmp_ge_u32 s2, 265
    s_cbranch_scc1 K0_end
    s_load_dwordx4 s[12:15], s[0:1], 8
    s_load_dwordx2 s[16:17], s[0:1], 56    ; log_dt
    s_sub_u32 s3, s2, 256
    s_waitcnt lgkmcnt(0)
    """)
    srd(a, 24, 8, WS_SIZE)
    a(f"""
    s_lshl_b32 s20, s3, 13
    s_add_u32 s20, s20, {WS_E}
    v_lshlrev_b32 v1, 5, v0
    v_mov_b32 v4, 0
    v_mov_b32 v5, 0
    v_mov_b32 v6, 0
    v_mov_b32 v7, 0
    buffer_store_dwordx4 v[4:7], v1, s[24:27], s20 offen
    buffer_store_dwordx4 v[4:7], v1, s[24:27], s20 offen offset:16
    s_lshl_b32 s20, s3, 12
    s_add_u32 s20, s20, {WS_FLAG}
    v_lshlrev_b32 v2, 4, v0
    buffer_store_dwordx4 v[4:7], v2, s[24:27], s20 offen
    v_readfirstlane_b32 s21, v0
    s_nop 3
    s_cmp_ge_u32 s21, 64
    s_cbranch_scc1 K0_end
    """)
    srd(a, 28, 12, 1152)
    srd(a, 32, 14, 1152)
    srd(a, 36, 16, 1152)
    a("""
    s_lshl_b32 s20, s3, 6
    v_add_u32 v1, s20, v0                ; p
    v_lshlrev_b32 v2, 1, v1
    buffer_load_ushort v3, v2, s[28:31], 0 offen
    buffer_load_ushort v4, v2, s[32:35], 0 offen
    buffer_load_ushort v5, v2, s[36:39], 0 offen
    s_waitcnt vmcnt(0)
    v_lshlrev_b32 v3, 16, v3             ; lre
    v_lshlrev_b32 v4, 16, v4             ; lim
    v_lshlrev_b32 v5, 16, v5
    v_mul_f32 v5, 0x3fb8aa3b, v5
    v_exp_f32 v5, v5
    s_nop 0
    v_cvt_pk_bf16_f32 v5, v5, v5
    v_and_b32 v5, 0xffff0000, v5         ; dt (bf16)
    v_mul_f32 v6, v5, v3                 ; a
    v_mul_f32 v7, v5, v4                 ; b
    v_mul_f32 v6, 0x3fb8aa3b, v6
    v_exp_f32 v6, v6
    v_mul_f32 v7, 0.15915494, v7
    v_fract_f32 v7, v7
    v_cos_f32 v8, v7
    v_sin_f32 v9, v7
    s_nop 0
    v_mul_f32 v16, v6, v8                ; Lr
    v_mul_f32 v17, v6, v9                ; Li
    ; c2 = 2*(L-1)*conj(lam)/|lam|^2
    v_add_f32 v10, -1.0, v16
    v_mul_f32 v11, v3, v3
    v_fmac_f32 v11, v4, v4
    v_rcp_f32 v11, v11
    v_mul_f32 v12, v10, v3
    v_fmac_f32 v12, v17, v4              ; re = (Lr-1)*lre + Li*lim
    v_mul_f32 v13, v17, v3
    v_fma_f32 v13, -v10, v4, v13         ; im = Li*lre - (Lr-1)*lim
    v_add_f32 v11, v11, v11
    v_mul_f32 v18, v12, v11
    v_mul_f32 v19, v13, v11
    """.replace("0.15915494", "0x3e22f983"))
    def csq(d, s):
        a(f"""
        v_mul_f32 v14, v{s+1}, v{s+1}
        v_mul_f32 v15, v{s}, v{s+1}
        v_fma_f32 v{d}, v{s}, v{s}, -v14
        v_add_f32 v{d+1}, v15, v15
        """)
    csq(40, 16); csq(42, 40); csq(26, 42)
    csq(28, 26)
    a("""
    v_mul_f32 v14, v29, v27
    v_fma_f32 v30, v28, v26, -v14
    v_mul_f32 v14, v28, v27
    v_fma_f32 v31, v29, v26, v14
    v_mov_b32 v24, 1.0
    v_mov_b32 v25, 0
    """)
    csq(20, 28)
    csq(40, 20); csq(42, 40); csq(22, 42)
    a(f"""
    v_lshlrev_b32 v2, 6, v1
    s_mov_b32 s20, {WS_CONST}
    buffer_store_dwordx4 v[16:19], v2, s[24:27], s20 offen
    buffer_store_dwordx4 v[20:23], v2, s[24:27], s20 offen offset:16
    buffer_store_dwordx4 v[24:27], v2, s[24:27], s20 offen offset:32
    buffer_store_dwordx4 v[28:31], v2, s[24:27], s20 offen offset:48
    """)
    a.label("K0_end")
    a("s_endpgm")
    return ("k0_kernel", 265, 256, 0, a.text(), 80, 56, 80)

XR = 112
def xreg(j, s):
    return XR + (s * 2 + j) * 4

def gen_k1():
    a = Asm()
    stamp_init(a); stamp(a, 0)
    a("""
    s_cmp_ge_u32 s2, 256
    s_cbranch_scc1 K1_end
    s_load_dwordx2 s[20:21], s[0:1], 120
    s_load_dwordx4 s[24:27], s[0:1], 80
    s_load_dwordx4 s[28:31], s[0:1], 24
    v_lshrrev_b32 v1, 6, v0
    v_and_b32 v0, 63, v0                     ; lane
    v_readfirstlane_b32 s16, v1              ; wave
    s_and_b32 s3, s2, 7                      ; xcd
    s_lshr_b32 s18, s2, 3
    s_and_b32 s17, s18, 7                    ; mt
    s_lshr_b32 s18, s18, 3                   ; k4
    v_lshlrev_b32 v1, 4, v0                  ; lane*16
    s_lshl_b32 s19, s17, 3
    s_add_u32 s19, s19, s16                  ; 8mt + w
    s_mul_i32 s32, s19, 36864
    s_add_u32 s33, s32, 18432
    s_mul_i32 s34, s19, 368640
    """)
    a(f"s_add_u32 s34, s34, {WS_H}")
    a("s_lshl_b32 s35, s16, 10                  ; w*1024")
    a("s_waitcnt lgkmcnt(0)")
    srd(a, 4, 20, WS_SIZE)
    a("s_cmp_eq_u32 s18, 3\ns_cbranch_scc1 K1_ssm")

    def xload(st, a=a):
        for j in range(2):
            a(f"s_add_u32 s36, s{32+j}, {WS_X + st*2048}")
            for e in range(2):
                r = xreg(j, 2 * st + e)
                a(f"buffer_load_dwordx4 v[{r}:{r+3}], v1, s[4:7], s36 offen offset:{1024*e}")

    WSZ = 576 * 9216
    srd(a, 8, 24, WSZ)
    srd(a, 12, 26, WSZ)
    a("s_load_dwordx2 s[58:59], s[0:1], 96\ns_load_dwordx4 s[60:63], s[0:1], 40")
    ACC = 48; FR = 24; VA = 2; VD = 14; VS0 = 15; T0 = 16
    a(f"""
    s_mul_i32 s37, s3, 9
    s_mul_i32 s38, s18, 3
    s_add_u32 s37, s37, s38
    s_lshl_b32 s38, s37, 7
    s_lshl_b32 s39, s37, 11
    s_add_u32 s39, s39, s34
    v_lshrrev_b32 v16, 3, v0
    s_lshl_b32 s40, s16, 3
    v_add_u32 v16, s40, v16
    v_mul_u32_u24 v16, 9216, v16
    v_bfe_u32 v17, v0, 4, 1
    s_and_b32 s40, s16, 1
    s_lshl_b32 s40, s40, 1
    v_or_b32 v17, s40, v17
    v_lshlrev_b32 v17, 1, v17
    v_and_b32 v18, 7, v0
    v_xor_b32 v17, v17, v18
    v_lshl_add_u32 v{VD}, v17, 4, v16
    """)
    def dma(a, slot, st_soff):
        for m in range(2):
            a(f"s_add_u32 m0, s35, {slot*16384 + m*8192}")
            a("s_nop 0")
            a(f"buffer_load_dwordx4 v{VD}, s[{8+4*m}:{11+4*m}], s{st_soff} offen lds")
    def rd(a, gblk, k):
        gblk %= 72
        st, blk = divmod(gblk, 8)
        u, m = divmod(blk, 2)
        s, e = divmod(k, 2)
        buf = FR + (gblk % 3) * 8 + s * 4 + e * 2
        reg = VA + (st // 3) * 4 + u
        off = (st % 3) * 16384 + m * 8192 + s * 4096 + e * 512
        a(f"ds_read_b64_tr_b16 v[{buf}:{buf+1}], v{reg} offset:{off}")
    def acc(blk, j):
        return ACC + (blk * 2 + j) * 4
    def epi_ops(v, soff_sgpr_expr):
        ops = []
        for j in range(2):
            T = T0 + 4 * j
            for uu in range(2):
                g = acc(4 * v + 2 * uu, j); u = acc(4 * v + 2 * uu + 1, j)
                for r in range(4):
                    ops.append(f"v_mul_f32 v{g+r}, v{g+r}, v{u+r}")
                ops.append(f"v_cvt_pk_bf16_f32 v{T+2*uu}, v{g}, v{g+1}")
                ops.append(f"v_cvt_pk_bf16_f32 v{T+2*uu+1}, v{g+2}, v{g+3}")
            ops.append(f"s_add_u32 s45, s{soff_sgpr_expr}, {j*184320}")
            ops.append(f"buffer_store_dwordx4 v[{T}:{T+3}], v1, s[4:7], s45 offen offset:{1024*v} {H_STORE_FLAGS}")
        return ops
    vm = VM()
    def prologue(a):
        for st in range(max(LX, PD0)):
            if st < LX:
                xload(st, a); vm.op(("X", st), 4)
            if st < PD0:
                a(f"s_add_u32 s41, s38, {st*589824}")
                dma(a, st, 41); vm.op(("D", st), 2)
    waits = {}
    def body(a, G):
        for st in range(9):
            gs = 9 * G + st
            extra = []
            if st == 0: extra = epi_ops(1, 43); erange = (0, 4)
            if st == 8: extra = epi_ops(0, 39); erange = (5, 8)
            for blk in range(8):
                g = st * 8 + blk
                if blk == 6:
                    n = vm.need({("X", gs + 1), ("D", gs + 1)})
                    waits.setdefault(st, {})[G] = n
                    if isinstance(a, Asm):
                        nf = W[st][0]; nr = min(W[st][1], W[st][2])
                        if nf > nr:
                            lab = a.newlabel("K1_w")
                            a(f"s_waitcnt vmcnt({nf})\ns_cmp_eq_u32 s42, 0\ns_cbranch_scc1 {lab}\ns_waitcnt vmcnt({nr})")
                            a.label(lab)
                        else:
                            a(f"s_waitcnt vmcnt({nf})")
                    a("s_barrier")
                if PRIO and blk % 2 == 0:
                    a(f"s_setprio {3 - ((blk + 2) % 8) // 2}")
                a("s_waitcnt lgkmcnt(4)")
                buf = FR + (g % 3) * 8
                slot_ops = []
                if extra and erange[0] <= blk < erange[1]:
                    n = erange[1] - erange[0]; i = blk - erange[0]
                    lo = len(extra) * i // n; hi = len(extra) * (i + 1) // n
                    slot_ops = extra[lo:hi]
                k = 0
                for j in range(2):
                    for s in range(2):
                        c = acc(blk, j)
                        src2 = "0" if (st == 0 and s == 0) else f"v[{c}:{c+3}]"
                        x = xreg(j, 2 * st + s)
                        a(f"{MFMA} v[{c}:{c+3}], v[{buf+4*s}:{buf+4*s+3}], v[{x}:{x+3}], {src2}")
                        rd(a, g + 2, k)
                        lo = len(slot_ops) * k // 4; hi = len(slot_ops) * (k + 1) // 4
                        for o in slot_ops[lo:hi]:
                            a(o)
                            if o.startswith("buffer_store"): vm.op("S")
                        k += 1
                if blk == 0:
                    fx = st + LX <= 8
                    fd = [d for d in range(PD0, LD)] if st == 0 else []
                    if fx or fd:
                        lab = a.newlabel("K1_x")
                        a(f"s_cmp_lg_u32 s42, 0\ns_cbranch_scc1 {lab}")
                        if fx:
                            xload(st + LX, a)
                            if G == 0: vm.op(("X", st + LX), 4)
                        for d in fd:
                            a(f"s_add_u32 s41, s38, {d*589824}")
                            dma(a, d, 41)
                            if G == 0: vm.op(("D", d), 2)
                        a.label(lab)
                if blk == 4 and st < 8 and W2PF:
                    lab = a.newlabel("K1_p")
                    x = st & 1; qt = st >> 1
                    a(f"""
                    s_cmp_lg_u32 s42, {W2G}
                    s_cbranch_scc1 {lab}
                    s_mov_b32 m0, 147456
                    s_mov_b64 exec, 0xffff
                    buffer_load_dword v15, s[{48+4*x}:{51+4*x}], s{56+x} offen lds
                    s_mov_b64 exec, -1
                    s_add_u32 s{56+x}, s{56+x}, 2048
                    """)
                    a.label(lab)
                    if G == W2G: vm.op("P")
                if blk == 2:
                    t = st + LD
                    if t == 9:
                        a("s_mov_b32 s10, s44\ns_mov_b32 s14, s44")
                    a(f"s_add_u32 s41, s38, {(128 if t >= 9 else 0) + (t % 9)*589824}")
                    dma(a, t % 9, 41); vm.op(("D", gs + LD), 2)
    prologue(Null()); w0 = vm.need({("X", 0), ("D", 0)})
    for G in range(3): body(Null(), G)
    W = waits
    vm = VM()
    prologue(a)
    a(f"""
    v_lshrrev_b32 v16, 4, v0
    v_lshlrev_b32 v16, 10, v16
    v_bfe_u32 v17, v0, 2, 2
    v_lshl_add_u32 v16, v17, 7, v16
    v_bfe_u32 v17, v0, 3, 2
    v_lshl_add_u32 v16, v17, 5, v16
    v_and_b32 v17, 3, v0
    v_lshl_add_u32 v16, v17, 3, v16
    """)
    for b in range(4):
        a(f"v_xor_b32 v{VA+b}, {b*32}, v16")
        a(f"v_add_u32 v{VA+4+b}, 49152, v{VA+b}")
        a(f"v_add_u32 v{VA+8+b}, 98304, v{VA+b}")
    if W2PF:
        a(f"""
        s_lshl_b32 s40, s18, 3
        s_add_u32 s40, s40, s17
        s_lshl_b32 s40, s40, 3
        s_add_u32 s40, s40, s16
        s_min_u32 s40, s40, 161
        v_lshlrev_b32 v15, 7, v0
        s_waitcnt lgkmcnt(0)
        """)
        for x in range(2):
            a(f"""
            s_mul_i32 s41, s3, 30
            s_add_u32 s41, s41, {29*x}
            s_mul_i32 s41, s41, 1366
            s_lshr_b32 s41, s41, 16              ; split
            s_cmp_ge_u32 s40, 81
            s_cselect_b32 s22, s62, s60
            s_cselect_b32 s23, s63, s61
            s_cselect_b32 s46, 81, 0
            s_sub_u32 s46, s40, s46
            s_lshl_b32 s46, s46, 13
            s_mul_i32 s47, s41, {1152*1152}
            s_lshl_b32 s45, s40, 13
            s_add_u32 s47, s47, s45
            s_cmp_eq_u32 s41, 4
            s_cselect_b32 s{48+4*x}, s22, s58
            s_cselect_b32 s{49+4*x}, s23, s59
            s_cselect_b32 s{56+x}, s46, s47
            s_mov_b32 s{50+4*x}, {4608*1152}
            s_cselect_b32 s{50+4*x}, {576*1152}, s{50+4*x}
            s_mov_b32 s{51+4*x}, 0x20000
            """)
    a(f"""
    s_mov_b32 s42, 0
    s_mov_b32 s43, 0x7ff00000
    s_mov_b32 s44, {WSZ}
    """)
    stamp(a, 1)
    a(f"s_waitcnt vmcnt({w0})\ns_barrier")
    stamp(a, 2)
    for k in range(4): rd(a, 0, k)
    for k in range(4): rd(a, 1, k)
    a.label("K1_floop")
    waits = {}
    body(a, 0)
    stamp_dyn(a, 3, 42, 3)
    a(f"""
    s_mov_b32 s43, s39
    s_add_u32 s39, s39, 2048
    s_add_u32 s38, s38, 128
    s_add_u32 s42, s42, 1
    s_cmp_eq_u32 s42, 2
    s_cselect_b32 s44, 0, s44
    s_cmp_lt_u32 s42, 3
    s_cbranch_scc1 K1_floop
    s_nop 7
    """)
    for o in epi_ops(1, 43): a(o)
    if STAMP: a("s_waitcnt vmcnt(0)")
    stamp(a, 6); stamp_out(a, 1, 16)
    a("s_endpgm")

    a.label("K1_ssm")
    NU = 5
    ACC = 32; FR = 8; VA = 2
    BSZ = 576 * 1152
    a(f"""
    s_cmp_lt_u32 s16, 4
    s_cselect_b32 s22, s28, s30
    s_cselect_b32 s23, s29, s31
    """)
    srd(a, 8, 22, BSZ)
    a(f"""
    s_mul_i32 s37, s3, 5
    s_min_u32 s37, s37, 31                   ; ustart
    s_and_b32 s40, s16, 3
    s_lshl_b32 s41, s40, 3
    s_lshl_b32 s38, s37, 4
    s_add_u32 s41, s41, s38                  ; 16*ustart + 8*(w&3)
    v_lshrrev_b32 v8, 3, v0
    v_add_u32 v8, s41, v8
    v_mul_u32_u24 v8, 1152, v8
    s_and_b32 s41, s16, 1
    s_lshl_b32 s41, s41, 2
    v_lshrrev_b32 v9, 4, v0
    v_add_u32 v9, s41, v9
    v_and_b32 v10, 7, v0
    v_xor_b32 v9, v9, v10
    v_and_b32 v10, 15, v0
    v_lshrrev_b32 v11, 1, v10
    v_lshrrev_b32 v12, 4, v0
    v_xor_b32 v11, v11, v12
    v_lshlrev_b32 v11, 4, v11
    v_lshl_add_u32 v{VA}, v10, 7, v11
    v_xor_b32 v{VA+1}, 64, v{VA}
    v_add_u32 v{VA+2}, 49152, v{VA}
    v_add_u32 v{VA+3}, 49152, v{VA+1}
    v_add_u32 v{VA+4}, 98304, v{VA}
    v_add_u32 v{VA+5}, 98304, v{VA+1}
    v_lshl_add_u32 v0, v9, 4, v8
    s_lshr_b32 s41, s16, 2
    s_mul_i32 s41, s41, 12288
    s_lshl_b32 s35, s40, 10
    s_add_u32 s35, s35, s41
    """)
    def sdma(st):
        slot = st % 6
        for t in range(3):
            a(f"s_add_u32 m0, s35, {slot*24576 + t*4096}")
            a(f"s_mov_b32 s41, {st*128 + t*36864}")
            a(f"buffer_load_dwordx4 v0, s[8:11], s41 offen lds")
    SL = 3
    order = []
    for st in range(2):
        xload(st); sdma(st); order += [("X", st)] * 4 + [("D", st)] * 3
    if not PFALL:
        a(f"""
        s_cmp_lt_u32 s16, 4
        s_cselect_b32 s22, s24, s26
        s_cselect_b32 s23, s25, s27
        """)
        srd(a, 12, 22, 576 * 9216)
        a(f"""
        v_lshrrev_b32 v10, 4, v1
        v_mul_u32_u24 v8, 86, v10
        v_lshrrev_b32 v8, 8, v8
        v_mul_u32_u24 v9, 3, v8
        v_sub_u32 v9, v10, v9
        v_min_u32 v8, 17, v8
        v_mul_u32_u24 v8, 9216, v8
        v_mul_u32_u24 v9, 384, v9
        v_add_u32 v8, v8, v9
        s_lshl_b32 s40, s17, 2
        s_and_b32 s41, s16, 3
        s_add_u32 s40, s40, s41
        s_mul_i32 s40, s40, {18*9216}
        s_mul_i32 s41, s3, 1152
        s_add_u32 s40, s40, s41
        s_mov_b32 m0, 147456
        s_nop 0
        buffer_load_dword v8, s[12:15], s40 offen offset:128 lds
        buffer_load_dword v8, s[12:15], s40 offen offset:256 lds
        """)
        order += [("P", -1)] * 2
    NB = 2 * NU
    def srd_(gblk, s):
        if gblk >= 9 * NB: return
        st, blk = divmod(gblk, NB)
        u, comp = divmod(blk, 2)
        slot = st % 6
        buf = FR + (gblk % 3) * 8 + s * 4
        reg = VA + (slot // 2) * 2 + s
        off = (slot % 2) * 24576 + comp * 12288 + u * 2048
        a(f"ds_read_b128 v[{buf}:{buf+3}], v{reg} offset:{off}")
    def sacc(u, comp, j):
        return ACC + ((u * 2 + comp) * 2 + j) * 4
    def need(st):
        last = max(i for i, o in enumerate(order) if o[1] == st)
        return len(order) - 1 - last
    stamp(a, 1)
    a(f"s_waitcnt vmcnt({need(0)})\ns_barrier")
    stamp(a, 2)
    for g in range(2):
        for s in range(2): srd_(g, s)
    CN = XR
    for st in range(9):
        for blk in range(NB):
            g = st * NB + blk
            if blk == NB - 2 and st < 8:
                a(f"s_waitcnt vmcnt({need(st+1)})\ns_barrier")
            a(f"s_waitcnt lgkmcnt({2 if g + 1 < 9*NB else 0})")
            buf = FR + (g % 3) * 8
            u, comp = divmod(blk, 2)
            k = 0
            for j in range(2):
                for s in range(2):
                    c = sacc(u, comp, j)
                    src2 = "0" if (st == 0 and s == 0) else f"v[{c}:{c+3}]"
                    x = xreg(j, 2 * st + s)
                    a(f"{MFMA} v[{c}:{c+3}], v[{x}:{x+3}], v[{buf+4*s}:{buf+4*s+3}], {src2}")
                    if k % 2 == 0: srd_(g + 2, k // 2)
                    k += 1
            if blk == 0:
                for t in ([2, 3] if st == 0 else [st + SL]):
                    if t <= 8:
                        xload(t); sdma(t); order += [("X", t)] * 4 + [("D", t)] * 3
            if blk == 2 and st == 5:
                order += [("C", -1)] * (3 * NU + 1)
                a(f"""
                v_mbcnt_lo_u32_b32 v0, -1, 0
                v_mbcnt_hi_u32_b32 v0, -1, v0
                v_and_b32 v{CN+44}, 15, v0
                v_lshlrev_b32 v{CN+44}, 6, v{CN+44}
                v_lshrrev_b32 v{CN+45}, 4, v0
                v_lshl_add_u32 v{CN+45}, v{CN+45}, 3, v{CN+44}
                s_lshl_b32 s40, s37, 10
                s_add_u32 s40, s40, {WS_CONST}
                """)
                for u2 in range(NU):
                    b = CN + 8 * u2
                    a(f"s_add_u32 s41, s40, {u2*1024}")
                    a(f"buffer_load_dwordx4 v[{b}:{b+3}], v{CN+44}, s[4:7], s41 offen")
                    a(f"buffer_load_dwordx2 v[{b+4}:{b+5}], v{CN+44}, s[4:7], s41 offen offset:40")
                    a(f"buffer_load_dwordx2 v[{b+6}:{b+7}], v{CN+45}, s[4:7], s41 offen offset:32")
                a("s_min_u32 s46, s16, 4\ns_lshl_b32 s41, s46, 10\ns_add_u32 s41, s41, s40")
                a(f"buffer_load_dwordx4 v[{CN+40}:{CN+43}], v{CN+44}, s[4:7], s41 offen offset:16")
    TP = XR + 48
    EQ, TT, SW, TR = 0, 20480, 25600, 32768
    P = TP
    E = TP + 10
    t0 = TP + 20
    stamp(a, 3)
    a("s_waitcnt vmcnt(0)\ns_barrier\ns_nop 7")
    stamp(a, 4)
    def breg(u, comp, i):
        return sacc(u, comp, i // 4) + (i % 4)
    def cmadd(dr, di, lr, li, xr, xi, br, bi, t):
        a(f"v_fma_f32 v{t}, v{lr}, v{xr}, v{br}")
        a(f"v_fma_f32 v{t+1}, v{lr}, v{xi}, v{bi}")
        a(f"v_fma_f32 v{t+1}, v{li}, v{xr}, v{t+1}")
        a(f"v_fma_f32 v{dr}, -v{li}, v{xi}, v{t}")
        a(f"v_mov_b32 v{di}, v{t+1}")
    def cmadd4(dr, di, lr, li, xr, xi, br, bi):
        a(f"v_fma_f32 v{dr}, v{lr}, v{xr}, v{br}")
        a(f"v_fma_f32 v{di}, v{lr}, v{xi}, v{bi}")
        a(f"v_fma_f32 v{dr}, -v{li}, v{xi}, v{dr}")
        a(f"v_fma_f32 v{di}, v{li}, v{xr}, v{di}")
    for u in range(NU):
        cr, ci = CN + 8 * u + 2, CN + 8 * u + 3
        for i in range(8):
            br, bi = breg(u, 0, i), breg(u, 1, i)
            t = t0 + 2 * (i % 4)
            a(f"v_mul_f32 v{t}, v{ci}, v{bi}")
            a(f"v_mul_f32 v{t+1}, v{ci}, v{br}")
            a(f"v_fma_f32 v{br}, v{cr}, v{br}, -v{t}")
            a(f"v_fma_f32 v{bi}, v{cr}, v{bi}, v{t+1}")
    E2 = t0 + 8
    for i in range(1, 8):
        for u in range(NU):
            lr, li = CN + 8 * u, CN + 8 * u + 1
            if i == 1: xr, xi = breg(u, 0, 0), breg(u, 1, 0)
            else:
                src = (E if (i - 1) % 2 == 1 else E2) + 2 * u
                xr, xi = src, src + 1
            dst = (E if i % 2 == 1 else E2) + 2 * u
            cmadd4(dst, dst + 1, lr, li, xr, xi, breg(u, 0, i), breg(u, 1, i))
    A0 = t0 + 18; A1 = t0 + 19; A2 = t0 + 20; A3 = t0 + 21
    a(f"""
    v_and_b32 v{A2}, 15, v0
    v_lshrrev_b32 v{A3}, 4, v0
    s_lshl_b32 s40, s16, 9
    v_lshl_add_u32 v{A0}, v{A2}, 5, s40          ; w*512 + p*32
    v_lshl_add_u32 v{A1}, v{A3}, 3, v{A0}        ; + q*8
    v_cmp_eq_u32 s[50:51], 1, v{A3}
    v_cmp_eq_u32 s[52:53], 2, v{A3}
    v_cmp_eq_u32 s[54:55], 3, v{A3}
    """)
    for u in range(NU):
        a(f"ds_write_b64 v{A1}, v[{E+2*u}:{E+2*u+1}] offset:{EQ + u*4096}")
    Q = t0 + 24
    a("s_waitcnt lgkmcnt(0)")
    for u in range(NU):
        a(f"ds_read_b128 v[{Q+8*u}:{Q+8*u+3}], v{A0} offset:{EQ + u*4096}")
        a(f"ds_read_b128 v[{Q+8*u+4}:{Q+8*u+7}], v{A0} offset:{EQ + u*4096 + 16}")
    a(f"s_lshl_b32 s40, s16, 3\nv_lshl_add_u32 v{A1}, v{A2}, 6, s40")
    a("s_waitcnt lgkmcnt(0)")
    for step in range(1, 4):
        for u in range(NU):
            q = Q + 8 * u
            lr, li = CN + 8 * u + 4, CN + 8 * u + 5
            cmadd4(q + 2 * step, q + 2 * step + 1, lr, li, q + 2 * step - 2, q + 2 * step - 1, q + 2 * step, q + 2 * step + 1)
    for u in range(NU):
        q = Q + 8 * u
        a(f"ds_write_b64 v{A1}, v[{q+6}:{q+7}] offset:{TT + u*1024}")
        for c in range(2):
            a(f"v_cndmask_b32 v{P+2*u+c}, 0, v{q+c}, s[50:51]")
            a(f"v_cndmask_b32 v{P+2*u+c}, v{P+2*u+c}, v{q+2+c}, s[52:53]")
            a(f"v_cndmask_b32 v{P+2*u+c}, v{P+2*u+c}, v{q+4+c}, s[54:55]")
    a("s_waitcnt lgkmcnt(0)\ns_barrier")
    stamp(a, 5)
    a("s_cmp_ge_u32 s16, 5\ns_cbranch_scc1 K1_join")
    L32r, L32i, L256r, L256i = CN + 40, CN + 41, CN + 42, CN + 43
    TW = Q
    G = Q + 16
    S = t0
    a(f"""
    s_lshl_b32 s40, s16, 10
    v_lshl_add_u32 v{A1}, v{A2}, 6, s40          ; u*1024 + p*64
    """)
    for k in range(4):
        a(f"ds_read_b128 v[{TW+4*k}:{TW+4*k+3}], v{A1} offset:{TT + 16*k}")
    a(f"""
    s_add_u32 s40, s37, s16
    s_lshl_b32 s40, s40, 11
    s_add_u32 s40, s40, {WS_E}
    v_lshlrev_b32 v{A0}, 4, v{A2}
    s_waitcnt lgkmcnt(0)
    """)
    cur = (TW, TW + 1)
    for w in range(1, 8):
        d = S + 2 * (w % 2)
        cmadd4(d, d + 1, L32r, L32i, cur[0], cur[1], TW + 2 * w, TW + 2 * w + 1)
        cur = (d, d + 1)
    a(f"""
    v_mov_b32 v{G}, v{cur[0]}
    v_mov_b32 v{G+1}, 1
    v_mov_b32 v{G+2}, v{cur[1]}
    v_mov_b32 v{G+3}, 1
    s_lshl_b32 s41, s17, 8
    s_add_u32 s41, s41, s40
    s_mov_b64 exec, 0xffff
    buffer_store_dwordx4 v[{G}:{G+3}], v{A0}, s[4:7], s41 offen sc1
    s_mov_b64 exec, -1
    v_mov_b32 v{S}, 0
    v_mov_b32 v{S+1}, 0
    s_mov_b32 s47, 0
    s_cmp_eq_u32 s17, 0
    s_cbranch_scc1 K1_lbdone
    s_nop 1
    """)
    a.label("K1_lbloop")
    for k in range(7):
        a(f"buffer_load_dwordx4 v[{G+4*k}:{G+4*k+3}], v{A0}, s[4:7], s40 offen offset:{256*k} sc1")
    a(f"""
    v_mov_b32 v{S}, 0
    v_mov_b32 v{S+1}, 0
    v_mov_b32 v{S+4}, 1
    s_waitcnt vmcnt(0)
    """)
    for k in range(7):
        a(f"v_and_b32 v{S+4}, v{S+4}, v{G+4*k+1}")
        a(f"v_and_b32 v{S+4}, v{S+4}, v{G+4*k+3}")
        cmadd(S, S + 1, L256r, L256i, S, S + 1, G + 4 * k, G + 4 * k + 2, S + 2)
        if k < 6:
            a(f"s_cmp_eq_u32 s17, {k+1}\ns_cbranch_scc1 K1_lbchk")
    a.label("K1_lbchk")
    a(f"""
    v_cmp_ne_u32 vcc, 1, v{S+4}
    s_cbranch_vccz K1_lbdone
    s_sleep 2
    s_add_u32 s47, s47, 1
    s_cmp_lt_u32 s47, 0x40000
    s_cbranch_scc1 K1_lbloop
    """)
    a.label("K1_lbdone")
    a(f"""
    s_lshl_b32 s40, s16, 10
    v_lshl_add_u32 v{A1}, v{A2}, 3, s40
    ds_write_b64 v{A1}, v[{S}:{S+1}] offset:{SW}
    """)
    cur = (S, S + 1)
    for w in range(7):
        cmadd4(TW + 2 * w, TW + 2 * w + 1, L32r, L32i, cur[0], cur[1], TW + 2 * w, TW + 2 * w + 1)
        cur = (TW + 2 * w, TW + 2 * w + 1)
        a(f"ds_write_b64 v{A1}, v[{cur[0]}:{cur[1]}] offset:{SW + 128*(w+1)}")
    a.label("K1_join")
    a("s_waitcnt lgkmcnt(0)\ns_barrier")
    stamp(a, 6)
    a(f"""
    s_lshl_b32 s40, s16, 7
    v_lshl_add_u32 v{A1}, v{A2}, 3, s40
    """)
    for u in range(NU):
        a(f"ds_read_b64 v[{E+2*u}:{E+2*u+1}], v{A1} offset:{SW + u*1024}")
    a(f"""
    s_mul_i32 s40, s16, 10240
    s_add_u32 s40, s40, {TR}
    v_lshl_add_u32 v{A0}, v{A2}, 6, s40
    v_lshl_add_u32 v{A0}, v{A3}, 4, v{A0}
    v_lshl_add_u32 v{A1}, v{A3}, 9, s40
    v_bfe_u32 v{A2}, v0, 2, 2
    v_lshl_add_u32 v{A1}, v{A2}, 6, v{A1}
    v_and_b32 v{A2}, 3, v0
    v_lshl_add_u32 v{A1}, v{A2}, 4, v{A1}
    v_lshrrev_b32 v{A2}, 5, v0
    v_lshlrev_b32 v{A2}, 11, v{A2}
    v_and_b32 v{A3}, 31, v0
    v_lshl_add_u32 v{A2}, v{A3}, 4, v{A2}
    s_waitcnt lgkmcnt(0)
    """)
    for u in range(NU):
        cmadd4(P + 2 * u, P + 2 * u + 1, CN + 8 * u + 6, CN + 8 * u + 7, E + 2 * u, E + 2 * u + 1, P + 2 * u, P + 2 * u + 1)
    for i in range(8):
        for u in range(NU):
            lr, li = CN + 8 * u, CN + 8 * u + 1
            if i == 0: xr, xi = P + 2 * u, P + 2 * u + 1
            else: xr, xi = breg(u, 0, i - 1), breg(u, 1, i - 1)
            cmadd4(breg(u, 0, i), breg(u, 1, i), lr, li, xr, xi, breg(u, 0, i), breg(u, 1, i))
    for u in range(NU):
        q = Q + 8 * u
        for k in range(4):
            a(f"v_cvt_pk_bf16_f32 v{q+k}, v{breg(u,0,2*k)}, v{breg(u,0,2*k+1)}")
            a(f"v_cvt_pk_bf16_f32 v{q+4+k}, -v{breg(u,1,2*k)}, -v{breg(u,1,2*k+1)}")
        a(f"ds_write_b128 v{A0}, v[{q}:{q+3}] offset:{u*2048}")
        a(f"ds_write_b128 v{A0}, v[{q+4}:{q+7}] offset:{u*2048+1024}")
    a("s_waitcnt lgkmcnt(0)")
    for u in range(NU):
        for j in range(2):
            o = ACC + (u * 2 + j) * 4
            for e in range(2):
                a(f"ds_read_b64_tr_b16 v[{o+2*e}:{o+2*e+1}], v{A1} offset:{u*2048 + e*256 + j*8}")
    for u in range(NU):
        a(f"""
        s_add_u32 s40, s37, {u}
        s_lshr_b32 s41, s40, 2
        s_lshl_b32 s41, s41, 12
        s_and_b32 s42, s40, 3
        s_lshl_b32 s42, s42, 9
        s_add_u32 s41, s41, s42
        s_add_u32 s41, s41, s34
        s_add_u32 s41, s41, {144*1024}
        s_add_u32 s42, s41, 184320
        s_waitcnt lgkmcnt({min(15, 4*(NU-1-u))})
        """)
        for j in range(2):
            o = ACC + (u * 2 + j) * 4
            a(f"buffer_store_dwordx4 v[{o}:{o+3}], v{A2}, s[4:7], s{41+j} offen {H_STORE_FLAGS}")
    if STAMP: a("s_waitcnt vmcnt(0)")
    stamp(a, 7); stamp_out(a, 1, 16)
    a.label("K1_end")
    a("s_endpgm")
    return ("k1_kernel", 256, 512, 148480, a.text(), 256, 100, 256)

def gen_k2():
    a = Asm()
    stamp_init(a); stamp(a, 0)
    a("""
    s_cmp_ge_u32 s2, 240
    s_cbranch_scc1 K2_end
    s_load_dwordx2 s[20:21], s[0:1], 120
    s_load_dwordx2 s[24:25], s[0:1], 96      ; w_down
    s_load_dwordx4 s[28:31], s[0:1], 40
    v_lshrrev_b32 v1, 6, v0
    v_and_b32 v0, 63, v0
    v_readfirstlane_b32 s16, v1              ; wave8
    ; item = (id&7)*30 + (id>>3) ; split = item/48 ; tile = item%48 ; mt2 = tile/3 ; nt = tile%3
    s_and_b32 s3, s2, 7
    s_mul_i32 s3, s3, 30
    s_lshr_b32 s17, s2, 3
    s_add_u32 s3, s3, s17                    ; item
    s_mul_i32 s17, s3, 1366
    s_lshr_b32 s17, s17, 16                  ; split
    s_mul_i32 s18, s17, 48
    s_sub_u32 s18, s3, s18                   ; tile
    s_mul_i32 s19, s18, 21846
    s_lshr_b32 s19, s19, 16                  ; mt2
    s_mul_i32 s22, s19, 3
    s_sub_u32 s22, s18, s22                  ; nt
    s_and_b32 s23, s16, 3                    ; wm
    s_lshr_b32 s26, s16, 2                   ; h
    v_lshlrev_b32 v1, 4, v0
    s_lshl_b32 s32, s19, 2
    s_add_u32 s32, s32, s23
    s_mul_i32 s32, s32, 360
    s_mul_i32 s33, s17, 36
    s_add_u32 s32, s32, s33
    s_add_u32 s32, s32, s26
    s_lshl_b32 s32, s32, 10
    """)
    a(f"s_add_u32 s32, s32, {WS_H}\ns_add_u32 s33, s32, 184320")
    a("s_lshl_b32 s35, s16, 10\ns_waitcnt lgkmcnt(0)")
    srd(a, 4, 20, WS_SIZE)
    srd(a, 56, 20, WS_SIZE)
    ACC = 32; HF = 128; FR = 176; VA = 2; VD = 14
    def acc(nb, j): return ACC + (nb * 2 + j) * 4
    def hload(setn):
        for j in range(2):
            r = HF + setn * 8 + j * 4
            a(f"buffer_load_dwordx4 v[{r}:{r+3}], v1, s[56:59], s{32+j} offen")
        a("s_add_u32 s32, s32, 2048\ns_add_u32 s33, s33, 2048")
    a(f"""
    s_load_dwordx2 s[52:53], s[0:1], 104
    v_bfe_u32 v16, v0, 2, 2
    v_lshlrev_b32 v16, 3, v16
    v_and_b32 v17, 3, v0
    v_add_u32 v16, v16, v17
    v_mul_u32_u24 v16, 2304, v16
    v_lshrrev_b32 v17, 4, v0
    v_lshl_add_u32 v15, v17, 4, v16
    s_lshl_b32 s47, s19, 7
    s_lshl_b32 s50, s23, 5
    s_add_u32 s47, s47, s50
    s_mul_i32 s47, s47, 2304
    s_mul_i32 s50, s22, 768
    s_add_u32 s47, s47, s50
    s_mul_i32 s50, s26, 384
    s_add_u32 s47, s47, s50
    s_add_u32 s61, s47, {4*2304 + 256}
    s_and_b32 s50, s17, 1
    s_mul_i32 s50, s50, {4*2304}
    s_add_u32 s47, s47, s50
    s_lshr_b32 s50, s17, 1
    s_lshl_b32 s50, s50, 7
    s_add_u32 s60, s47, s50
    s_lshl_b32 s47, s18, 3
    s_add_u32 s47, s47, s16
    s_mul_i32 s47, s47, 6144
    s_add_u32 s62, s47, {WS_PART}
    s_lshl_b32 s47, s18, 8
    s_add_u32 s48, s47, {WS_FLAG}
    s_cmp_ge_u32 s16, 5
    s_cselect_b32 s49, 5, 0
    s_sub_u32 s49, s16, s49                  ; w8 % 5
    s_cmp_eq_u32 s49, s17
    s_cselect_b32 s61, s61, 0x7ff00000
    """)
    BS = 200
    def base_loads():
        for x in range(2):
            a(f"s_add_u32 s44, s{60+x}, {WS_BASE}")
            a(f"buffer_load_dwordx4 v[{BS+8*x}:{BS+8*x+3}], v15, s[4:7], s44 offen")
            a(f"buffer_load_dwordx4 v[{BS+8*x+4}:{BS+8*x+7}], v15, s[4:7], s44 offen offset:64")
    a("s_cmp_eq_u32 s17, 4\ns_cbranch_scc1 K2_ssm")
    for kind in ("ffn", "ssm"):
        if kind == "ffn":
            srd(a, 8, 24, 4608 * 1152)
            a(f"""
            v_lshrrev_b32 v16, 3, v0
            s_lshl_b32 s40, s16, 3
            v_add_u32 v16, s40, v16
            v_mul_u32_u24 v16, 1152, v16
            v_lshrrev_b32 v17, 4, v0
            v_lshlrev_b32 v17, 1, v17
            v_and_b32 v18, 7, v0
            v_xor_b32 v17, v17, v18
            v_lshl_add_u32 v{VD}, v17, 4, v16
            s_mul_i32 s38, s17, {1152*1152}
            s_mul_i32 s40, s22, 384
            s_add_u32 s38, s38, s40                ; soffset
            v_lshrrev_b32 v16, 2, v0
            v_lshlrev_b32 v16, 7, v16
            v_bfe_u32 v17, v0, 3, 2
            v_lshl_add_u32 v16, v17, 5, v16
            v_and_b32 v17, 3, v0
            v_lshl_add_u32 v16, v17, 3, v16
            s_lshl_b32 s40, s26, 12
            v_add_u32 v16, s40, v16
            """)
            for b in range(4):
                a(f"v_xor_b32 v{VA+b}, {b*32}, v16")
                a(f"v_add_u32 v{VA+4+b}, 49152, v{VA+b}")
                a(f"v_add_u32 v{VA+8+b}, 98304, v{VA+b}")
            def dma(slot):
                for pn in range(3):
                    a(f"s_add_u32 m0, s35, {slot*24576 + pn*8192 - pn*128}")
                    a("s_nop 0")
                    a(f"buffer_load_dwordx4 v{VD}, s[8:11], s38 offen offset:{pn*128} lds")
                a(f"s_add_u32 s38, s38, {64*1152}")
            def rd(g, k):
                g %= 72
                slot, nb = divmod(g, 12)
                buf = FR + (g % 6) * 4 + 2 * k
                reg = VA + (slot // 2) * 4 + (nb & 3)
                off = (slot % 2) * 24576 + (nb >> 2) * 8192 + k * 2048
                a(f"ds_read_b64_tr_b16 v[{buf}:{buf+1}], v{reg} offset:{off}")
            nrd = 2
            def disable():
                a("s_cselect_b32 s10, 0, s10")
        else:
            a.label("K2_ssm")
            srd(a, 8, 28, 576 * 1152)
            srd(a, 12, 30, 576 * 1152)
            a(f"""
            s_mul_i32 s40, s22, 192
            s_lshl_b32 s41, s16, 3
            s_add_u32 s40, s40, s41
            v_lshrrev_b32 v16, 3, v0
            v_add_u32 v16, s40, v16
            v_mul_u32_u24 v16, 1152, v16
            s_and_b32 s41, s16, 1
            s_lshl_b32 s41, s41, 2
            v_lshrrev_b32 v17, 4, v0
            v_add_u32 v17, s41, v17
            v_and_b32 v18, 7, v0
            v_xor_b32 v17, v17, v18
            v_lshl_add_u32 v{VD}, v17, 4, v16
            s_mov_b32 s38, 0
            v_and_b32 v16, 15, v0
            v_lshrrev_b32 v17, 1, v16
            v_lshrrev_b32 v18, 4, v0
            s_lshl_b32 s40, s26, 2
            v_add_u32 v18, s40, v18
            v_xor_b32 v17, v17, v18
            v_lshlrev_b32 v17, 4, v17
            v_lshl_add_u32 v{VA}, v16, 7, v17
            v_add_u32 v{VA+1}, 49152, v{VA}
            v_add_u32 v{VA+2}, 98304, v{VA}
            """)
            def dma(slot):
                comp = slot & 1
                for t in range(3):
                    a(f"s_add_u32 m0, s35, {slot*24576 + t*8192}")
                    a(f"s_add_u32 s41, s38, {t*64*1152}")
                    a(f"buffer_load_dwordx4 v{VD}, s[{8+4*comp}:{11+4*comp}], s41 offen lds")
                if comp: a("s_add_u32 s38, s38, 128")
            def rd(g, k):
                if k: return
                g %= 72
                slot, nb = divmod(g, 12)
                buf = FR + (g % 6) * 4
                reg = VA + (slot // 2)
                off = (slot % 2) * 24576 + nb * 2048
                a(f"ds_read_b128 v[{buf}:{buf+3}], v{reg} offset:{off}")
            nrd = 1
            def disable():
                a("s_cselect_b32 s10, 0, s10\ns_cselect_b32 s14, 0, s14")
        vm = VM(); waits = {}
        for st in range(max(LH, LW)):
            if st < LH: vm.op(("H", st), 2)
            if st < LW: vm.op(("W", st), 3)
            if st == 0: vm.op("B", 4)
        w0 = vm.need({("H", 0), ("W", 0)})
        for gs in range(18):
            vm.op(("H", gs + LH), 2); vm.op(("W", gs + LW), 3)
            waits.setdefault(gs % 6, []).append(vm.need({("H", gs + 1), ("W", gs + 1)}))
        for st in range(max(LH, LW)):
            if st < LH: hload(st)
            if st < LW: dma(st)
            if st == 0: base_loads()
        for r in range(96):
            a(f"v_mov_b32 v{ACC+r}, 0")
        a("s_mov_b32 s42, 0")
        stamp(a, 1)
        a(f"s_waitcnt vmcnt({w0})\ns_barrier")
        stamp(a, 2)
        for g in range(4):
            for k in range(2): rd(g, k)
        lab = f"K2_loop_{kind}"
        a.label(lab)
        for slot in range(6):
            for nb in range(12):
                g = slot * 12 + nb
                if nb == 8:
                    a(f"s_waitcnt vmcnt({min(waits[slot])})\ns_barrier")
                if PRIO and (nb - 8) % 3 == 0:
                    a(f"s_setprio {3 - ((nb + 4) % 12) // 3}")
                a(f"s_waitcnt lgkmcnt({3*nrd})")
                buf = FR + (g % 6) * 4
                for j in range(2):
                    c = acc(nb, j); hreg = HF + slot * 8 + j * 4
                    a(f"{MFMA} v[{c}:{c+3}], v[{buf}:{buf+3}], v[{hreg}:{hreg+3}], v[{c}:{c+3}]")
                    rd(g + 4, j)
                if nb == 0:
                    if slot + LH == 6:
                        a("s_cmp_eq_u32 s42, 2\ns_cselect_b32 s58, 0, s58")
                    hload((slot + LH) % 6)
                if nb == 2:
                    if slot + LW == 6:
                        a("s_cmp_eq_u32 s42, 2")
                        disable()
                    dma((slot + LW) % 6)
        stamp_dyn(a, 3, 42, 3)
        a(f"s_add_u32 s42, s42, 1\ns_cmp_lt_u32 s42, 3\ns_cbranch_scc1 {lab}")
        if kind == "ffn":
            a("s_branch K2_epi")
    a.label("K2_epi")
    a(f"""
    s_waitcnt vmcnt(0) lgkmcnt(0)
    s_barrier
    s_mul_i32 s40, s16, 12288
    v_add_u32 v2, s40, v1
    s_xor_b32 s41, s16, 4
    s_mul_i32 s41, s41, 12288
    v_add_u32 v3, s41, v1
    s_cmp_eq_u32 s26, 0
    s_cbranch_scc1 K2_lo
    """)
    for h in (1, 0):
        if h == 0: a.label("K2_lo")
        keep = ACC + 48 * h; send = ACC + 48 * (1 - h)
        for k in range(12):
            a(f"ds_write_b128 v2, v[{send+4*k}:{send+4*k+3}] offset:{k*1024}")
        a("s_waitcnt lgkmcnt(0)\ns_barrier")
        for k in range(12):
            a(f"ds_read_b128 v[{HF+4*k}:{HF+4*k+3}], v3 offset:{k*1024}")
        for k in range(12):
            a(f"s_waitcnt lgkmcnt({11-k})")
            for r in range(4):
                a(f"v_add_f32 v{HF+4*k+r}, v{HF+4*k+r}, v{keep+4*k+r}")
        if h == 1: a("s_branch K2_out")
    a.label("K2_out")
    stamp(a, 6)
    a(f"""
    s_mul_i32 s40, s17, {48*48*1024}
    s_add_u32 s40, s40, s62
    s_add_u32 s41, s40, 3072
    """)
    for nbp in range(3):
        for j in range(2):
            un = nbp * 2 + j
            T = ACC + un * 4
            own = a.newlabel("K2_own"); nxt = a.newlabel("K2_nx")
            a(f"s_cmp_eq_u32 s17, {un if un < 5 else 's49'}\ns_cbranch_scc1 {own}")
            for x in range(2):
                s_ = HF + ((2 * nbp + x) * 2 + j) * 4
                a(f"v_cvt_pk_bf16_f32 v{T+2*x}, v{s_}, v{s_+1}")
                a(f"v_cvt_pk_bf16_f32 v{T+2*x+1}, v{s_+2}, v{s_+3}")
            a(f"buffer_store_dwordx4 v[{T}:{T+3}], v1, s[4:7], s{40 + un//3} offen offset:{(un%3)*1024} sc1")
            a(f"s_branch {nxt}")
            a.label(own)
            b = BS + (8 if un == 5 else 0)
            for x in range(2):
                s_ = HF + ((2 * nbp + x) * 2 + j) * 4
                for r in range(4):
                    a(f"v_add_f32 v{b+4*x+r}, v{b+4*x+r}, v{s_+r}")
            a.label(nxt)
    srd(a, 8, 52, 2048 * 2304)
    a(f"""
    s_lshl_b32 s41, s17, 2
    s_add_u32 s40, s48, s41
    v_mov_b32 v2, 0
    v_mov_b32 v3, 1
    v_min_u32 v4, 4, v0
    v_lshlrev_b32 v4, 2, v4
    s_mov_b32 s47, 0
    s_lshl_b32 s43, s17, 10
    s_add_u32 s43, s43, s62
    s_add_u32 s44, s62, 5120
    s_cmp_eq_u32 s49, s17
    s_cselect_b32 s44, s44, 0x7ff00000
    s_waitcnt vmcnt(0)
    s_barrier
    """)
    stamp(a, 7)
    a(f"""
    s_cmp_lg_u32 s16, 0
    s_cbranch_scc1 K2_go
    s_mov_b64 exec, 1
    buffer_store_dword v3, v2, s[4:7], s40 offen sc1
    s_mov_b64 exec, -1
    """)
    a.label("K2_poll")
    a(f"""
    buffer_load_dword v5, v4, s[4:7], s48 offen sc1
    s_waitcnt vmcnt(0)
    v_cmp_ne_u32 vcc, 1, v5
    s_cbranch_vccz K2_go
    s_sleep {POLLSLEEP}
    s_add_u32 s47, s47, 1
    s_cmp_lt_u32 s47, 0x40000
    s_cbranch_scc1 K2_poll
    """)
    a.label("K2_go")
    a("s_barrier")
    stamp(a, 8)
    a("s_mov_b32 s45, s17")
    for k in range(4):
        a(f"""
        s_add_u32 s45, s45, 1
        s_cmp_eq_u32 s45, 5
        s_cselect_b32 s45, 0, s45
        s_mul_i32 s46, s45, {48*48*1024}
        s_add_u32 s47, s46, s43
        s_add_u32 s46, s46, s44
        """)
        for x in range(2):
            r = HF + (k * 2 + x) * 4
            a(f"buffer_load_dwordx4 v[{r}:{r+3}], v1, s[4:7], s{47-x} offen sc1")
    a("v_mov_b32 v3, 0xffff0000")
    for sp in range(4):
        for x in range(2):
            r = HF + (sp * 2 + x) * 4
            a(f"s_waitcnt vmcnt({7 - (sp*2+x)})")
            for k in range(4):
                a(f"v_lshlrev_b32 v5, 16, v{r+k}")
                a(f"v_and_b32 v6, v3, v{r+k}")
                a(f"v_add_f32 v{BS+8*x+2*k}, v{BS+8*x+2*k}, v5")
                a(f"v_add_f32 v{BS+8*x+2*k+1}, v{BS+8*x+2*k+1}, v6")
    for x in range(2):
        a(f"buffer_store_dwordx4 v[{BS+8*x}:{BS+8*x+3}], v15, s[8:11], s{60+x} offen")
        a(f"buffer_store_dwordx4 v[{BS+8*x+4}:{BS+8*x+7}], v15, s[8:11], s{60+x} offen offset:64")
    if STAMP: a("s_waitcnt vmcnt(0)")
    stamp(a, 9); stamp_out(a, 2, 16)
    a.label("K2_end")
    a("s_endpgm")
    a.label("CODE_END")
    return ("k2_kernel", 240, 512, 147456, a.text(), 216, 100, 216)

def gen_k3():
    a = Asm()
    a(f"""
    s_cmp_ge_u32 s2, 576
    s_cbranch_scc1 K3_end
    s_load_dwordx2 s[20:21], s[0:1], 120
    s_load_dwordx2 s[22:23], s[0:1], 104
    v_lshrrev_b32 v1, 6, v0
    v_and_b32 v0, 63, v0
    v_readfirstlane_b32 s16, v1
    s_lshl_b32 s3, s2, 2
    s_add_u32 s3, s3, s16
    s_mul_i32 s17, s3, 43691
    s_lshr_b32 s17, s17, 21                  ; tile
    s_mul_i32 s18, s17, 48
    s_sub_u32 s18, s3, s18                   ; wave8*6+un
    s_mul_i32 s19, s18, 10923
    s_lshr_b32 s19, s19, 16                  ; wave8
    s_mul_i32 s24, s19, 6
    s_sub_u32 s24, s18, s24
    s_mul_i32 s25, s17, 21846
    s_lshr_b32 s25, s25, 16                  ; mt2
    s_mul_i32 s26, s25, 3
    s_sub_u32 s26, s17, s26                  ; nt
    s_lshl_b32 s27, s25, 7
    s_and_b32 s28, s19, 3
    s_lshl_b32 s28, s28, 5
    s_add_u32 s27, s27, s28
    s_and_b32 s28, s24, 1
    s_lshl_b32 s28, s28, 2
    s_add_u32 s27, s27, s28
    s_mul_i32 s27, s27, 2304
    s_mul_i32 s28, s26, 768
    s_add_u32 s27, s27, s28
    s_lshr_b32 s28, s19, 2
    s_mul_i32 s28, s28, 384
    s_add_u32 s27, s27, s28
    s_lshr_b32 s28, s24, 1
    s_lshl_b32 s28, s28, 7
    s_add_u32 s27, s27, s28
    v_bfe_u32 v2, v0, 2, 2
    v_lshlrev_b32 v2, 3, v2
    v_and_b32 v3, 3, v0
    v_add_u32 v2, v2, v3
    v_mul_u32_u24 v2, 2304, v2
    v_lshrrev_b32 v3, 4, v0
    v_lshl_add_u32 v2, v3, 4, v2
    v_lshlrev_b32 v1, 4, v0
    s_lshl_b32 s29, s3, 10
    s_add_u32 s29, s29, {WS_PART}
    s_add_u32 s30, s27, {WS_BASE}
    s_waitcnt lgkmcnt(0)
    """)
    srd(a, 4, 20, WS_SIZE)
    srd(a, 8, 22, 2048 * 2304)
    a("buffer_load_dwordx4 v[4:7], v2, s[4:7], s30 offen")
    a("buffer_load_dwordx4 v[8:11], v2, s[4:7], s30 offen offset:64")
    for s in range(5):
        a(f"buffer_load_dwordx4 v[{12+4*s}:{15+4*s}], v1, s[4:7], s29 offen")
        a(f"s_add_u32 s29, s29, {48*48*1024}")
    a("v_mov_b32 v3, 0xffff0000")
    for s in range(5):
        a(f"s_waitcnt vmcnt({4-s})")
        for k in range(4):
            a(f"v_lshlrev_b32 v32, 16, v{12+4*s+k}")
            a(f"v_and_b32 v33, v3, v{12+4*s+k}")
            a(f"v_add_f32 v{4+2*k}, v{4+2*k}, v32")
            a(f"v_add_f32 v{5+2*k}, v{5+2*k}, v33")
    a("buffer_store_dwordx4 v[4:7], v2, s[8:11], s27 offen")
    a("buffer_store_dwordx4 v[8:11], v2, s[8:11], s27 offen offset:64")
    a.label("K3_end")
    a("s_endpgm")
    return ("k3_kernel", 576, 256, 0, a.text(), 40, 48, 40)

if __name__ == "__main__":
    out = sys.argv[1] if len(sys.argv) > 1 else "out.s"
    ks = [gen_k0(), gen_k1(), gen_k2()]
    open(out, "w").write(build_file(ks))
```

```python
import sys, os, copy
from asmlib import *
import gen as G1
from gen import WS_X, WS_H, WS_BASE, WS_CONST, WS_E, WS_PART, WS_SIZE, WS_FLAG, srd, MFMA, P
from gen import stamp, stamp_init, stamp_out, STAMP, ST0, XR, xreg

HST = os.environ.get("HST", "sc1")
LD = P("LD", 5); LX = P("LX", 2)
W2PF = P("W2PF", 1); W2G = P("W2G", 1)
S0 = P("S0", 6)
LP = P("LP", 10)
LH = P("LH", 3)
POLLSLEEP = P("POLLSLEEP", 2)
PRIO = P("PRIO", 0)
SBP = P("SBP", 2); SBSL = P("SBSL", 1)
LB = 2048
JUNK = LB + 147456

def stampc(a, i):
    stamp(a, i)
    if STAMP: a(f"s_memtime s[{ST0+2*(i+8)}:{ST0+2*(i+8)+1}]")

class Stream:
    def __init__(self, a):
        self.a = a; self.vm = []; self.vd = 0; self.lg = []; self.ld = 0
        self.slow = []; self.nar = 0
    def fork(self):
        c = Stream(self.a); c.vm = list(self.vm); c.vd = self.vd; c.lg = list(self.lg); c.ld = self.ld; c.slow = self.slow; c.nar = self.nar
        return c
    def vmi(self, tag, text): self.a(text); self.vm.append(tag)
    def lgi(self, tag, text): self.a(text); self.lg.append(tag)
    def _w(self, ops, done, tags, cap):
        idx = [i for i, t in enumerate(ops) if t in tags]
        if not idx or max(idx) < done: return None
        return min(cap, len(ops) - 1 - max(idx))
    def vmw(self, tags):
        n = self._w(self.vm, self.vd, tags, 63)
        if n is not None:
            self.a(f"s_waitcnt vmcnt({n})"); self.vd = len(self.vm) - n
    def lgw(self, tags):
        n = self._w(self.lg, self.ld, tags, 15)
        if n is not None:
            self.a(f"s_waitcnt lgkmcnt({n})"); self.ld = len(self.lg) - n
    def vm0(self): self.a("s_waitcnt vmcnt(0)"); self.vd = len(self.vm)
    def lg0(self): self.a("s_waitcnt lgkmcnt(0)"); self.ld = len(self.lg)
    def sb_setup(self, vE, vR, vFA, sfl):
        self.vE, self.vR, self.vFA, self.sfl = vE, vR, vFA, sfl
    def fork2(self):
        c = self.fork(); c.sb_setup(self.vE, self.vR, self.vFA, self.sfl); return c
    def sb_init(self, swave):
        self.a(f"""
        s_lshl_b32 s{self.sfl}, s{swave}, 8
        v_mov_b32 v{self.vE}, 0
        s_mov_b32 m0, s{self.sfl}
        v_and_b32 v{self.vFA}, 7, v0
        v_mul_u32_u24 v{self.vFA}, 260, v{self.vFA}
        """)
        self.lgi("sbw", f"ds_write_addtid_b32 v{self.vE}")
    def arrive(self):
        self.a(f"s_mov_b32 m0, s{self.sfl}\nv_add_u32 v{self.vE}, 1, v{self.vE}")
        self.lgi("sbw", f"ds_write_addtid_b32 v{self.vE}")
        if SBP == 2: self.a("s_setprio 0")
        if SBP == 3: self.a(f"s_setprio {2 if self.nar % 2 == 0 else 0}")
        self.nar += 1
    def peek(self):
        self.lgi("peek", f"ds_read_b32 v{self.vR}, v{self.vFA}")
    def check(self):
        self.lgw({"peek"})
        sl = self.a.newlabel("SBs"); bk = self.a.newlabel("SBb")
        self.a(f"v_cmp_gt_i32 vcc, v{self.vE}, v{self.vR}\ns_cbranch_vccnz {sl}")
        if SBP == 1: self.a("s_setprio 1")
        self.a.label(bk)
        if SBP == 2: self.a("s_setprio 1")
        if SBP == 3: self.a(f"s_setprio {3 if self.nar % 2 == 0 else 1}")
        self.slow.append((sl, bk, self.vE, self.vR, self.vFA))
    def emit_slow(self):
        for sl, bk, vE, vR, vFA in self.slow:
            self.a.label(sl)
            if SBP == 1: self.a("s_setprio 0")
            self.a(f"""
            s_sleep {SBSL}
            ds_read_b32 v{vR}, v{vFA}
            s_waitcnt lgkmcnt(0)
            v_cmp_gt_i32 vcc, v{vE}, v{vR}
            s_cbranch_vccnz {sl}
            s_branch {bk}
            """)
        self.slow.clear()

def spread(ops, n, k):
    return ops[len(ops) * k // n: len(ops) * (k + 1) // n]

def gen_k1():
    a = Asm()
    stamp_init(a); stamp(a, 0)
    a("""
    s_cmp_ge_u32 s2, 256
    s_cbranch_scc1 K1_end
    s_load_dwordx2 s[20:21], s[0:1], 120
    s_load_dwordx4 s[24:27], s[0:1], 80
    s_load_dwordx4 s[28:31], s[0:1], 24
    s_load_dwordx2 s[58:59], s[0:1], 96
    s_load_dwordx4 s[60:63], s[0:1], 40
    v_lshrrev_b32 v1, 6, v0
    v_and_b32 v0, 63, v0                     ; lane
    v_readfirstlane_b32 s16, v1              ; wave
    s_and_b32 s3, s2, 7                      ; xcd
    s_lshr_b32 s18, s2, 3
    s_and_b32 s17, s18, 7                    ; mt
    s_lshr_b32 s18, s18, 3                   ; k4
    v_lshlrev_b32 v1, 4, v0                  ; lane*16
    s_lshl_b32 s19, s17, 3
    s_add_u32 s19, s19, s16                  ; 8mt + w
    s_mul_i32 s32, s19, 36864
    s_add_u32 s33, s32, 18432
    s_mul_i32 s34, s19, 368640
    """)
    a(f"s_add_u32 s34, s34, {WS_H}")
    a(f"s_lshl_b32 s35, s16, 10\ns_add_u32 s35, s35, {LB}")
    a("s_waitcnt lgkmcnt(0)")
    srd(a, 4, 20, WS_SIZE)
    a("s_cmp_eq_u32 s18, 3\ns_cbranch_scc1 K1_ssm")

    def xload_ops(S, st):
        ops = []
        for j in range(2):
            for e in range(2):
                r = xreg(j, 2 * st + e)
                def f(j=j, e=e, r=r):
                    if e == 0: a(f"s_add_u32 s{36+j}, s{32+j}, {WS_X + st*2048}")
                    S.vmi(("X", st), f"buffer_load_dwordx4 v[{r}:{r+3}], v1, s[4:7], s{36+j} offen offset:{1024*e}")
                ops.append(f)
        return ops

    WSZ = 576 * 9216
    srd(a, 8, 24, WSZ)
    srd(a, 12, 26, WSZ)
    ACC = 48; FR = 24; VA = 2; VD = 14; T0 = 16
    S = Stream(a); S.sb_setup(15, 20, 21, 46)
    a(f"""
    s_mul_i32 s39, s3, 9
    s_mul_i32 s38, s18, 3
    s_add_u32 s39, s39, s38
    s_lshl_b32 s38, s39, 7                   ; line*128
    s_lshl_b32 s39, s39, 11
    s_add_u32 s39, s39, s34
    v_lshrrev_b32 v16, 3, v0
    s_lshl_b32 s40, s16, 3
    v_add_u32 v16, s40, v16
    v_mul_u32_u24 v16, 9216, v16
    v_bfe_u32 v17, v0, 4, 1
    s_and_b32 s40, s16, 1
    s_lshl_b32 s40, s40, 1
    v_or_b32 v17, s40, v17
    v_lshlrev_b32 v17, 1, v17
    v_and_b32 v18, 7, v0
    v_xor_b32 v17, v17, v18
    v_lshl_add_u32 v{VD}, v17, 4, v16
    """)
    def dma_ops(gs):
        G, st = divmod(gs, 9)
        ops = []
        for m in range(2):
            def f(m=m):
                a(f"s_add_u32 m0, s35, {st*16384 + m*8192}")
                a(f"s_add_u32 s41, s38, {G*128 + st*589824}")
                S.vmi(("D", gs), f"buffer_load_dwordx4 v{VD}, s[{8+4*m}:{11+4*m}], s41 offen lds")
            ops.append(f)
        return ops
    for st in range(2):
        for f in xload_ops(S, st) + dma_ops(st): f()
    for st in range(2, LX):
        for f in xload_ops(S, st): f()
    S.sb_init(16)
    a(f"""
    v_lshrrev_b32 v16, 4, v0
    v_lshlrev_b32 v16, 10, v16
    v_bfe_u32 v17, v0, 2, 2
    v_lshl_add_u32 v16, v17, 7, v16
    v_bfe_u32 v17, v0, 3, 2
    v_lshl_add_u32 v16, v17, 5, v16
    v_and_b32 v17, 3, v0
    v_lshl_add_u32 v16, v17, 3, v16
    v_add_u32 v16, {LB}, v16
    v_lshlrev_b32 v22, 7, v0
    """)
    for b in range(4):
        a(f"v_xor_b32 v{VA+b}, {b*32}, v16")
        a(f"v_add_u32 v{VA+4+b}, 49152, v{VA+b}")
        a(f"v_add_u32 v{VA+8+b}, 98304, v{VA+b}")
    if W2PF:
        a(f"""
        s_lshl_b32 s40, s18, 3
        s_add_u32 s40, s40, s17
        s_lshl_b32 s40, s40, 3
        s_add_u32 s40, s40, s16
        s_min_u32 s40, s40, 161
        """)
        for x in range(2):
            a(f"""
            s_mul_i32 s41, s3, 30
            s_add_u32 s41, s41, {29*x}
            s_mul_i32 s41, s41, 1366
            s_lshr_b32 s41, s41, 16              ; split
            s_cmp_ge_u32 s40, 81
            s_cselect_b32 s22, s62, s60
            s_cselect_b32 s23, s63, s61
            s_cselect_b32 s42, 81, 0
            s_sub_u32 s42, s40, s42
            s_lshl_b32 s42, s42, 13
            s_mul_i32 s47, s41, {1152*1152}
            s_lshl_b32 s45, s40, 13
            s_add_u32 s47, s47, s45
            s_cmp_eq_u32 s41, 4
            s_cselect_b32 s{48+4*x}, s22, s58
            s_cselect_b32 s{49+4*x}, s23, s59
            s_cselect_b32 s{56+x}, s42, s47
            s_mov_b32 s{50+4*x}, {4608*1152}
            s_cselect_b32 s{50+4*x}, {576*1152}, s{50+4*x}
            s_mov_b32 s{51+4*x}, 0x20000
            """)
    NBLK = 27 * 8
    def rd(gblk, k):
        if gblk >= NBLK: return
        gs, blk = divmod(gblk, 8)
        st = gs % 9
        u, m = divmod(blk, 2)
        s, e = divmod(k, 2)
        buf = FR + (gblk % 3) * 8 + s * 4 + e * 2
        reg = VA + (st // 3) * 4 + u
        off = (st % 3) * 16384 + m * 8192 + s * 4096 + e * 512
        S.lgi(("F", gblk), f"ds_read_b64_tr_b16 v[{buf}:{buf+1}], v{reg} offset:{off}")
    def acc(blk, j):
        return ACC + (blk * 2 + j) * 4
    def epi_ops(v, G):
        ops = []
        for j in range(2):
            for uu in range(2):
                g = acc(4 * v + 2 * uu, j); u = acc(4 * v + 2 * uu + 1, j)
                for r in range(4):
                    ops.append(lambda g=g, u=u, r=r: a(f"v_mul_f32 v{g+r}, v{g+r}, v{u+r}"))
            T = acc(4 * v + 1, j)
            g0 = acc(4 * v, j); g1 = acc(4 * v + 2, j)
            ops.append(lambda T=T, g=g0: a(f"v_cvt_pk_bf16_f32 v{T}, v{g}, v{g+1}"))
            ops.append(lambda T=T, g=g0: a(f"v_cvt_pk_bf16_f32 v{T+1}, v{g+2}, v{g+3}"))
            ops.append(lambda T=T, g=g1: a(f"v_cvt_pk_bf16_f32 v{T+2}, v{g}, v{g+1}"))
            ops.append(lambda T=T, g=g1: a(f"v_cvt_pk_bf16_f32 v{T+3}, v{g+2}, v{g+3}"))
            def st_(T=T, j=j):
                a(f"s_add_u32 s45, s39, {j*184320 + G*2048}")
                S.vmi("S", f"buffer_store_dwordx4 v[{T}:{T+3}], v1, s[4:7], s45 offen offset:{1024*v} {HST}")
            ops.append(st_)
        return ops
    stamp(a, 1)
    S.vmw({("X", 0), ("D", 0)}); S.lg0(); a("s_barrier")
    stamp(a, 2)
    for g in range(2):
        for k in range(4): rd(g, k)
    dnext = 2
    for gs in range(27):
        G, st = divmod(gs, 9)
        side = {b: [] for b in range(8)}
        if st == 0 and G > 0:
            e = epi_ops(1, G - 1)
            for b in range(3): side[b] += spread(e, 3, b)
        if st == 8:
            e = epi_ops(0, G)
            for b in range(3): side[5 + b] += spread(e, 3, b)
        if G == 0 and st + LX <= 8:
            x = xload_ops(S, st + LX)
            side[0] += x[:2]; side[1] += x[2:]
        for pos in (3, 6):
            if dnext <= min(gs + LD, 26) and (pos == 3 or dnext < gs + LD or True):
                if pos == 6 and G == 0 and 1 <= st <= 5 and dnext >= gs + 3: continue
                side[pos] += dma_ops(dnext); dnext += 1
        if W2PF and G == W2G and st < 8:
            def pf(x=st & 1):
                a(f"s_mov_b32 m0, {JUNK}\ns_mov_b64 exec, 0xffff")
                S.vmi("P", f"buffer_load_dword v22, s[{48+4*x}:{51+4*x}], s{56+x} offen lds")
                a(f"s_mov_b64 exec, -1\ns_add_u32 s{56+x}, s{56+x}, 2048")
            side[4].append(pf)
        for blk in range(8):
            g = gs * 8 + blk
            if blk == 0: S.vmw({("X", gs)})
            if gs < 26:
                if blk == 2:
                    S.vmw({("D", gs + 1)}); S.arrive()
                if blk == 5: S.peek()
                if blk == 6: S.check()
            S.lgw({("F", g)})
            buf = FR + (g % 3) * 8
            k = 0
            for j in range(2):
                for s in range(2):
                    c = acc(blk, j)
                    src2 = "0" if (st == 0 and s == 0) else f"v[{c}:{c+3}]"
                    x = xreg(j, 2 * st + s)
                    a(f"{MFMA} v[{c}:{c+3}], v[{buf+4*s}:{buf+4*s+3}], v[{x}:{x+3}], {src2}")
                    rd(g + 2, k)
                    for o in spread(side[blk], 4, k): o()
                    k += 1
        if st == 8: stampc(a, 3 + G)
    a("s_nop 7")
    for o in epi_ops(1, 2): o()
    if STAMP: a("s_waitcnt vmcnt(0)")
    stamp(a, 6); stamp_out(a, 1, 16)
    a("s_endpgm")
    S.emit_slow()

    a.label("K1_ssm")
    NU = 5
    ACC = 32; FR = 8; VA = 2
    BSZ = 576 * 1152
    S = Stream(a)
    a(f"""
    s_cmp_lt_u32 s16, 4
    s_cselect_b32 s22, s28, s30
    s_cselect_b32 s23, s29, s31
    """)
    srd(a, 8, 22, BSZ)
    a(f"""
    s_mul_i32 s39, s3, 5
    s_min_u32 s39, s39, 31                   ; ustart
    s_and_b32 s40, s16, 3
    s_lshl_b32 s41, s40, 3
    s_lshl_b32 s38, s39, 4
    s_add_u32 s41, s41, s38                  ; 16*ustart + 8*(w&3)
    v_lshrrev_b32 v8, 3, v0
    v_add_u32 v8, s41, v8
    v_mul_u32_u24 v8, 1152, v8
    s_and_b32 s41, s16, 1
    s_lshl_b32 s41, s41, 2
    v_lshrrev_b32 v9, 4, v0
    v_add_u32 v9, s41, v9
    v_and_b32 v10, 7, v0
    v_xor_b32 v9, v9, v10
    v_and_b32 v10, 15, v0
    v_lshrrev_b32 v11, 1, v10
    v_lshrrev_b32 v12, 4, v0
    v_xor_b32 v11, v11, v12
    v_lshlrev_b32 v11, 4, v11
    v_lshl_add_u32 v{VA}, v10, 7, v11
    v_add_u32 v{VA}, {LB}, v{VA}
    v_xor_b32 v{VA+1}, 64, v{VA}
    v_add_u32 v{VA+2}, 49152, v{VA}
    v_add_u32 v{VA+3}, 49152, v{VA+1}
    v_add_u32 v{VA+4}, 98304, v{VA}
    v_add_u32 v{VA+5}, 98304, v{VA+1}
    v_lshl_add_u32 v0, v9, 4, v8
    s_lshr_b32 s41, s16, 2
    s_mul_i32 s41, s41, 12288
    s_lshl_b32 s35, s40, 10
    s_add_u32 s35, s35, s41
    s_add_u32 s35, s35, {LB}
    """)
    def sdma_ops(st):
        slot = st % 6
        ops = []
        for t in range(3):
            def f(t=t):
                a(f"s_add_u32 m0, s35, {slot*24576 + t*4096}")
                a(f"s_mov_b32 s41, {st*128 + t*36864}")
                S.vmi(("D", st), f"buffer_load_dwordx4 v0, s[8:11], s41 offen lds")
            ops.append(f)
        return ops
    for st in range(2):
        for f in xload_ops(S, st) + sdma_ops(st): f()
    a(f"""
    s_cmp_lt_u32 s16, 4
    s_cselect_b32 s22, s24, s26
    s_cselect_b32 s23, s25, s27
    """)
    srd(a, 12, 22, 576 * 9216)
    a(f"""
    v_lshrrev_b32 v10, 4, v1
    v_mul_u32_u24 v8, 86, v10
    v_lshrrev_b32 v8, 8, v8
    v_mul_u32_u24 v9, 3, v8
    v_sub_u32 v9, v10, v9
    v_min_u32 v8, 17, v8
    v_mul_u32_u24 v8, 9216, v8
    v_mul_u32_u24 v9, 384, v9
    v_add_u32 v8, v8, v9
    s_lshl_b32 s40, s17, 2
    s_and_b32 s41, s16, 3
    s_add_u32 s40, s40, s41
    s_mul_i32 s40, s40, {18*9216}
    s_mul_i32 s41, s3, 1152
    s_add_u32 s40, s40, s41
    s_mov_b32 m0, {JUNK}
    s_nop 0
    """)
    S.vmi("P", "buffer_load_dword v8, s[12:15], s40 offen offset:128 lds")
    S.vmi("P", "buffer_load_dword v8, s[12:15], s40 offen offset:256 lds")
    NB = 2 * NU
    def srd_(gblk, s):
        if gblk >= 9 * NB: return
        st, blk = divmod(gblk, NB)
        u, comp = divmod(blk, 2)
        slot = st % 6
        buf = FR + (gblk % 3) * 8 + s * 4
        reg = VA + (slot // 2) * 2 + s
        off = (slot % 2) * 24576 + comp * 12288 + u * 2048
        S.lgi(("F", gblk), f"ds_read_b128 v[{buf}:{buf+3}], v{reg} offset:{off}")
    def sacc(u, comp, j):
        return ACC + ((u * 2 + comp) * 2 + j) * 4
    stamp(a, 1)
    S.vmw({("X", 0), ("D", 0)}); a("s_barrier")
    stamp(a, 2)
    for g in range(2):
        for s in range(2): srd_(g, s)
    CN = XR
    bar = {0: [1], 1: [2], 2: [3, 4, 5], 5: [6, 7, 8]}
    issue = {0: [("X", 2), ("D", 2), ("D", 3)], 1: [("X", 3), ("D", 4), ("D", 5)], 2: [("X", 4)], 3: [("X", 5), ("D", 6), ("D", 7)],
             4: [("X", 6), ("D", 8)], 5: [("X", 7)], 6: [("X", 8)]}
    for st in range(9):
        side = []
        for kind, t in issue.get(st, []):
            side += xload_ops(S, t) if kind == "X" else sdma_ops(t)
        for blk in range(NB):
            g = st * NB + blk
            if blk == 0: S.vmw({("X", st)})
            if blk == NB - 2 and st in bar:
                S.vmw({("D", t) for t in bar[st]})
                if st == 2: S.lg0()
                a("s_barrier")
            S.lgw({("F", g)})
            buf = FR + (g % 3) * 8
            u, comp = divmod(blk, 2)
            k = 0
            for j in range(2):
                for s in range(2):
                    c = sacc(u, comp, j)
                    src2 = "0" if (st == 0 and s == 0) else f"v[{c}:{c+3}]"
                    x = xreg(j, 2 * st + s)
                    a(f"{MFMA} v[{c}:{c+3}], v[{x}:{x+3}], v[{buf+4*s}:{buf+4*s+3}], {src2}")
                    if k % 2 == 0: srd_(g + 2, k // 2)
                    if k == 1 and blk < 6:
                        for o in spread(side, 6, blk): o()
                    k += 1
            if blk == 7 and st == 6:
                a(f"""
                v_mbcnt_lo_u32_b32 v0, -1, 0
                v_mbcnt_hi_u32_b32 v0, -1, v0
                v_and_b32 v{CN+44}, 15, v0
                v_lshlrev_b32 v{CN+44}, 6, v{CN+44}
                v_lshrrev_b32 v{CN+45}, 4, v0
                v_lshl_add_u32 v{CN+45}, v{CN+45}, 3, v{CN+44}
                s_lshl_b32 s40, s39, 10
                s_add_u32 s40, s40, {WS_CONST}
                """)
                for u2 in range(NU):
                    b = CN + 8 * u2
                    a(f"s_add_u32 s41, s40, {u2*1024}")
                    S.vmi("C", f"buffer_load_dwordx4 v[{b}:{b+3}], v{CN+44}, s[4:7], s41 offen")
                    S.vmi("C", f"buffer_load_dwordx2 v[{b+4}:{b+5}], v{CN+44}, s[4:7], s41 offen offset:40")
                    S.vmi("C", f"buffer_load_dwordx2 v[{b+6}:{b+7}], v{CN+45}, s[4:7], s41 offen offset:32")
                a("s_min_u32 s46, s16, 4\ns_lshl_b32 s41, s46, 10\ns_add_u32 s41, s41, s40")
                S.vmi("C", f"buffer_load_dwordx4 v[{CN+40}:{CN+43}], v{CN+44}, s[4:7], s41 offen offset:16")
    ssm_post(a, NU, ACC, CN, sacc, 39)
    if STAMP: a("s_waitcnt vmcnt(0)")
    stamp(a, 7); stamp_out(a, 1, 16)
    a.label("K1_end")
    a("s_endpgm")
    return ("k1_kernel", 256, 512, JUNK + 1024, a.text(), 256, 100, 256)

def ssm_post(a, NU, ACC, CN, sacc, SU):
    TP = XR + 48
    B0 = LB + 3 * 24576
    EQ, TT, SW = B0, B0 + 20480, B0 + 25600
    P_ = TP; E = TP + 10; t0 = TP + 20
    stamp(a, 3)
    a("s_waitcnt vmcnt(0)\ns_nop 7")
    stamp(a, 4)
    def breg(u, comp, i): return sacc(u, comp, i // 4) + (i % 4)
    def cmadd(dr, di, lr, li, xr, xi, br, bi, t):
        a(f"v_fma_f32 v{t}, v{lr}, v{xr}, v{br}")
        a(f"v_fma_f32 v{t+1}, v{lr}, v{xi}, v{bi}")
        a(f"v_fma_f32 v{t+1}, v{li}, v{xr}, v{t+1}")
        a(f"v_fma_f32 v{dr}, -v{li}, v{xi}, v{t}")
        a(f"v_mov_b32 v{di}, v{t+1}")
    def cmadd4(dr, di, lr, li, xr, xi, br, bi):
        if dr == br:
            a(f"v_fmac_f32 v{dr}, v{lr}, v{xr}")
            a(f"v_fmac_f32 v{di}, v{lr}, v{xi}")
        else:
            a(f"v_fma_f32 v{dr}, v{lr}, v{xr}, v{br}")
            a(f"v_fma_f32 v{di}, v{lr}, v{xi}, v{bi}")
        a(f"v_fma_f32 v{dr}, -v{li}, v{xi}, v{dr}")
        a(f"v_fmac_f32 v{di}, v{li}, v{xr}")
    E2 = t0 + 8
    for i in range(1, 8):
        for u in range(NU):
            lr, li = CN + 8 * u, CN + 8 * u + 1
            if i == 1: xr, xi = breg(u, 0, 0), breg(u, 1, 0)
            else:
                src = (E if (i - 1) % 2 == 1 else E2) + 2 * u
                xr, xi = src, src + 1
            dst = (E if i % 2 == 1 else E2) + 2 * u
            cmadd4(dst, dst + 1, lr, li, xr, xi, breg(u, 0, i), breg(u, 1, i))
    for u in range(NU):
        cr, ci = CN + 8 * u + 2, CN + 8 * u + 3
        br, bi = E + 2 * u, E + 2 * u + 1
        t = E2 + 2 * u
        a(f"v_mul_f32 v{t}, v{ci}, v{bi}")
        a(f"v_mul_f32 v{t+1}, v{ci}, v{br}")
        a(f"v_fma_f32 v{br}, v{cr}, v{br}, -v{t}")
        a(f"v_fma_f32 v{bi}, v{cr}, v{bi}, v{t+1}")
    A0 = t0 + 18; A1 = t0 + 19; A2 = t0 + 20; A3 = t0 + 21
    a(f"""
    v_and_b32 v{A2}, 15, v0
    v_lshrrev_b32 v{A3}, 4, v0
    s_lshl_b32 s40, s16, 9
    s_add_u32 s40, s40, {B0}
    v_lshl_add_u32 v{A0}, v{A2}, 5, s40          ; w*512 + p*32
    v_lshl_add_u32 v{A1}, v{A3}, 3, v{A0}        ; + q*8
    v_cmp_eq_u32 s[50:51], 1, v{A3}
    v_cmp_eq_u32 s[52:53], 2, v{A3}
    v_cmp_eq_u32 s[54:55], 3, v{A3}
    """)
    for u in range(NU):
        a(f"ds_write_b64 v{A1}, v[{E+2*u}:{E+2*u+1}] offset:{u*4096}")
    Q = t0 + 24
    a("s_waitcnt lgkmcnt(0)")
    for u in range(NU):
        a(f"ds_read_b128 v[{Q+8*u}:{Q+8*u+3}], v{A0} offset:{u*4096}")
        a(f"ds_read_b128 v[{Q+8*u+4}:{Q+8*u+7}], v{A0} offset:{u*4096 + 16}")
    a(f"s_lshl_b32 s40, s16, 3\ns_add_u32 s40, s40, {TT}\nv_lshl_add_u32 v{A1}, v{A2}, 6, s40")
    a("s_waitcnt lgkmcnt(0)")
    for step in range(1, 4):
        for u in range(NU):
            q = Q + 8 * u
            lr, li = CN + 8 * u + 4, CN + 8 * u + 5
            cmadd4(q + 2 * step, q + 2 * step + 1, lr, li, q + 2 * step - 2, q + 2 * step - 1, q + 2 * step, q + 2 * step + 1)
    for u in range(NU):
        q = Q + 8 * u
        a(f"ds_write_b64 v{A1}, v[{q+6}:{q+7}] offset:{u*1024}")
    for u in range(NU):
        q = Q + 8 * u
        for c in range(2):
            a(f"v_cndmask_b32 v{P_+2*u+c}, 0, v{q+c}, s[50:51]")
            a(f"v_cndmask_b32 v{P_+2*u+c}, v{P_+2*u+c}, v{q+2+c}, s[52:53]")
            a(f"v_cndmask_b32 v{P_+2*u+c}, v{P_+2*u+c}, v{q+4+c}, s[54:55]")
    a("s_waitcnt lgkmcnt(0)\ns_barrier")
    stamp(a, 5)
    def scale_all():
        for u in range(NU):
            cr, ci = CN + 8 * u + 2, CN + 8 * u + 3
            for i in range(8):
                br, bi = breg(u, 0, i), breg(u, 1, i)
                t = E2 + 2 * (i % 4)
                a(f"v_mul_f32 v{t}, v{ci}, v{bi}")
                a(f"v_mul_f32 v{t+1}, v{ci}, v{br}")
                a(f"v_fma_f32 v{br}, v{cr}, v{br}, -v{t}")
                a(f"v_fma_f32 v{bi}, v{cr}, v{bi}, v{t+1}")
    L32r, L32i, L256r, L256i = CN + 40, CN + 41, CN + 42, CN + 43
    TW = Q; G = Q + 16; S_ = t0
    a("s_cmp_ge_u32 s16, 5\ns_cbranch_scc1 K1_pub")
    a(f"""
    s_lshl_b32 s40, s16, 10
    s_add_u32 s40, s40, {TT}
    v_lshl_add_u32 v{A1}, v{A2}, 6, s40          ; u*1024 + p*64
    """)
    for k in range(4):
        a(f"ds_read_b128 v[{TW+4*k}:{TW+4*k+3}], v{A1} offset:{16*k}")
    a(f"""
    s_add_u32 s40, s{SU}, s16
    s_lshl_b32 s40, s40, 11
    s_add_u32 s40, s40, {WS_E}
    v_lshlrev_b32 v{A0}, 4, v{A2}
    s_waitcnt lgkmcnt(0)
    """)
    cur = (TW, TW + 1)
    for w in range(1, 8):
        d = S_ + 2 * (w % 2)
        cmadd4(d, d + 1, L32r, L32i, cur[0], cur[1], TW + 2 * w, TW + 2 * w + 1)
        cur = (d, d + 1)
    a(f"""
    v_mov_b32 v{G}, v{cur[0]}
    v_mov_b32 v{G+1}, 1
    v_mov_b32 v{G+2}, v{cur[1]}
    v_mov_b32 v{G+3}, 1
    s_lshl_b32 s41, s17, 8
    s_add_u32 s41, s41, s40
    s_mov_b64 exec, 0xffff
    buffer_store_dwordx4 v[{G}:{G+3}], v{A0}, s[4:7], s41 offen sc1
    s_mov_b64 exec, -1
    """)
    a.label("K1_pub")
    scale_all()
    a("s_cmp_ge_u32 s16, 5\ns_cbranch_scc1 K1_join")
    a(f"""
    v_mov_b32 v{S_}, 0
    v_mov_b32 v{S_+1}, 0
    s_mov_b32 s47, 0
    s_cmp_eq_u32 s17, 0
    s_cbranch_scc1 K1_lbdone
    """)
    a.label("K1_lbloop")
    for k in range(7):
        a(f"buffer_load_dwordx4 v[{G+4*k}:{G+4*k+3}], v{A0}, s[4:7], s40 offen offset:{256*k} sc1")
    a(f"""
    v_mov_b32 v{S_}, 0
    v_mov_b32 v{S_+1}, 0
    v_mov_b32 v{S_+4}, 1
    s_waitcnt vmcnt(0)
    """)
    for k in range(7):
        a(f"v_and_b32 v{S_+4}, v{S_+4}, v{G+4*k+1}")
        a(f"v_and_b32 v{S_+4}, v{S_+4}, v{G+4*k+3}")
        cmadd(S_, S_ + 1, L256r, L256i, S_, S_ + 1, G + 4 * k, G + 4 * k + 2, S_ + 2)
        if k < 6:
            a(f"s_cmp_eq_u32 s17, {k+1}\ns_cbranch_scc1 K1_lbchk")
    a.label("K1_lbchk")
    a(f"""
    v_cmp_ne_u32 vcc, 1, v{S_+4}
    s_cbranch_vccz K1_lbdone
    s_sleep 2
    s_add_u32 s47, s47, 1
    s_cmp_lt_u32 s47, 0x40000
    s_cbranch_scc1 K1_lbloop
    """)
    a.label("K1_lbdone")
    a(f"""
    s_lshl_b32 s40, s16, 10
    s_add_u32 s40, s40, {SW}
    v_lshl_add_u32 v{A1}, v{A2}, 3, s40
    ds_write_b64 v{A1}, v[{S_}:{S_+1}]
    """)
    cur = (S_, S_ + 1)
    for w in range(7):
        cmadd4(TW + 2 * w, TW + 2 * w + 1, L32r, L32i, cur[0], cur[1], TW + 2 * w, TW + 2 * w + 1)
        cur = (TW + 2 * w, TW + 2 * w + 1)
        a(f"ds_write_b64 v{A1}, v[{cur[0]}:{cur[1]}] offset:{128*(w+1)}")
    a.label("K1_join")
    a("s_waitcnt lgkmcnt(0)\ns_barrier")
    stamp(a, 6)
    a(f"""
    s_lshl_b32 s40, s16, 7
    s_add_u32 s40, s40, {SW}
    v_lshl_add_u32 v{A1}, v{A2}, 3, s40
    """)
    for u in range(NU):
        a(f"ds_read_b64 v[{E+2*u}:{E+2*u+1}], v{A1} offset:{u*1024}")
    a(f"""
    s_mul_i32 s40, s16, 10240
    s_add_u32 s40, s40, {LB}
    v_lshl_add_u32 v{A0}, v{A2}, 6, s40
    v_lshl_add_u32 v{A0}, v{A3}, 4, v{A0}
    v_lshl_add_u32 v{A1}, v{A3}, 9, s40
    v_bfe_u32 v{A2}, v0, 2, 2
    v_lshl_add_u32 v{A1}, v{A2}, 6, v{A1}
    v_and_b32 v{A2}, 3, v0
    v_lshl_add_u32 v{A1}, v{A2}, 4, v{A1}
    v_lshrrev_b32 v{A2}, 5, v0
    v_lshlrev_b32 v{A2}, 11, v{A2}
    v_and_b32 v{A3}, 31, v0
    v_lshl_add_u32 v{A2}, v{A3}, 4, v{A2}
    s_waitcnt lgkmcnt(0)
    """)
    for u in range(NU):
        cmadd4(P_ + 2 * u, P_ + 2 * u + 1, CN + 8 * u + 6, CN + 8 * u + 7, E + 2 * u, E + 2 * u + 1, P_ + 2 * u, P_ + 2 * u + 1)
    for i in range(8):
        for u in range(NU):
            lr, li = CN + 8 * u, CN + 8 * u + 1
            if i == 0: xr, xi = P_ + 2 * u, P_ + 2 * u + 1
            else: xr, xi = breg(u, 0, i - 1), breg(u, 1, i - 1)
            cmadd4(breg(u, 0, i), breg(u, 1, i), lr, li, xr, xi, breg(u, 0, i), breg(u, 1, i))
    for u in range(NU):
        q = Q + 8 * u
        for k in range(4):
            a(f"v_cvt_pk_bf16_f32 v{q+k}, v{breg(u,0,2*k)}, v{breg(u,0,2*k+1)}")
            a(f"v_cvt_pk_bf16_f32 v{q+4+k}, -v{breg(u,1,2*k)}, -v{breg(u,1,2*k+1)}")
        a(f"ds_write_b128 v{A0}, v[{q}:{q+3}] offset:{u*2048}")
        a(f"ds_write_b128 v{A0}, v[{q+4}:{q+7}] offset:{u*2048+1024}")
    a("s_waitcnt lgkmcnt(0)")
    for u in range(NU):
        for j in range(2):
            o = ACC + (u * 2 + j) * 4
            for e in range(2):
                a(f"ds_read_b64_tr_b16 v[{o+2*e}:{o+2*e+1}], v{A1} offset:{u*2048 + e*256 + j*8}")
    for u in range(NU):
        a(f"""
        s_add_u32 s40, s{SU}, {u}
        s_lshr_b32 s41, s40, 2
        s_lshl_b32 s41, s41, 12
        s_and_b32 s42, s40, 3
        s_lshl_b32 s42, s42, 9
        s_add_u32 s41, s41, s42
        s_add_u32 s41, s41, s34
        s_add_u32 s41, s41, {144*1024}
        s_add_u32 s42, s41, 184320
        s_waitcnt lgkmcnt({min(15, 4*(NU-1-u))})
        """)
        for j in range(2):
            o = ACC + (u * 2 + j) * 4
            a(f"buffer_store_dwordx4 v[{o}:{o+3}], v{A2}, s[4:7], s{41+j} offen {HST}")


def gen_k2():
    a = Asm()
    stamp_init(a); stamp(a, 0)
    a("""
    s_cmp_ge_u32 s2, 240
    s_cbranch_scc1 K2_end
    s_load_dwordx2 s[20:21], s[0:1], 120
    s_load_dwordx2 s[24:25], s[0:1], 96      ; w_down
    s_load_dwordx4 s[28:31], s[0:1], 40
    s_load_dwordx2 s[52:53], s[0:1], 104
    v_lshrrev_b32 v1, 6, v0
    v_and_b32 v0, 63, v0
    v_readfirstlane_b32 s16, v1              ; wave8
    s_and_b32 s3, s2, 7
    s_mul_i32 s3, s3, 30
    s_lshr_b32 s17, s2, 3
    s_add_u32 s3, s3, s17                    ; item
    s_mul_i32 s17, s3, 1366
    s_lshr_b32 s17, s17, 16                  ; split
    s_mul_i32 s18, s17, 48
    s_sub_u32 s18, s3, s18                   ; tile
    s_mul_i32 s19, s18, 21846
    s_lshr_b32 s19, s19, 16                  ; mt2
    s_mul_i32 s22, s19, 3
    s_sub_u32 s22, s18, s22                  ; nt
    s_and_b32 s23, s16, 3                    ; wm
    s_lshr_b32 s26, s16, 2                   ; h
    v_lshlrev_b32 v1, 4, v0
    s_lshl_b32 s32, s19, 2
    s_add_u32 s32, s32, s23
    s_mul_i32 s32, s32, 360
    s_mul_i32 s33, s17, 36
    s_add_u32 s32, s32, s33
    s_add_u32 s32, s32, s26
    s_lshl_b32 s32, s32, 10
    """)
    a(f"s_add_u32 s32, s32, {WS_H}\ns_add_u32 s33, s32, 184320")
    a(f"s_lshl_b32 s35, s16, 10\ns_add_u32 s35, s35, {LB}\ns_waitcnt lgkmcnt(0)")
    srd(a, 4, 20, WS_SIZE)
    T = 18 - S0
    ACC = 32; HF = 128; FR = HF + 8 * T; VA = 2; VD = 14; VO = 15; VC0 = 19; VC1 = 20
    BS = FR + 24
    assert BS + 16 <= 256 or True
    NP = 19; CA = 11
    pieces = []
    for st in range(S0): pieces += [(st, 0), (st, 1), (st, 2)]
    for st in range(S0, 18): pieces += [(st, 0), (st, 1)]
    PH2 = len(pieces)
    for st in range(S0, 18): pieces += [(st, 2)]
    NPC = len(pieces)
    def acc(nb, j): return ACC + (nb * 2 + j) * 4
    def hreg(st, j): return HF + (st % T) * 8 + j * 4
    sync = [(0, 1, 3), (2, 3, 5)]
    A = 3
    cov = 5
    while cov < NPC - 1:
        c = cov
        ar = max(sync[-1][1] + 0, c - 2)
        ncov = min(cov + 3, NPC - 1)
        if cov < PH2 <= ncov + 1 and False: pass
        sync.append((ar, c, ncov)); cov = ncov
    ev = sorted(sync)
    ev = [e for e in ev if e[1] <= PH2]
    cov = ev[-1][2]
    assert cov >= PH2 + 2, (cov, PH2)
    ev.append((PH2 + 1, PH2 + 2, min(NPC - 1, PH2 + 5))); cov = ev[-1][2]
    while cov < NPC - 1:
        ncov = min(cov + 3, NPC - 1)
        ev.append((max(ev[-1][1], cov - 2), cov, ncov)); cov = ncov
    arr = {e[0]: e for e in ev}; chk = {e[1]: e for e in ev}
    assert len(arr) == len(ev) and len(chk) == len(ev)
    for x, y in zip(ev, ev[1:]): assert x[1] <= y[0] and y[0] < y[1] and y[1] <= x[2], (x, y)
    def safe_after(p):
        for ar, c, _ in ev:
            if ar >= p: return c
        return 10 ** 9
    issue_at = {}
    npro = 4
    nxt = npro
    slot_of = {}; free_at = {s: -1 for s in range(NP)}
    def alloc(i, t):
        cands = [s for s in range(NP) if free_at[s] <= t]
        if safe_after(i) > PH2 - 0: cands = [s for s in cands if s < CA]
        else: cands = sorted(cands, key=lambda s: -s)
        if not cands: return None
        s = cands[0]; slot_of[i] = s; free_at[s] = safe_after(i); return s
    for i in range(npro): alloc(i, -1)
    for t in range(NPC):
        n = 0
        issue_at[t] = []
        while nxt < NPC and nxt <= t + LP and n < 2:
            if alloc(nxt, t) is None: break
            issue_at[t].append(nxt); nxt += 1; n += 1
    assert nxt == NPC
    for ar, c, cv in ev:
        for i in range(cv + 1):
            if i >= npro: assert min(t for t in issue_at if i in issue_at[t]) < ar, (i, ar)
    first_piece = {}
    for i, (st, pn) in enumerate(pieces): first_piece.setdefault(st, i)
    a(f"""
    v_bfe_u32 v16, v0, 2, 2
    v_lshlrev_b32 v16, 3, v16
    v_and_b32 v17, 3, v0
    v_add_u32 v16, v16, v17
    v_mul_u32_u24 v16, 2304, v16
    v_lshrrev_b32 v17, 4, v0
    v_lshl_add_u32 v{VO}, v17, 4, v16
    """)
    a("s_cmp_eq_u32 s17, 4\ns_cbranch_scc1 K2_ssm")
    for kind in ("ffn", "ssm"):
        S = Stream(a); S.sb_setup(16, 17, 18, 46)
        if kind == "ffn":
            srd(a, 8, 24, 4608 * 1152)
            a(f"""
            v_lshrrev_b32 v21, 3, v0
            s_lshl_b32 s40, s16, 3
            v_add_u32 v21, s40, v21
            v_mul_u32_u24 v21, 1152, v21
            v_lshrrev_b32 v22, 4, v0
            v_lshlrev_b32 v22, 1, v22
            v_and_b32 v23, 7, v0
            v_xor_b32 v22, v22, v23
            v_lshl_add_u32 v{VD}, v22, 4, v21
            s_mul_i32 s38, s17, {1152*1152}
            s_mul_i32 s40, s22, 384
            s_add_u32 s38, s38, s40
            """)
            def setup2():
                a(f"""
                v_lshrrev_b32 v21, 2, v0
                v_lshlrev_b32 v21, 7, v21
                v_bfe_u32 v22, v0, 3, 2
                v_lshl_add_u32 v21, v22, 5, v21
                v_and_b32 v22, 3, v0
                v_lshl_add_u32 v21, v22, 3, v21
                s_lshl_b32 s40, s26, 12
                s_add_u32 s40, s40, {LB}
                v_add_u32 v21, s40, v21
                """)
                for b in range(4):
                    a(f"v_xor_b32 v{VA+b}, {b*32}, v21")
                    a(f"v_add_u32 v{VA+4+b}, 57344, v{VA+b}")
                    a(f"v_add_u32 v{VA+8+b}, 114688, v{VA+b}")
            def dma(S, i):
                st, pn = pieces[i]
                a(f"s_add_u32 m0, s35, {slot_of[i]*8192}")
                a(f"s_add_u32 s41, s38, {st*64*1152 + pn*128}")
                S.vmi(("W", i), f"buffer_load_dwordx4 v{VD}, s[8:11], s41 offen lds")
            def rd(S, f, k):
                if f >= 4 * NPC: return
                i, b = divmod(f, 4); sl = slot_of[i]
                buf = FR + (f % 6) * 4 + 2 * k
                S.lgi(("F", f), f"ds_read_b64_tr_b16 v[{buf}:{buf+1}], v{VA + (sl//7)*4 + b} offset:{(sl%7)*8192 + k*2048}")
        else:
            a.label("K2_ssm")
            srd(a, 8, 28, 576 * 1152)
            srd(a, 12, 30, 576 * 1152)
            a(f"""
            s_mul_i32 s40, s22, 192
            s_lshl_b32 s41, s16, 3
            s_add_u32 s40, s40, s41
            v_lshrrev_b32 v21, 3, v0
            v_add_u32 v21, s40, v21
            v_mul_u32_u24 v21, 1152, v21
            s_and_b32 s41, s16, 1
            s_lshl_b32 s41, s41, 2
            v_lshrrev_b32 v22, 4, v0
            v_add_u32 v22, s41, v22
            v_and_b32 v23, 7, v0
            v_xor_b32 v22, v22, v23
            v_lshl_add_u32 v{VD}, v22, 4, v21
            """)
            def setup2():
                a(f"""
                v_and_b32 v21, 15, v0
                v_lshrrev_b32 v22, 1, v21
                v_lshrrev_b32 v23, 4, v0
                s_lshl_b32 s40, s26, 2
                v_add_u32 v23, s40, v23
                v_xor_b32 v22, v22, v23
                v_lshlrev_b32 v22, 4, v22
                v_lshl_add_u32 v{VA}, v21, 7, v22
                v_add_u32 v{VA}, {LB}, v{VA}
                v_add_u32 v{VA+1}, 57344, v{VA}
                v_add_u32 v{VA+2}, 114688, v{VA}
                """)
            def dma(S, i):
                st, pn = pieces[i]
                comp = st & 1
                a(f"s_add_u32 m0, s35, {slot_of[i]*8192}")
                a(f"s_mov_b32 s41, {(st>>1)*128 + pn*64*1152}")
                S.vmi(("W", i), f"buffer_load_dwordx4 v{VD}, s[{8+4*comp}:{11+4*comp}], s41 offen lds")
            def rd(S, f, k):
                if k or f >= 4 * NPC: return
                i, b = divmod(f, 4); sl = slot_of[i]
                buf = FR + (f % 6) * 4
                S.lgi(("F", f), f"ds_read_b128 v[{buf}:{buf+3}], v{VA + sl//7} offset:{(sl%7)*8192 + b*2048}")
        def hload_ops(S, st):
            ops = []
            for j in range(2):
                def f(j=j):
                    r = hreg(st, j)
                    a(f"s_add_u32 s36, s{32+j}, {st*2048}")
                    S.vmi(("H", st), f"buffer_load_dwordx4 v[{r}:{r+3}], v1, s[4:7], s36 offen")
                ops.append(f)
            return ops
        for f in hload_ops(S, 0): f()
        dma(S, 0); dma(S, 1); dma(S, 2)
        for f in hload_ops(S, 1): f()
        dma(S, 3)
        S.sb_init(16)
        setup2()
        unit_setup(a, VC0, VC1, CA)
        stamp(a, 1)
        S.vmw({("H", 0), ("W", 0), ("W", 1)}); S.lg0(); a("s_barrier")
        stamp(a, 2)
        for f in range(4):
            for k in range(2): rd(S, f, k)
        hn = [2]
        def piece(S, i, extra):
            st, pn = pieces[i]
            side = []
            if i < PH2:
                n = 0
                while hn[0] < 18 and hn[0] <= st + LH and n < 1:
                    side += hload_ops(S, hn[0]); hn[0] += 1; n += 1
            for x in issue_at[i]: side.append(lambda x=x: dma(S, x))
            side += extra
            if i in chk: S.check()
            if i in arr:
                S.vmw({("W", x) for x in range(arr[i][2] + 1)}); S.arrive()
            S.vmw({("H", st)})
            for b in range(4):
                f = 4 * i + b
                if b == 2 and (i + 1) in chk: S.peek()
                S.lgw({("F", f)})
                buf = FR + (f % 6) * 4
                for j in range(2):
                    c = acc(4 * pn + b, j); h = hreg(st, j)
                    src2 = "0" if st == 0 else f"v[{c}:{c+3}]"
                    a(f"{MFMA} v[{c}:{c+3}], v[{buf}:{buf+3}], v[{h}:{h+3}], {src2}")
                    rd(S, f + 4, j)
                    for o in spread(side, 8, 2 * b + j): o()
        for i in range(PH2):
            piece(S, i, [])
            if i == 17: stampc(a, 3)
        stampc(a, 4)
        a(f"s_cmp_eq_u32 s26, 1\ns_cbranch_scc1 K2_{kind}_h1")
        S_ = S
        for h in range(2):
            S = S_.fork2()
            if h == 1: a.label(f"K2_{kind}_h1")
            keep = ACC + 32 * h; send = ACC + 32 * (1 - h)
            ex = {}
            nop = [lambda: None] * 4
            ex[PH2] = nop + [lambda k=k: S.lgi("cw", f"ds_write_b128 v{VC0}, v[{send+4*k}:{send+4*k+3}] offset:{k*1024}") for k in range(8)]
            ex[PH2 + 2] = [lambda k=k: S.lgi(("cr", k), f"ds_read_b128 v[{send+4*k}:{send+4*k+3}], v{VC1} offset:{k*1024}") for k in range(8)]
            adds = []
            for k in range(8):
                def f(k=k):
                    S.lgw({("cr", k)})
                    for r in range(4): a(f"v_add_f32 v{keep+4*k+r}, v{keep+4*k+r}, v{send+4*k+r}")
                adds.append(f)
            ex[PH2 + 3] = adds
            B0 = hreg(S0, 0); B1 = hreg(S0 + 1, 0)
            def bl():
                for x, b in ((0, B0), (1, B1)):
                    a(f"s_add_u32 s44, s{60+x}, {WS_BASE}")
                    S.vmi("B", f"buffer_load_dwordx4 v[{b}:{b+3}], v{VO}, s[4:7], s44 offen")
                    S.vmi("B", f"buffer_load_dwordx4 v[{b+4}:{b+7}], v{VO}, s[4:7], s44 offen offset:64")
            ex[PH2 + 2] = ex[PH2 + 2] + [bl]
            OWN = hreg(S0 + 2, 0)
            def unit_out(un, src0, src1, T_, dst):
                nx = a.newlabel("K2_nx")
                for x, s_ in enumerate((src0, src1)):
                    a(f"v_cvt_pk_bf16_f32 v{T_+2*x}, v{s_}, v{s_+1}")
                    a(f"v_cvt_pk_bf16_f32 v{T_+2*x+1}, v{s_+2}, v{s_+3}")
                a(f"s_cmp_eq_u32 s49, {un % 5}\ns_cselect_b32 s44, 0x7ff00000, s{54 + un//3}")
                S.vmi("U", f"buffer_store_dwordx4 v[{T_}:{T_+3}], v1, s[4:7], s44 offen offset:{(un%3)*1024} sc1")
                a(f"s_cbranch_scc0 {nx}")
                for x, s_ in enumerate((src0, src1)):
                    for r in range(4): a(f"v_mov_b32 v{dst+4*x+r}, v{s_+r}")
                a.label(nx)
            outs = []
            for nbp in range(2):
                for j in range(2):
                    un = nbp * 2 + j
                    outs.append(lambda un=un, nbp=nbp, j=j: unit_out(un, keep + ((2*nbp)*2 + j)*4, keep + ((2*nbp+1)*2 + j)*4, send + 4*un, OWN))
            def zown():
                for r in range(8): a(f"v_mov_b32 v{OWN+r}, 0")
            ex[PH2 + 4] = [zown] + outs
            for i in range(PH2, NPC):
                piece(S, i, ex.get(i, []))
            stampc(a, 5)
            keep2 = ACC + 64 + 16 * h; send2 = ACC + 64 + 16 * (1 - h)
            a("s_nop 7")
            for k in range(4):
                a(f"ds_write_b128 v{VC0}, v[{send2+4*k}:{send2+4*k+3}] offset:{k*1024}")
            S.vmw({"B"})
            for r in range(8): a(f"v_add_f32 v{B0+r}, v{B0+r}, v{OWN+r}")
            a("s_waitcnt lgkmcnt(0)\ns_barrier")
            for k in range(4):
                a(f"ds_read_b128 v[{send2+4*k}:{send2+4*k+3}], v{VC1} offset:{k*1024}")
            for r in range(8): a(f"v_mov_b32 v{OWN+r}, 0")
            for k in range(4):
                a(f"s_waitcnt lgkmcnt({3-k})")
                for r in range(4): a(f"v_add_f32 v{keep2+4*k+r}, v{keep2+4*k+r}, v{send2+4*k+r}")
            for j in range(2):
                unit_out(4 + j, keep2 + j * 4, keep2 + 8 + j * 4, send2 + 4 * j, OWN)
            for r in range(8): a(f"v_add_f32 v{B1+r}, v{B1+r}, v{OWN+r}")
            a("s_branch K2_fin")
        S_.emit_slow()
    a.label("K2_fin")
    stamp(a, 6)
    B0 = hreg(S0, 0); B1 = hreg(S0 + 1, 0)
    srd(a, 8, 52, 2048 * 2304)
    a(f"""
    s_lshl_b32 s41, s17, 2
    s_add_u32 s40, s48, s41
    v_mov_b32 v2, 0
    v_mov_b32 v3, 1
    v_min_u32 v4, 4, v0
    v_lshlrev_b32 v4, 2, v4
    s_mov_b32 s47, 0
    s_waitcnt vmcnt(0)
    s_barrier
    """)
    stamp(a, 7)
    a(f"""
    s_cmp_lg_u32 s16, 0
    s_cbranch_scc1 K2_go
    s_mov_b64 exec, 1
    buffer_store_dword v3, v2, s[4:7], s40 offen sc1
    s_mov_b64 exec, -1
    """)
    a.label("K2_poll")
    a(f"""
    buffer_load_dword v5, v4, s[4:7], s48 offen sc1
    s_waitcnt vmcnt(0)
    v_cmp_ne_u32 vcc, 1, v5
    s_cbranch_vccz K2_go
    s_sleep {POLLSLEEP}
    s_add_u32 s47, s47, 1
    s_cmp_lt_u32 s47, 0x40000
    s_cbranch_scc1 K2_poll
    """)
    a.label("K2_go")
    a("s_barrier")
    stamp(a, 8)
    a("s_mov_b32 s45, s17")
    for k in range(4):
        a(f"""
        s_add_u32 s45, s45, 1
        s_cmp_eq_u32 s45, 5
        s_cselect_b32 s45, 0, s45
        s_mul_i32 s46, s45, {48*48*1024}
        s_add_u32 s47, s46, s62
        s_add_u32 s46, s46, s63
        """)
        for x in range(2):
            r = ACC + (k * 2 + x) * 4
            a(f"buffer_load_dwordx4 v[{r}:{r+3}], v1, s[4:7], s{47-x} offen sc1")
    a("v_mov_b32 v3, 0xffff0000")
    for sp in range(4):
        for x, b in ((0, B0), (1, B1)):
            r = ACC + (sp * 2 + x) * 4
            a(f"s_waitcnt vmcnt({7 - (sp*2+x)})")
            for k in range(4):
                a(f"v_lshlrev_b32 v5, 16, v{r+k}")
                a(f"v_and_b32 v6, v3, v{r+k}")
                a(f"v_add_f32 v{b+2*k}, v{b+2*k}, v5")
                a(f"v_add_f32 v{b+2*k+1}, v{b+2*k+1}, v6")
    for x, b in ((0, B0), (1, B1)):
        a(f"buffer_store_dwordx4 v[{b}:{b+3}], v{VO}, s[8:11], s{60+x} offen")
        a(f"buffer_store_dwordx4 v[{b+4}:{b+7}], v{VO}, s[8:11], s{60+x} offen offset:64")
    if STAMP: a("s_waitcnt vmcnt(0)")
    stamp(a, 9); stamp_out(a, 2, 16)
    a.label("K2_end")
    a("s_endpgm")
    a.label("CODE_END")
    return ("k2_kernel", 240, 512, LB + NP * 8192, a.text(), 256, 100, 256)

def unit_setup(a, VC0, VC1, CA):
    a(f"""
    s_add_u32 s49, s17, 10
    s_sub_u32 s49, s49, s16
    s_mul_i32 s47, s49, 52
    s_lshr_b32 s47, s47, 8
    s_mul_i32 s47, s47, 5
    s_sub_u32 s49, s49, s47                  ; (split - w8) mod 5
    s_lshl_b32 s47, s19, 7
    s_lshl_b32 s50, s23, 5
    s_add_u32 s47, s47, s50
    s_mul_i32 s47, s47, 2304
    s_mul_i32 s50, s22, 768
    s_add_u32 s47, s47, s50                  ; tile/wave row base
    ; early
    s_lshl_b32 s50, s26, 8
    s_add_u32 s60, s47, s50
    s_and_b32 s50, s49, 1
    s_mul_i32 s50, s50, {4*2304}
    s_add_u32 s60, s60, s50
    s_lshr_b32 s50, s49, 1
    s_lshl_b32 s50, s50, 7
    s_add_u32 s60, s60, s50
    ; late
    s_lshl_b32 s50, s26, 7
    s_add_u32 s61, s47, s50
    s_add_u32 s61, s61, 512
    s_cmp_eq_u32 s49, 0
    s_cselect_b32 s50, {4*2304}, 0
    s_add_u32 s61, s61, s50
    ; partial bases
    s_lshl_b32 s47, s18, 3
    s_add_u32 s47, s47, s16
    s_mul_i32 s47, s47, 6144
    s_add_u32 s47, s47, {WS_PART}
    s_mul_i32 s54, s17, {48*48*1024}
    s_add_u32 s54, s54, s47
    s_add_u32 s55, s54, 3072
    s_lshl_b32 s50, s49, 10
    s_add_u32 s62, s47, s50
    s_cmp_eq_u32 s49, 0
    s_cselect_b32 s50, 5120, 4096
    s_add_u32 s63, s47, s50
    s_cmp_lt_u32 s49, 4
    s_cselect_b32 s60, s60, 0x7ff00000
    s_cselect_b32 s62, s62, 0x7ff00000
    s_and_b32 s50, s49, 3
    s_cmp_eq_u32 s50, 0
    s_cselect_b32 s61, s61, 0x7ff00000
    s_cselect_b32 s63, s63, 0x7ff00000
    s_lshl_b32 s47, s18, 8
    s_add_u32 s48, s47, {WS_FLAG}
    s_lshl_b32 s47, s16, 13
    s_add_u32 s47, s47, {LB + CA*8192}
    v_add_u32 v{VC0}, s47, v1
    s_xor_b32 s50, s16, 4
    s_lshl_b32 s50, s50, 13
    s_add_u32 s50, s50, {LB + CA*8192}
    v_add_u32 v{VC1}, s50, v1
    """.replace("s_cselect_b32 s50, 5120, 4096", "s_mov_b32 s50, 4096\n    s_cselect_b32 s50, 5120, s50"))

if __name__ == "__main__":
    out = sys.argv[1] if len(sys.argv) > 1 else "out.s"
    ks = [G1.gen_k0(), gen_k1(), gen_k2()]
    open(out, "w").write(build_file(ks))
```

```python
import sys, os
from asmlib import *
import gen as G1
from gen import WS_X, WS_H, WS_BASE, WS_CONST, WS_E, WS_PART, WS_SIZE, WS_FLAG, srd, MFMA, P
from gen import stamp, stamp_init, stamp_out, STAMP, ST0, XR, xreg
import gen3
from gen3 import Stream, spread, stampc, LB

HST = "sc1"
LD = P("LD", 5); LX = P("LX", 2)
W2G = P("W2G", 1)
S0 = P("S0", 6); LP = P("LP", 14); LH = P("LH", 4)
POLLSLEEP = P("POLLSLEEP", 2)
SPC = [int(x) for x in os.environ.get("SPC", "4,8,12").split(",")]
NPRE = P("NPRE", 12); HPRE = P("HPRE", 6)
XNOLD = P("XNOLD", 0); XNOSB = P("XNOSB", 0); XNOW = P("XNOW", 0)
GSP = [int(x) for x in os.environ.get("GSP", "-1").split(",")]
OST = os.environ.get("OST", "")
NP = 19; CA = 11
JUNK = LB + NP * 8192
WS_PF = WS_FLAG + 16384
OOB = "0x7ff00000"
KNAME = "parallel_sum__ssm_conv_s5__glu_gated_bilinear__prompt_kernel"
PS0 = P("PS0", 8); PS1 = P("PS1", 4); RSH = P("RSH", 7); WPF = P("WPF", 0); ND0 = P("ND0", 2); SPE = P("SPE", 1); SPF = P("SPF", 2); DBGT = P("DBGT", 0); EPF = P("EPF", 1); WPS = P("WPS", 7); NDE = P("NDE", 0); NDS = P("NDS", 5)
WS_EF = WS_FLAG + 65536; TWF = P("TWF", 0); TPS = P("TPS", 3)
WS_RDY = WS_FLAG + 32768
VA = 2; VD = 6; VE = 7; VR = 8; VFA = 9; VO = 10; VC0 = 11; VC1 = 12; VPA = 13; VPF = 14; VT = 15
FR = 16; HF = XR; T = 18 - S0
DF = P("DF", 6)
VA2 = [VA, 240, 244]
PANEL = [208, 48, 80]
SP = XR + (S0 % (18 - S0)) * 8
assert T <= 12

def poll_ops(S, a, need, res):
    def issue():
        S.vmi(("poll", need), f"buffer_load_dword v{res}, v{VPA}, s[4:7], s57 offen sc1")
    def check():
        S.vmw({("poll", need)})
        sl = a.newlabel("PLs"); bk = a.newlabel("PLb")
        a(f"v_cmp_gt_u32 vcc, {need}, v{res}\ns_cbranch_vccnz {sl}")
        a.label(bk)
        S.pslow.append((sl, bk, need, res))
    return issue, check
def allset_ops(S, a, res, vtmp):
    ld = f"buffer_load_dword v{res}, v{vtmp}, s[24:27], 0 offen offset:128 sc1"
    def issue():
        a(f"v_and_b32 v{vtmp}, 7, v0\nv_lshlrev_b32 v{vtmp}, 2, v{vtmp}")
        S.vmi("allset", ld)
    def check():
        S.vmw({"allset"})
        sl = a.newlabel("ASs"); bk = a.newlabel("ASb")
        a(f"v_cmp_ne_u32 vcc, 1, v{res}\ns_cbranch_vccnz {sl}")
        a.label(bk)
        S.aslow.append((sl, bk, ld, res))
    return issue, check
def emit_pslow(S, a):
    for sl, bk, ld, res in getattr(S, "aslow", []):
        lp = a.newlabel("ASl")
        a.label(sl)
        a("s_mov_b32 s47, 0")
        a.label(lp)
        a(f"""
        s_sleep 4
        {ld}
        s_waitcnt vmcnt(0)
        v_cmp_ne_u32 vcc, 1, v{res}
        s_cbranch_vccz {bk}
        s_add_u32 s47, s47, 1
        s_cmp_lt_u32 s47, 0x40000
        s_cbranch_scc1 {lp}
        s_branch {bk}
        """)
    S.aslow = []
    for sl, bk, need, res in S.pslow:
        lp = a.newlabel("PLl")
        a.label(sl)
        a("s_mov_b32 s47, 0")
        a.label(lp)
        a(f"""
        s_sleep 1
        buffer_load_dword v{res}, v{VPA}, s[4:7], s57 offen sc1
        s_waitcnt vmcnt(0)
        v_cmp_gt_u32 vcc, {need}, v{res}
        s_cbranch_vccz {bk}
        s_add_u32 s47, s47, 1
        s_cmp_lt_u32 s47, 0x40000
        s_cbranch_scc1 {lp}
        s_branch {bk}
        """)
    S.pslow.clear()
def flag_store(S, a, val):
    a(f"v_mov_b32 v{VT}, {val}\ns_mov_b64 exec, 1")
    S.vmi("flag", f"buffer_store_dword v{VT}, v1, s[4:7], s56 offen sc1")
    a("s_mov_b64 exec, -1")

class K2Plan:
    def __init__(self, pre, avail, first_sync):
        pc = []
        for st in range(S0): pc += [(st, 0), (st, 1), (st, 2)]
        for st in range(S0, 18): pc += [(st, 0), (st, 1)]
        self.PH2 = PH2 = len(pc)
        for st in range(S0, 18): pc += [(st, 2)]
        self.pieces = pc; self.NPC = NPC = len(pc)
        ev = list(first_sync); cov = ev[-1][2]
        while True:
            c = cov - 1; ar = max(ev[-1][1], c - 2, 0)
            if c > PH2: break
            ncov = cov + 3
            if ncov > PH2 + 1: ncov = PH2 + 4
            ev.append((ar, c, ncov)); cov = ncov
        assert cov == PH2 + 4
        ev.append((PH2, PH2 + 1, PH2 + 5))
        ev.append((PH2 + 2, PH2 + 3, min(NPC - 1, PH2 + 8))); cov = ev[-1][2]
        ev.append((PH2 + 5, PH2 + 7, NPC - 1))
        self.ev = ev
        self.arr = {e[0]: e for e in ev if e[0] >= 0}; self.chk = {e[1]: e for e in ev if e[1] >= 0}
        for x, y in zip(ev, ev[1:]): assert x[1] <= y[0] < y[1] and (y[1] < x[2] or x[2] == NPC - 1), (x, y)
        def safe_after(p):
            for ar, c, _ in ev:
                if ar >= p: return c
            return 10 ** 9
        self.slot = {}; free_at = dict(avail)
        def alloc(i, t, forced=None):
            cands = [s for s in range(NP) if free_at[s] <= t]
            if safe_after(i) > PH2: cands = [s for s in cands if s < CA]
            else:
                cands = sorted(cands, key=lambda s: -s)
                if forced is None and i >= PH2 - 14 and i > t + 9: cands = [s for s in cands if s >= CA]
            if forced is not None: cands = [forced]
            if not cands: return None
            s = cands[0]; self.slot[i] = s; free_at[s] = safe_after(i); return s
        for i, s in enumerate(pre): alloc(i, -1, s)
        nxt = len(pre); self.issue_at = {}
        for t in range(NPC):
            self.issue_at[t] = []
            while nxt < NPC and nxt <= t + LP and len(self.issue_at[t]) < 2:
                if alloc(nxt, t) is None: break
                self.issue_at[t].append(nxt); nxt += 1
        assert nxt == NPC
        for ar, c, cv in ev:
            for i in range(len(pre), cv + 1):
                assert min(t for t in self.issue_at if i in self.issue_at[t]) < ar, (i, ar)

def k2acc(nb, j): return PANEL[nb // 4] + ((nb % 4) * 2 + j) * 4
def hreg(st, j): return HF + (st % T) * 8 + j * 4

def k2_main(a, S, plan, kind, dma, rd, hload_ops, hn, frbuf, extra0, hgate):
    PH2, NPC, pieces = plan.PH2, plan.NPC, plan.pieces
    def piece(S, i, extra):
        st, pn = pieces[i]
        pre, side = [], []
        for o in extra:
            (pre if getattr(o, "pre", False) else side).append(o)
        ld = []
        if hn[0] < 18 and (hn[0] <= st + LH) and i >= hgate.get(hn[0], 0) and i < PH2:
            ld += hload_ops(S, hn[0]); hn[0] += 1
        for x in plan.issue_at[i]: ld.append(lambda x=x: dma(S, x))
        if XNOLD and 12 <= i:
            for o in ld:
                sv = a.lines[:]; o(); a.lines[:] = sv
            S.vd = len(S.vm); ld = []
        side = ld + side
        if XNOSB and 12 <= i < PH2 - 3: pass
        elif i in plan.chk: S.check()
        if XNOSB and 12 <= i < PH2 - 3: pass
        elif i in plan.arr:
            S.vmw({("W", x) for x in range(plan.arr[i][2] + 1)}); S.arrive()
        for o in pre: o()
        assert ("H", st) in S.vm, (i, st)
        S.vmw({("H", st)})
        for b in range(4):
            f = 4 * i + b
            if b == 1 and (i + 1) in plan.chk and not (XNOSB and 12 <= i + 1 < PH2 - 3): S.peek()
            if not (XNOW and b % 2): S.lgw({("F2", f + XNOW)})
            buf = frbuf(f)
            for j in range(2):
                c = k2acc(4 * pn + b, j); h = hreg(st, j)
                src2 = "0" if st == 0 else f"v[{c}:{c+3}]"
                a(f"{MFMA} v[{c}:{c+3}], v[{buf}:{buf+3}], v[{h}:{h+3}], {src2}")
                rd(S, f + DF, j)
                for o in spread(side, 8, 2 * b + j): o()
    for i in range(PH2):
        piece(S, i, extra0.get(i, []))
        if i == 17: stamp(a, 8)
        if kind == "ffn":
            for si, pi_ in zip((6, 7, 15), SPC):
                if i == pi_: stamp(a, si)
    stamp(a, 9)
    a(f"s_cmp_eq_u32 s42, 1\ns_cbranch_scc1 K2_{kind}_h1")
    S_ = S
    B0 = SP; B1 = SP + 8
    for h in range(2):
        S = S_.fork2(); S.pslow = S_.pslow
        if h == 1: a.label(f"K2_{kind}_h1")
        keep = PANEL[h]; send = PANEL[1 - h]
        ex = {}
        nop = [lambda: None]
        wr = [lambda k=k: S.lgi("cw", f"ds_write_b128 v{VC0}, v[{send+4*k}:{send+4*k+3}] offset:{k*1024}") for k in range(8)]
        ex[PH2] = nop * 2 + wr[:4]; ex[PH2 + 1] = wr[4:]
        ex[PH2 + 2] = [lambda r=r: a(f"v_mov_b32 v{SP+2*r}, 0\nv_mov_b32 v{SP+2*r+1}, 0") for r in range(8)]
        ex[PH2 + 3] = [lambda k=k: S.lgi(("cr", k), f"ds_read_b128 v[{send+4*k}:{send+4*k+3}], v{VC1} offset:{k*1024}") for k in range(8)]
        def add2(k, r0):
            S.lgw({("cr", k)})
            for r in (r0, r0 + 1): a(f"v_add_f32 v{keep+4*k+r}, v{keep+4*k+r}, v{send+4*k+r}")
        def unit_ops(un, src0, src1, T_, dst):
            ops = []
            for x, s_ in enumerate((src0, src1)):
                ops.append(lambda x=x, s_=s_: a(f"v_cvt_pk_bf16_f32 v{T_+2*x}, v{s_}, v{s_+1}\nv_cvt_pk_bf16_f32 v{T_+2*x+1}, v{s_+2}, v{s_+3}"))
            def fin():
                nx = a.newlabel("K2_nx")
                a(f"s_cmp_eq_u32 s49, {un % 5}\ns_cselect_b32 s44, {OOB}, s{54 + un//3}")
                S.vmi("U", f"buffer_store_dwordx4 v[{T_}:{T_+3}], v1, s[4:7], s44 offen offset:{(un%3)*1024} sc1")
                a(f"s_cbranch_scc0 {nx}")
                for x, s_ in enumerate((src0, src1)):
                    for r in range(4): a(f"v_add_f32 v{dst+4*x+r}, v{dst+4*x+r}, v{s_+r}")
                a.label(nx)
            ops.append(fin)
            return ops
        for nbp in range(2):
            ops = []
            for k in range(4 * nbp, 4 * nbp + 4):
                ops += [lambda k=k: add2(k, 0), lambda k=k: add2(k, 2)]
            ex[PH2 + 4 + 2 * nbp] = ops
            o2 = []
            for j in range(2):
                o2 += unit_ops(2 * nbp + j, keep + (4*nbp + j) * 4, keep + (4*nbp + 2 + j) * 4, send + (4*nbp + j) * 4, B0)
            ex[PH2 + 5 + 2 * nbp] = o2
        o1, o2_, o3 = tail_setup_ops(a, S)
        ex[PH2 + 3] = ex[PH2 + 3] + [lambda: tail_ptrs(a)]
        ex[PH2 + 6] = ex[PH2 + 6] + o1[:18]; ex[PH2 + 7] = ex[PH2 + 7] + o1[18:]
        ex[PH2 + 8] = o2_ + o3[:6]; ex[PH2 + 9] = o3[6:]
        assert max(t for t in plan.issue_at if plan.issue_at[t]) < PH2 + 3
        for i in range(PH2, NPC):
            piece(S, i, ex.get(i, []))
        stamp(a, 10)
        keep2 = PANEL[2] + 16 * h; send2 = PANEL[2] + 16 * (1 - h)
        a("s_nop 7")
        for k in range(4):
            a(f"ds_write_b128 v{VC0}, v[{send2+4*k}:{send2+4*k+3}] offset:{k*1024}")
        a("s_waitcnt lgkmcnt(0)\ns_barrier")
        for k in range(4):
            a(f"ds_read_b128 v[{send2+4*k}:{send2+4*k+3}], v{VC1} offset:{k*1024}")
        for k in range(4):
            a(f"s_waitcnt lgkmcnt({3-k})")
            for r in range(4): a(f"v_add_f32 v{keep2+4*k+r}, v{keep2+4*k+r}, v{send2+4*k+r}")
        for j in range(2):
            for o in unit_ops(4 + j, keep2 + j * 4, keep2 + 8 + j * 4, send2 + 4 * j, B1): o()
        a("s_branch K2_fin")
    S_.emit_slow(); emit_pslow(S_, a)

def base_load(S, a):
    for x in range(2):
        b = SP + 8 * x
        a(f"s_add_u32 s44, s{60+x}, {WS_BASE}")
        S.vmi("B", f"buffer_load_dwordx4 v[{b}:{b+3}], v{VO}, s[4:7], s44 offen")
        S.vmi("B", f"buffer_load_dwordx4 v[{b+4}:{b+7}], v{VO}, s[4:7], s44 offen offset:64")

TVB = HF + ((S0 + 2) % T) * 8
def tail_ptrs(a):
    a("s_load_dwordx2 s[52:53], s[0:1], 104\ns_load_dwordx2 s[28:29], s[0:1], 0\ns_load_dwordx2 s[30:31], s[0:1], 64")
def tail_setup_ops(a, S):
    TV = TVB; BL = TVB + 8
    t1 = f"""
    v_lshrrev_b32 v{TV}, 1, v{VO}
    v_lshrrev_b32 v{TV+3}, 4, v0
    v_lshlrev_b32 v{TV+1}, 3, v{TV+3}
    v_lshrrev_b32 v{TV+2}, 1, v{TV+3}
    v_lshlrev_b32 v{TV+2}, 8, v{TV+2}
    v_and_b32 v{TV+4}, 15, v0
    v_lshl_add_u32 v{TV+2}, v{TV+4}, 4, v{TV+2}
    v_and_b32 v{TV+4}, 1, v{TV+3}
    v_lshl_add_u32 v{TV+2}, v{TV+4}, 3, v{TV+2}
    s_mul_i32 s32, s99, 6
    s_lshl_b32 s33, s42, 1
    s_add_u32 s34, s32, s33
    s_lshr_b32 s33, s49, 1
    s_add_u32 s34, s34, s33
    s_add_u32 s35, s32, s42
    s_add_u32 s35, s35, 4
    s_lshl_b32 s32, s98, 2
    s_and_b32 s33, s16, 3
    s_add_u32 s32, s32, s33
    s_mul_i32 s32, s32, 36
    s_and_b32 s33, s49, 1
    s_mul_i32 s33, s33, 18
    s_add_u32 s36, s32, s33
    s_add_u32 s36, s36, s34
    s_lshl_b32 s36, s36, 10
    s_cmp_eq_u32 s49, 0~s_cselect_b32 s33, 18, 0
    s_add_u32 s37, s32, s33
    s_add_u32 s37, s37, s35
    s_lshl_b32 s37, s37, 10
    s_lshl_b32 s34, s34, 6
    s_lshl_b32 s35, s35, 6
    s_lshr_b32 s38, s60, 1
    s_lshr_b32 s39, s61, 1
    s_cmp_eq_u32 s49, 4~s_cselect_b32 s36, {OOB}, s36
    s_and_b32 s33, s49, 3~s_cselect_b32 s37, {OOB}, s37
    """
    ops = [(lambda l=l: a(l.replace("~", "\n"))) for l in t1.strip().split("\n")]
    def srds():
        S.lg0()
        srd(a, 8, 52, 2048 * 2304); srd(a, 12, 28, 2048 * 1152); srd(a, 20, 30, 1152)
    lds = []
    for x in range(2):
        for n in range(2):
            r = BL + 12 * x + 6 * n
            lds.append(lambda r=r, x=x, n=n: S.vmi("B", f"buffer_load_dwordx2 v[{r}:{r+1}], v{TV}, s[12:15], s{38+x} offen offset:{32*n}"))
            lds.append(lambda r=r, x=x, n=n: S.vmi("B", f"buffer_load_dwordx2 v[{r+2}:{r+3}], v{TV+2}, s[4:7], s{36+x} offen offset:{512*n} sc1"))
            lds.append(lambda r=r, x=x, n=n: S.vmi("B", f"buffer_load_dwordx2 v[{r+4}:{r+5}], v{TV+1}, s[20:23], s{34+x} offen offset:{32*n}"))
    return ops, [srds], lds

def k2_scalars(a):
    a(f"""
    s_and_b32 s23, s16, 3
    s_lshr_b32 s42, s16, 2
    s_lshl_b32 s30, s98, 2
    s_add_u32 s30, s30, s23
    s_mul_i32 s30, s30, 360
    s_mul_i32 s31, s97, 36
    s_add_u32 s30, s30, s31
    s_add_u32 s30, s30, s42
    s_lshl_b32 s30, s30, 10
    s_add_u32 s30, s30, {WS_H}
    s_add_u32 s31, s30, 184320
    s_lshl_b32 s57, s98, 2
    s_add_u32 s57, s57, s23
    s_lshl_b32 s57, s57, 7
    s_mul_i32 s47, s97, 24
    s_add_u32 s57, s57, s47
    s_add_u32 s57, s57, {WS_PF}
    s_mul_i32 s43, s98, 3
    s_add_u32 s43, s43, s99                  ; tile
    s_add_u32 s49, s97, 10
    s_sub_u32 s49, s49, s16
    s_mul_i32 s47, s49, 52
    s_lshr_b32 s47, s47, 8
    s_mul_i32 s47, s47, 5
    s_sub_u32 s49, s49, s47
    s_lshl_b32 s47, s98, 7
    s_lshl_b32 s50, s23, 5
    s_add_u32 s47, s47, s50
    s_mul_i32 s47, s47, 2304
    s_mul_i32 s50, s99, 768
    s_add_u32 s47, s47, s50
    s_lshl_b32 s50, s42, 8
    s_add_u32 s60, s47, s50
    s_and_b32 s50, s49, 1
    s_mul_i32 s50, s50, {4*2304}
    s_add_u32 s60, s60, s50
    s_lshr_b32 s50, s49, 1
    s_lshl_b32 s50, s50, 7
    s_add_u32 s60, s60, s50
    s_lshl_b32 s50, s42, 7
    s_add_u32 s61, s47, s50
    s_add_u32 s61, s61, 512
    s_cmp_eq_u32 s49, 0
    s_cselect_b32 s50, {4*2304}, 0
    s_add_u32 s61, s61, s50
    s_lshl_b32 s47, s43, 3
    s_add_u32 s47, s47, s16
    s_mul_i32 s47, s47, 6144
    s_add_u32 s47, s47, {WS_PART}
    s_mul_i32 s54, s97, {48*48*1024}
    s_add_u32 s54, s54, s47
    s_add_u32 s55, s54, 3072
    s_lshl_b32 s50, s49, 10
    s_add_u32 s62, s47, s50
    s_cmp_eq_u32 s49, 0
    s_mov_b32 s50, 4096
    s_cselect_b32 s50, 5120, s50
    s_add_u32 s63, s47, s50
    s_cmp_lt_u32 s49, 4
    s_cselect_b32 s60, s60, {OOB}
    s_cselect_b32 s62, s62, {OOB}
    s_and_b32 s50, s49, 3
    s_cmp_eq_u32 s50, 0
    s_cselect_b32 s61, s61, {OOB}
    s_cselect_b32 s63, s63, {OOB}
    s_lshl_b32 s47, s43, 3
    s_add_u32 s47, s47, {"s16" if TWF else "0"}
    s_lshl_b32 s47, s47, 7
    s_add_u32 s48, s47, {WS_EF}
    """)
def k2_vregs(a, npoll):
    a(f"""
    v_bfe_u32 v{VO}, v0, 2, 2
    v_lshlrev_b32 v{VO}, 3, v{VO}
    v_and_b32 v{VT}, 3, v0
    v_add_u32 v{VO}, v{VO}, v{VT}
    v_mul_u32_u24 v{VO}, 2304, v{VO}
    v_lshrrev_b32 v{VT}, 4, v0
    v_lshl_add_u32 v{VO}, v{VT}, 4, v{VO}
    s_lshl_b32 s47, s16, 13
    s_add_u32 s47, s47, {LB + CA*8192}
    v_add_u32 v{VC0}, s47, v1
    s_xor_b32 s50, s16, 4
    s_lshl_b32 s50, s50, 13
    s_add_u32 s50, s50, {LB + CA*8192}
    v_add_u32 v{VC1}, s50, v1
    v_min_u32 v{VPA}, {npoll-1}, v0
    v_lshlrev_b32 v{VPA}, 2, v{VPA}
    """)

STG = LB + 131072
CT = LB + 147456
LNR = 48

def ln_issue(a, S):
    a(f"""
    s_lshl_b32 s40, s3, 2
    s_add_u32 s40, s40, s18                  ; c = 4xcd + k4
    s_lshr_b32 s41, s40, 1
    s_lshl_b32 s44, s17, 4
    s_add_u32 s44, s44, s41                  ; mb
    s_and_b32 s45, s40, 1                    ; half
    s_lshl_b32 s47, s45, 3
    s_add_u32 s47, s47, s16                  ; i
    s_lshr_b32 s50, s44, 1
    s_lshl_b32 s50, s50, 5
    s_and_b32 s51, s44, 1
    s_lshl_b32 s51, s51, 2
    s_add_u32 s50, s50, s51
    s_lshr_b32 s51, s47, 2
    s_lshl_b32 s51, s51, 3
    s_add_u32 s50, s50, s51
    s_and_b32 s51, s47, 3
    s_add_u32 s50, s50, s51                  ; t
    s_mul_i32 s50, s50, 1152
    v_cmp_gt_u32 vcc, 36, v0
    v_mov_b32 v{LNR+40}, 0x7ffffff0
    s_mul_i32 s100, s44, 18432
    s_lshl_b32 s45, s45, 7
    v_cndmask_b32 v{LNR+41}, v{LNR+40}, v1, vcc
    s_add_u32 s100, s100, s45
    s_lshl_b32 s101, s17, 5
    s_add_u32 s101, s101, s40
    s_waitcnt lgkmcnt(0)
    """)
    srd(a, 8, 48, 2048 * 1152)
    S.vmi("x", f"buffer_load_dwordx4 v[{LNR}:{LNR+3}], v{LNR+41}, s[8:11], s50 offen")
    S.vmi("x", f"buffer_load_dwordx4 v[{LNR+4}:{LNR+7}], v{LNR+41}, s[8:11], s50 offen offset:576")

def ln_compute(a, S, hook=None):
    X = LNR + 8; M = LNR + 24; MK = LNR + 42
    a(f"v_mov_b32 v{MK}, 0xffff0000\nv_cmp_gt_u32 vcc, 36, v0")
    S.vmw({"x"})
    if STAMP and SPC[0] < 0: stamp(a, 6)
    a(f"v_mov_b32 v{LNR+49}, 0\ns_lshr_b32 s45, s16, 1\ns_lshl_b32 s45, s45, 8")
    S.vmi("z", f"buffer_load_dwordx2 v[{LNR+50}:{LNR+51}], v{LNR+49}, s[24:27], s45 offen sc1")
    if hook: hook()
    for k in range(8):
        a(f"v_lshlrev_b32 v{X+2*k}, 16, v{LNR+k}\nv_and_b32 v{X+2*k+1}, v{MK}, v{LNR+k}")
    def reduce64(r, t):
        a(f"""
        s_nop 1
        v_add_f32_dpp v{t}, v{r}, v{r} quad_perm:[1,0,3,2] row_mask:0xf bank_mask:0xf
        s_nop 1
        v_add_f32_dpp v{r}, v{t}, v{t} quad_perm:[2,3,0,1] row_mask:0xf bank_mask:0xf
        s_nop 1
        v_add_f32_dpp v{t}, v{r}, v{r} row_half_mirror row_mask:0xf bank_mask:0xf
        s_nop 1
        v_add_f32_dpp v{r}, v{t}, v{t} row_mirror row_mask:0xf bank_mask:0xf
        s_nop 0
        v_mov_b32 v{t}, v{r}
        s_nop 1
        v_permlane16_swap_b32 v{r}, v{t}
        s_nop 1
        v_add_f32 v{r}, v{r}, v{t}
        s_nop 0
        v_mov_b32 v{t}, v{r}
        s_nop 1
        v_permlane32_swap_b32 v{r}, v{t}
        s_nop 1
        v_add_f32 v{r}, v{r}, v{t}
        """)
    for c in range(4): a(f"v_add_f32 v{M+c}, v{X+c}, v{X+4+c}")
    for k in range(2, 4):
        for c in range(4): a(f"v_add_f32 v{M+c}, v{M+c}, v{X+4*k+c}")
    a(f"v_add_f32 v{M}, v{M}, v{M+1}\nv_add_f32 v{M+2}, v{M+2}, v{M+3}\nv_add_f32 v{M}, v{M}, v{M+2}")
    reduce64(M, M + 1)
    a(f"v_mul_f32 v{M}, 0x3ae38e39, v{M}")
    V = M + 4; D = M + 8
    for k in range(4):
        for c in range(4):
            a(f"v_sub_f32 v{D+c}, v{X+4*k+c}, v{M}")
            a(f"v_mul_f32 v{V+c}, v{D+c}, v{D+c}" if k == 0 else f"v_fmac_f32 v{V+c}, v{D+c}, v{D+c}")
    a(f"v_add_f32 v{V}, v{V}, v{V+1}\nv_add_f32 v{V+2}, v{V+2}, v{V+3}\nv_add_f32 v{V}, v{V}, v{V+2}")
    a(f"v_cndmask_b32 v{V}, 0, v{V}, vcc")
    reduce64(V, V + 1)
    a(f"""
    v_mul_f32 v{V}, 0x3ae38e39, v{V}
    v_cvt_pk_bf16_f32 v{M+2}, v{M}, v{V}
    v_lshlrev_b32 v{M}, 16, v{M+2}
    v_and_b32 v{V}, v{MK}, v{M+2}
    v_add_f32 v{V}, 0x3727c5ac, v{V}
    v_cvt_pk_bf16_f32 v{V}, v{V}, v{V}
    v_and_b32 v{V}, v{MK}, v{V}
    v_sqrt_f32 v{V}, v{V}
    s_lshl_b32 s40, s16, 4
    v_cvt_pk_bf16_f32 v{V}, v{V}, v{V}
    v_and_b32 v{V}, v{MK}, v{V}
    v_rcp_f32 v{V}, v{V}
    s_add_u32 s40, s40, {STG}
    v_lshl_add_u32 v{MK+1}, v1, 3, s40
    """)
    for k in range(8):
        a(f"v_sub_f32 v{X+2*k}, v{X+2*k}, v{M}\nv_sub_f32 v{X+2*k+1}, v{X+2*k+1}, v{M}")
    for k in range(8):
        a(f"v_cvt_pk_bf16_f32 v{LNR+k}, v{X+2*k}, v{X+2*k+1}")
    for k in range(8):
        a(f"v_lshlrev_b32 v{X+2*k}, 16, v{LNR+k}\nv_and_b32 v{X+2*k+1}, v{MK}, v{LNR+k}")
    for k in range(16):
        a(f"v_mul_f32 v{X+k}, v{X+k}, v{V}")
    for k in range(8):
        a(f"v_cvt_pk_bf16_f32 v{LNR+k}, v{X+2*k}, v{X+2*k+1}")
    a(f"""
    s_mov_b64 exec, 0xfffffffff
    ds_write_b128 v{MK+1}, v[{LNR}:{LNR+3}]
    ds_write_b128 v{MK+1}, v[{LNR+4}:{LNR+7}] offset:4608
    s_mov_b64 exec, -1
    s_lshl_b32 s40, s16, 10
    s_add_u32 s40, s40, {STG}
    v_add_u32 v{MK+1}, s40, v1
    v_add_u32 v{MK+2}, {STG + 8192}, v1
    v_lshrrev_b32 v{MK+3}, 3, v0
    v_lshlrev_b32 v{MK+3}, 8, v{MK+3}
    v_and_b32 v{MK+4}, 7, v0
    v_lshl_add_u32 v{MK+3}, v{MK+4}, 4, v{MK+3}
    s_lshl_b32 s40, s16, 11
    s_add_u32 s40, s40, s100
    s_add_u32 s41, s100, 16384
    s_cmp_eq_u32 s16, 0
    s_cselect_b32 s41, s41, {OOB}
    {"s_memrealtime s[78:79]" if STAMP == 1 and SPC[0] < 0 else ""}
    s_waitcnt lgkmcnt(0)
    s_barrier
    {"s_memrealtime s[94:95]" if STAMP == 1 and SPC[0] < 0 else ""}
    ds_read_b128 v[{LNR}:{LNR+3}], v{MK+1}
    ds_read_b128 v[{LNR+4}:{LNR+7}], v{MK+2}
    s_waitcnt lgkmcnt(1)
    """.replace("s_mov_b64 exec, 0xfffffffff", "s_mov_b32 exec_hi, 15"))
    S.vmi("xs", f"buffer_store_dwordx4 v[{LNR}:{LNR+3}], v{MK+3}, s[4:7], s40 offen sc1")
    a("s_waitcnt lgkmcnt(0)")
    S.vmi("xs", f"buffer_store_dwordx4 v[{LNR+4}:{LNR+7}], v{MK+3}, s[4:7], s41 offen sc1")
    S.ld = len(S.lg)

def nonce_get(a):
    sk = a.newlabel("NCs"); lp = a.newlabel("NCl")
    n = LNR + 50
    a(f"""
    s_mov_b32 s47, 0
    """)
    a.label(lp)
    a(f"""
    v_cmp_eq_u32 vcc, 0, v{n+1}
    s_cbranch_vccz {sk}
    buffer_load_dwordx2 v[{n}:{n+1}], v{LNR+49}, s[24:27], 0 offen sc1
    s_waitcnt vmcnt(0)
    s_add_u32 s47, s47, 1
    s_cmp_lt_u32 s47, 0x40000
    s_cbranch_scc1 {lp}
    """)
    a.label(sk)

def ln_handshake(a, S, tag, between):
    t = LNR + 52; n = LNR + 50
    go = a.newlabel("LNgo"); lp = a.newlabel("LNp"); ok = a.newlabel("LNok"); w1 = a.newlabel("LNw1"); nn = a.newlabel("LNnn")
    a(f"""
    s_lshl_b32 s41, s101, {RSH}
    s_add_u32 s41, s41, {WS_RDY}
    v_and_b32 v{t}, 31, v0
    v_lshlrev_b32 v{t}, {RSH}, v{t}
    s_lshl_b32 s40, s17, {RSH+5}
    s_add_u32 s40, s40, {WS_RDY}
    """)
    S.vmw({"xs", "z"})
    a(f"s_cmp_ge_u32 s16, 2\ns_cbranch_scc1 {nn}")
    nonce_get(a)
    a.label(nn)
    a("s_barrier")
    stamp(a, 1)
    a(f"""
    s_cmp_lg_u32 s16, 0
    s_cbranch_scc1 {w1}
    s_mov_b64 exec, 1
    buffer_store_dwordx2 v[{n}:{n+1}], v1, s[4:7], s41 offen sc1
    s_mov_b64 exec, -1
    s_branch {go}
    """)
    a.label(w1)
    a(f"""
    s_cmp_lg_u32 s16, 1
    s_cbranch_scc1 {go}
    s_mov_b32 s47, 0
    s_sleep {PS0}
    """)
    NPL = 4
    for k in range(NPL - 1):
        a(f"buffer_load_dwordx2 v[{t+2+2*k}:{t+3+2*k}], v{t}, s[4:7], s40 offen sc1\ns_sleep {PS1}")
    a.label(lp)
    for k in range(NPL):
        kk = (k + NPL - 1) % NPL
        a(f"""
        buffer_load_dwordx2 v[{t+2+2*kk}:{t+3+2*kk}], v{t}, s[4:7], s40 offen sc1
        s_waitcnt vmcnt({NPL-1})
        v_cmp_ne_u64 vcc, v[{n}:{n+1}], v[{t+2+2*k}:{t+3+2*k}]
        s_cbranch_vccz {ok}
        """)
    a(f"""
    s_add_u32 s47, s47, 1
    s_cmp_lt_u32 s47, 0x20000
    s_cbranch_scc1 {lp}
    """)
    a.label(ok)
    if STAMP == 1 and SPC[0] < 0: a("s_memrealtime s[76:77]")
    a(f"""
    s_and_b32 s40, s101, 31
    s_cmp_lg_u32 s40, 0
    s_cbranch_scc1 {go}
    s_lshl_b32 s40, s17, 2
    v_mov_b32 v{t}, 1
    s_mov_b64 exec, 1
    buffer_store_dword v{t}, v1, s[24:27], s40 offen offset:128 sc1
    s_mov_b64 exec, -1
    """)
    a.label(go)
    between()
    S.lg0()
    a("s_barrier")

def zero_word(a, S, sreg):
    S.vmi("z", f"buffer_store_dword v{LNR+46}, v1, s[4:7], s{sreg} offen sc1")

def code_prefetch(a, S):
    a(f"""
    s_getpc_b64 s[60:61]
    CP_pc:
    s_sub_u32 s60, s60, CP_pc-{KNAME}
    s_subb_u32 s61, s61, 0
    s_mov_b32 s62, CODE_END-{KNAME}
    s_mov_b32 s63, 0x20000
    s_lshr_b32 s40, s2, 3
    s_lshl_b32 s40, s40, 3
    s_add_u32 s40, s40, s16
    s_lshl_b32 s40, s40, 8
    s_mul_i32 s41, s40, 3
    s_lshr_b32 s41, s41, 1
    v_lshlrev_b32 v{LNR+47}, 3, v1
    s_mov_b32 m0, {JUNK}
    s_mov_b64 exec, 7
    """)
    S.vmi("P", f"buffer_load_dword v{LNR+47}, s[60:63], s41 offen lds")
    a("s_mov_b64 exec, -1")

def const_table(a, CR):
    lre, lim, ldt = CR + 3, CR + 4, CR + 5
    t = CR + 6; Tb = CR + 16
    a(f"""
    v_lshlrev_b32 v{lre}, 16, v{lre}
    v_lshlrev_b32 v{lim}, 16, v{lim}
    v_lshlrev_b32 v{ldt}, 16, v{ldt}
    v_mul_f32 v{ldt}, 0x3fb8aa3b, v{ldt}
    v_exp_f32 v{ldt}, v{ldt}
    s_nop 0
    v_cvt_pk_bf16_f32 v{ldt}, v{ldt}, v{ldt}
    v_and_b32 v{ldt}, 0xffff0000, v{ldt}
    v_mul_f32 v{t}, v{ldt}, v{lre}
    v_mul_f32 v{t+1}, v{ldt}, v{lim}
    v_mul_f32 v{t}, 0x3fb8aa3b, v{t}
    v_exp_f32 v{t}, v{t}
    v_mul_f32 v{t+1}, 0x3e22f983, v{t+1}
    v_fract_f32 v{t+1}, v{t+1}
    v_cos_f32 v{t+2}, v{t+1}
    v_sin_f32 v{t+3}, v{t+1}
    s_nop 0
    v_mul_f32 v{Tb}, v{t}, v{t+2}
    v_mul_f32 v{Tb+1}, v{t}, v{t+3}
    v_add_f32 v{t}, -1.0, v{Tb}
    v_mul_f32 v{t+1}, v{lre}, v{lre}
    v_fmac_f32 v{t+1}, v{lim}, v{lim}
    v_rcp_f32 v{t+1}, v{t+1}
    v_mul_f32 v{t+2}, v{t}, v{lre}
    v_fmac_f32 v{t+2}, v{Tb+1}, v{lim}
    v_mul_f32 v{t+3}, v{Tb+1}, v{lre}
    v_fma_f32 v{t+3}, -v{t}, v{lim}, v{t+3}
    v_add_f32 v{t+1}, v{t+1}, v{t+1}
    v_mul_f32 v{Tb+2}, v{t+2}, v{t+1}
    v_mul_f32 v{Tb+3}, v{t+3}, v{t+1}
    """)
    def csq(d, s_):
        a(f"""
        v_mul_f32 v{t+4}, v{s_+1}, v{s_+1}
        v_mul_f32 v{t+5}, v{s_}, v{s_+1}
        v_fma_f32 v{d}, v{s_}, v{s_}, -v{t+4}
        v_add_f32 v{d+1}, v{t+5}, v{t+5}
        """)
    csq(t, Tb); csq(t + 2, t); csq(Tb + 10, t + 2); csq(Tb + 12, Tb + 10)
    a(f"""
    v_mul_f32 v{t+4}, v{Tb+13}, v{Tb+11}
    v_fma_f32 v{Tb+14}, v{Tb+12}, v{Tb+10}, -v{t+4}
    v_mul_f32 v{t+4}, v{Tb+12}, v{Tb+11}
    v_fma_f32 v{Tb+15}, v{Tb+13}, v{Tb+10}, v{t+4}
    v_mov_b32 v{Tb+8}, 1.0
    v_mov_b32 v{Tb+9}, 0
    """)
    csq(Tb + 4, Tb + 12); csq(t, Tb + 4); csq(t + 2, t); csq(Tb + 6, t + 2)
    a(f"v_lshlrev_b32 v{CR}, 6, v{CR}\nv_add_u32 v{CR}, {CT}, v{CR}")
    for k in range(4):
        a(f"ds_write_b128 v{CR}, v[{Tb+4*k}:{Tb+4*k+3}] offset:{16*k}")

def gen_main():
    a = Asm()
    stamp_init(a); stamp(a, 0)
    a(f"""
    s_cmp_ge_u32 s2, 256
    s_cbranch_scc1 K1_end
    s_load_dwordx2 s[48:49], s[0:1], 0       ; x
    s_load_dwordx4 s[20:23], s[0:1], 112
    s_load_dwordx4 s[52:55], s[0:1], 80
    s_load_dwordx4 s[28:31], s[0:1], 24
    s_load_dwordx2 s[58:59], s[0:1], 96      ; w_down
    v_lshrrev_b32 v1, 6, v0
    v_and_b32 v0, 63, v0                     ; lane
    v_readfirstlane_b32 s16, v1              ; wave
    s_and_b32 s3, s2, 7                      ; xcd
    s_lshr_b32 s18, s2, 3
    s_and_b32 s17, s18, 7                    ; mt
    s_lshr_b32 s18, s18, 3                   ; k4
    v_lshlrev_b32 v1, 4, v0                  ; lane*16
    """)
    S0_ = Stream(a)
    ln_issue(a, S0_)
    a(f"""
    s_lshl_b32 s19, s17, 3
    s_add_u32 s19, s19, s16                  ; 8mt + w
    s_mul_i32 s32, s19, 36864
    s_add_u32 s33, s32, 18432
    s_mul_i32 s34, s19, 368640
    s_add_u32 s34, s34, {WS_H}
    s_lshl_b32 s35, s16, 10
    s_add_u32 s35, s35, {LB}
    s_lshl_b32 s56, s19, 7
    s_add_u32 s56, s56, {WS_PF}
    v_mov_b32 v{LNR+46}, 0
    s_lshl_b32 s46, s16, 8
    """)
    srd(a, 4, 22, WS_SIZE)
    srd(a, 24, 20, 256)
    a(f"""
    s_or_b32 s40, s2, s16
    s_cmp_lg_u32 s40, 0
    s_cbranch_scc1 NONCE_done
    s_memrealtime s[40:41]
    s_waitcnt lgkmcnt(0)
    s_or_b32 s41, s41, 0x80000000
    v_mov_b32 v{LNR+44}, s40
    v_mov_b32 v{LNR+45}, s41
    s_mov_b64 exec, 1
    buffer_store_dwordx2 v[{LNR+44}:{LNR+45}], v1, s[24:27], 0 offen sc1
    s_mov_b64 exec, -1
    """)
    a.label("NONCE_done")
    code_prefetch(a, S0_)
    a("s_cmp_eq_u32 s18, 3\ns_cbranch_scc1 K1_ssm")

    def xload_ops(S, st):
        ops = []
        for j in range(2):
            for e in range(2):
                r = xreg(j, 2 * st + e)
                def f(j=j, e=e, r=r):
                    if e == 0: a(f"s_add_u32 s{36+j}, s{32+j}, {WS_X + st*2048}")
                    S.vmi(("X", st), f"buffer_load_dwordx4 v[{r}:{r+3}], v1, s[4:7], s{36+j} offen offset:{1024*e} sc1")
                ops.append(f)
        return ops

    WSZ = 576 * 9216
    srd(a, 8, 52, WSZ)
    srd(a, 12, 54, WSZ)
    ACC = 48
    S = S0_.fork(); S.slow = []; S.sb_setup(VE, VR, VFA, 46); S.pslow = []; S.aslow = []
    a(f"""
    s_mul_i32 s39, s3, 3
    s_add_u32 s39, s39, s18
    s_lshl_b32 s40, s39, 2
    s_add_u32 s56, s56, s40
    s_mul_i32 s39, s39, 3
    s_lshl_b32 s38, s39, 7
    s_lshl_b32 s39, s39, 11
    s_add_u32 s39, s39, s34
    v_lshrrev_b32 v16, 3, v0
    s_lshl_b32 s40, s16, 3
    v_add_u32 v16, s40, v16
    v_mul_u32_u24 v16, 9216, v16
    v_bfe_u32 v17, v0, 4, 1
    s_and_b32 s40, s16, 1
    s_lshl_b32 s40, s40, 1
    v_or_b32 v17, s40, v17
    v_lshlrev_b32 v17, 1, v17
    v_and_b32 v18, 7, v0
    v_xor_b32 v17, v17, v18
    v_lshl_add_u32 v{VD}, v17, 4, v16
    """)
    def dma_ops(gs):
        G, st = divmod(gs, 9)
        ops = []
        for m in range(2):
            def f(m=m):
                a(f"s_add_u32 m0, s35, {st*16384 + m*8192}")
                a(f"s_add_u32 s41, s38, {G*128 + st*589824}")
                S.vmi(("D", gs), f"buffer_load_dwordx4 v{VD}, s[{8+4*m}:{11+4*m}], s41 offen lds")
            ops.append(f)
        return ops
    for st in range(NDE):
        for f in dma_ops(st): f()
    a(f"""
    v_lshrrev_b32 v{VT}, 4, v0
    v_lshlrev_b32 v{VT}, 10, v{VT}
    v_bfe_u32 v17, v0, 2, 2
    v_lshl_add_u32 v{VT}, v17, 7, v{VT}
    v_bfe_u32 v17, v0, 3, 2
    v_lshl_add_u32 v{VT}, v17, 5, v{VT}
    v_and_b32 v17, 3, v0
    v_lshl_add_u32 v{VT}, v17, 3, v{VT}
    v_add_u32 v{VT}, {LB}, v{VT}
    v_lshlrev_b32 v{VPF}, 7, v0
    """)
    for b in range(4):
        a(f"v_xor_b32 v{VA+b}, {b*32}, v{VT}")
    S.sb_init(16)
    a(f"""
    s_lshr_b32 s97, s3, 1
    s_and_b32 s98, s3, 1
    s_lshl_b32 s98, s98, 3
    s_add_u32 s98, s98, s17
    s_mov_b32 s99, s18
    """)
    k2_scalars(a)
    k2_vregs(a, 6)
    a(f"""
    s_mul_i32 s51, s97, {1152*1152}
    s_mul_i32 s40, s99, 384
    s_add_u32 s28, s51, s40
    s_lshl_b32 s40, s18, 3
    s_add_u32 s40, s40, s17
    s_lshl_b32 s40, s40, 3
    s_add_u32 s40, s40, s16
    s_min_u32 s40, s40, 161
    s_lshl_b32 s40, s40, 13
    s_add_u32 s29, s51, s40
    """)
    srd(a, 20, 58, 4608 * 1152)
    a("s_lshl_b32 s41, s97, 2\ns_add_u32 s40, s48, s41\ns_mov_b64 exec, 1")
    zero_word(a, S, 56); zero_word(a, S, 40)
    a("s_mov_b64 exec, -1")
    def wpf(lines=None, reg=VT):
        if lines is None: lines = [2] if WPF == 1 else [1, 2]
        a(f"""
        v_min_u32 v{reg}, 8, v0
        v_mul_u32_u24 v{reg}, 9216, v{reg}
        s_mul_i32 s40, s19, {9*9216}
        s_add_u32 s40, s40, s38
        s_mov_b32 m0, {JUNK}
        s_mov_b64 exec, 0x1ff
        """)
        for ln in lines:
            S.vmi("P", f"buffer_load_dword v{reg}, s[8:11], s40 offen offset:{128*ln} lds")
            S.vmi("P", f"buffer_load_dword v{reg}, s[12:15], s40 offen offset:{128*ln} lds")
        a("s_mov_b64 exec, -1")
    ln_compute(a, S, (lambda: wpf(list(range(EPF)))) if EPF else None)
    for st in range(NDE, 2):
        for f in dma_ops(st): f()
    def between():
        for st in range(2, ND0):
            for f in dma_ops(st): f()
        S.vmw({("D", 0)})
    ln_handshake(a, S, "f", between)
    for st in range(LX):
        for f in xload_ops(S, st): f()
    NBLK = 27 * 8
    pre_slots = []; pre_when = []
    g2first = max(2, 9 - LD)
    free = []
    for st in range(0, 9):
        if st >= 2: free += [2 * (st - 2), 2 * (st - 2) + 1]
        if st == 3: free.append(18)
        if st >= g2first:
            n = 0
            while free and n < 3 and len(pre_slots) < NPRE:
                pre_slots.append(free.pop(0)); pre_when.append(st); n += 1
    avail = {s: -1 for s in range(NP)}
    for s in (14, 15): avail[s] = 0
    for s in (16, 17): avail[s] = 2
    plan = K2Plan(pre_slots, avail, [(-2, -1, 3), (0, 2, 6)])
    def line_of(st): return 3 * (st % 6) + st // 6
    def dma2(S, i):
        st, pn = plan.pieces[i]
        a(f"s_add_u32 m0, s35, {plan.slot[i]*8192}")
        a(f"s_add_u32 s41, s28, {line_of(st)*64*1152 + pn*128}")
        S.vmi(("W", i), f"buffer_load_dwordx4 v{VD}, s[20:23], s41 offen lds")
    def frbuf(f): return FR + (f % 8) * 4
    def rd2(S, f, k):
        if f >= 4 * plan.NPC: return
        i, b = divmod(f, 4); sl = plan.slot[i]
        buf = frbuf(f) + 2 * k
        S.lgi(("F2", f), f"ds_read_b64_tr_b16 v[{buf}:{buf+1}], v{VA2[sl//7] + b} offset:{(sl%7)*8192 + k*2048}")
    def hload_ops(S, st):
        ops = []
        for j in range(2):
            def f(j=j):
                r = hreg(st, j)
                a(f"s_add_u32 s36, s{30+j}, {line_of(st)*2048}")
                S.vmi(("H", st), f"buffer_load_dwordx4 v[{r}:{r+3}], v1, s[4:7], s36 offen sc1")
            ops.append(f)
        return ops
    def rd(gblk, k):
        if gblk >= NBLK:
            f = 2 * (gblk - NBLK) + k // 2
            if f < DF: rd2(S, f, k % 2)
            return
        gs, blk = divmod(gblk, 8)
        st = gs % 9
        u, m = divmod(blk, 2)
        s, e = divmod(k, 2)
        buf = FR + (gblk % 4) * 8 + s * 4 + e * 2
        off = (st % 3) * 16384 + m * 8192 + s * 4096 + e * 512
        S.lgi(("F", gblk), f"ds_read_b64_tr_b16 v[{buf}:{buf+1}], v{VA+u} offset:{off}")
        if st % 3 == 2 and m == 1 and k == 3 and gs < 26:
            a(f"v_add_u32 v{VA+u}, 49152, v{VA+u}" if st < 8 else f"v_subrev_u32 v{VA+u}, 98304, v{VA+u}")
    def acc(blk, j): return ACC + (blk * 2 + j) * 4
    def epi_ops(v, G):
        ops = []
        for j in range(2):
            for uu in range(2):
                g = acc(4 * v + 2 * uu, j); u = acc(4 * v + 2 * uu + 1, j)
                for r in range(4):
                    ops.append(lambda g=g, u=u, r=r: a(f"v_mul_f32 v{g+r}, v{g+r}, v{u+r}"))
            T_ = acc(4 * v + 1, j)
            g0 = acc(4 * v, j); g1 = acc(4 * v + 2, j)
            ops.append(lambda T_=T_, g=g0: a(f"v_cvt_pk_bf16_f32 v{T_}, v{g}, v{g+1}"))
            ops.append(lambda T_=T_, g=g0: a(f"v_cvt_pk_bf16_f32 v{T_+1}, v{g+2}, v{g+3}"))
            ops.append(lambda T_=T_, g=g1: a(f"v_cvt_pk_bf16_f32 v{T_+2}, v{g}, v{g+1}"))
            ops.append(lambda T_=T_, g=g1: a(f"v_cvt_pk_bf16_f32 v{T_+3}, v{g+2}, v{g+3}"))
            def st_(T_=T_, j=j):
                a(f"s_add_u32 s45, s39, {j*184320 + G*2048}")
                S.vmi(("S", G), f"buffer_store_dwordx4 v[{T_}:{T_+3}], v1, s[4:7], s45 offen offset:{1024*v} {HST}")
            ops.append(st_)
        return ops
    def publish(G):
        S.vmw({("S", G)}); flag_store(S, a, G + 1)
    def vd2():
        a(f"""
        v_lshrrev_b32 v{VD}, 3, v0
        s_lshl_b32 s40, s16, 3
        v_add_u32 v{VD}, s40, v{VD}
        v_mul_u32_u24 v{VD}, 1152, v{VD}
        v_lshrrev_b32 v{VT}, 4, v0
        v_lshlrev_b32 v{VT}, 1, v{VT}
        v_and_b32 v{VPF}, 7, v0
        v_xor_b32 v{VT}, v{VT}, v{VPF}
        v_lshl_add_u32 v{VD}, v{VT}, 4, v{VD}
        """)
    def va2_base():
        a(f"""
        v_lshrrev_b32 v{VPF}, 2, v0
        v_lshlrev_b32 v{VPF}, 7, v{VPF}
        v_bfe_u32 v{VT}, v0, 3, 2
        v_lshl_add_u32 v{VPF}, v{VT}, 5, v{VPF}
        v_and_b32 v{VT}, 3, v0
        v_lshl_add_u32 v{VPF}, v{VT}, 3, v{VPF}
        s_lshl_b32 s40, s42, 12
        s_add_u32 s40, s40, {LB}
        v_add_u32 v{VPF}, s40, v{VPF}
        """)
    def va2(region):
        for b in range(4):
            if region == 0: a(f"v_xor_b32 v{VA+b}, {b*32}, v{VPF}")
            else: a(f"v_add_u32 v{VA2[region]+b}, {57344*region}, v{VA+b}")
    stamp(a, 2)
    for g in range(3):
        for k in range(4): rd(g, k)
    dnext = ND0
    asi, asc = allset_ops(S, a, VT, VPA)
    p1i, p1c = poll_ops(S, a, 1, VT)
    p2i, p2c = poll_ops(S, a, 2, VT if HPRE > 6 else VPF)
    for gs in range(27):
        G, st = divmod(gs, 9)
        side = {b: [] for b in range(8)}
        if st == 0 and G > 0:
            e = epi_ops(1, G - 1)
            for b in range(3): side[b] += spread(e, 3, b)
        if st == 2 and G > 0: side[7].append(lambda G=G: publish(G - 1))
        if st == 8:
            e = epi_ops(0, G)
            for b in range(3): side[5 + b] += spread(e, 3, b)
        if G == 0 and st + LX <= 8:
            x = xload_ops(S, st + LX)
            side[0] += x[:2]; side[1] += x[2:]
        for pos in (3, 6):
            if dnext <= min(gs + LD, 26):
                if pos == 6 and G == 0 and 1 <= st <= 5 and dnext >= gs + 3: continue
                side[pos] += dma_ops(dnext); dnext += 1
        if G == W2G and st < 8 and st % 2 == 0:
            def pf():
                a(f"s_mov_b32 m0, {JUNK}\ns_mov_b64 exec, 0xffff")
                S.vmi("P", f"buffer_load_dword v{VPF}, s[20:23], s29 offen lds")
                a(f"s_mov_b64 exec, -1\ns_add_u32 s29, s29, 2048")
            side[4].append(pf)
        if gs == WPS and WPF: side[4].append(wpf)
        if G == 1 and st == 4: side[7].append(asi)
        if G == 1 and st == 6:
            side[7] += [asc, lambda: a(f"v_min_u32 v{VPA}, 5, v0\nv_lshlrev_b32 v{VPA}, 2, v{VPA}")]
        if G == 2:
            if st == 0: side[4].append(p1i)
            if st == 1: side[4].append(p1c)
            if 1 <= st <= 3:
                side[5] += hload_ops(S, 2 * (st - 1)); side[6] += hload_ops(S, 2 * (st - 1) + 1)
            if HPRE > 6:
                if st == 5: side[1].append(p2i)
                if st == 6: side[0].append(p2c)
                hs = {6: [(3, 6), (6, 7), (7, 8)], 7: [(0, 9), (1, 10), (5, 11)]}.get(st, [])
                for b, hh in hs:
                    if hh < HPRE: side[b] += hload_ops(S, hh)
            if st == g2first: side[0].append(vd2)
            k = 0
            for i, w in enumerate(pre_when):
                if w == st:
                    side[(3, 4, 7)[k] if st < 8 else (1, 3, 4)[k]].append(lambda i=i: dma2(S, i)); k += 1
            if st == 6: side[1].append(va2_base)
        for blk in range(8):
            g = gs * 8 + blk
            if blk == 0: S.vmw({("X", gs)})
            if blk == 1:
                S.vmw({("D", gs + 1)} if gs < 26 else {("W", x) for x in range(4)}); S.arrive()
            if blk == 3: S.peek()
            if blk == 5:
                S.check()
                if gs == 26: va2(0)
            S.lgw({("F", g)})
            buf = FR + (g % 4) * 8
            k = 0
            for j in range(2):
                for s in range(2):
                    c = acc(blk, j)
                    src2 = "0" if (st == 0 and s == 0) else f"v[{c}:{c+3}]"
                    x = xreg(j, 2 * st + s)
                    a(f"{MFMA} v[{c}:{c+3}], v[{buf+4*s}:{buf+4*s+3}], v[{x}:{x+3}], {src2}")
                    rd(g + 3, k)
                    for o in spread(side[blk], 4, k): o()
                    k += 1
        if st == 8: stamp(a, 3 + G)
        for si, g_ in zip((6, 7, 15), GSP):
            if gs == g_: stamp(a, si)
    e = epi_ops(1, 2)
    p3i, p3c = poll_ops(S, a, 3, VPF)
    p2c.pre = True; p3c.pre = True
    P3 = P("P3", 19)
    P2 = P("P2", 2); P2C = P("P2C", 5); PUB = P("PUB", 11); PB = P("PB", 8)
    def va12(): va2(1); va2(2)
    va12.pre = True
    extra0 = {0: [va12]}
    for k, v in ((0, spread(e, 2, 0)), (1, spread(e, 2, 1)), (P2, [p2i] if HPRE <= 6 else []), (P2C, [p2c] if HPRE <= 6 else []), (PUB, [lambda: publish(2)]),
              (P3, [p3i]), (P3 + 3, [p3c])):
        extra0.setdefault(k, []).extend(v)
    hgate = {st: P2C for st in range(6, 12)}; hgate.update({st: P3 + 3 for st in range(12, 18)})
    k2_main(a, S, plan, "ffn", dma2, rd2, hload_ops, [HPRE], frbuf, extra0, hgate)

    a.label("K1_ssm")
    NU = 5
    SACC = 32; SFR = 8
    BSZ = 576 * 1152
    S = S0_.fork(); S.slow = []; S.pslow = []; S.aslow = []
    a(f"""
    s_cmp_lt_u32 s16, 4
    s_cselect_b32 s22, s28, s30
    s_cselect_b32 s23, s29, s31
    """)
    srd(a, 8, 22, BSZ)
    a(f"""
    s_load_dwordx4 s[28:31], s[0:1], 40
    s_lshl_b32 s40, s3, 2
    s_add_u32 s56, s56, s40
    s_add_u32 s56, s56, 96
    s_mul_i32 s39, s3, 5
    s_min_u32 s39, s39, 31                   ; ustart
    s_and_b32 s40, s16, 3
    s_lshl_b32 s41, s40, 3
    s_lshl_b32 s38, s39, 4
    s_add_u32 s41, s41, s38
    v_lshrrev_b32 v8, 3, v0
    v_add_u32 v8, s41, v8
    v_mul_u32_u24 v8, 1152, v8
    s_and_b32 s41, s16, 1
    s_lshl_b32 s41, s41, 2
    v_lshrrev_b32 v9, 4, v0
    v_add_u32 v9, s41, v9
    v_and_b32 v10, 7, v0
    v_xor_b32 v9, v9, v10
    v_and_b32 v10, 15, v0
    v_lshrrev_b32 v11, 1, v10
    v_lshrrev_b32 v12, 4, v0
    v_xor_b32 v11, v11, v12
    v_lshlrev_b32 v11, 4, v11
    v_lshl_add_u32 v{VA}, v10, 7, v11
    v_add_u32 v{VA}, {LB}, v{VA}
    v_xor_b32 v{VA+1}, 64, v{VA}
    v_add_u32 v{VA+2}, 49152, v{VA}
    v_add_u32 v{VA+3}, 49152, v{VA+1}
    v_add_u32 v{VA+4}, 98304, v{VA}
    v_add_u32 v{VA+5}, 98304, v{VA+1}
    v_lshl_add_u32 v255, v9, 4, v8
    s_lshr_b32 s41, s16, 2
    s_mul_i32 s41, s41, 12288
    s_lshl_b32 s43, s40, 10
    s_add_u32 s43, s43, s41
    s_add_u32 s43, s43, {LB}
    """)
    def sdma_ops(st):
        slot = st % 6
        ops = []
        for t in range(3):
            def f(t=t):
                a(f"s_add_u32 m0, s43, {slot*24576 + t*4096}")
                a(f"s_mov_b32 s41, {st*128 + t*36864}")
                S.vmi(("D", st), f"buffer_load_dwordx4 v255, s[8:11], s41 offen lds")
            ops.append(f)
        return ops
    for st in range(NDE):
        for f in sdma_ops(st): f()
    CR = 16
    a(f"""
    s_load_dwordx4 s[60:63], s[0:1], 8
    s_load_dwordx2 s[44:45], s[0:1], 56      ; log_dt
    s_and_b32 s40, s16, 1
    s_lshl_b32 s40, s40, 6
    v_add_u32 v{CR}, s40, v0
    v_min_u32 v{CR}, 79, v{CR}
    v_add_u32 v{CR+1}, s38, v{CR}
    v_lshlrev_b32 v{CR+1}, 1, v{CR+1}
    s_cmp_ge_u32 s17, 3
    s_cselect_b32 s40, 1, 0
    s_lshl_b32 s98, s3, 1
    s_add_u32 s98, s98, s40
    s_mul_i32 s40, s40, 3
    s_sub_u32 s99, s17, s40
    s_mov_b32 s97, 4
    s_mul_i32 s40, s98, 3
    s_add_u32 s40, s40, s99
    s_lshl_b32 s40, s40, 3
    s_add_u32 s40, s40, {"s16" if TWF else "0"}
    s_lshl_b32 s40, s40, 7
    s_add_u32 s40, s40, {WS_EF + 16}
    s_cmp_lt_u32 s17, 6
    s_cselect_b32 s40, s40, {OOB}
    s_mul_i32 s57, s3, 5
    s_add_u32 s41, s57, s16
    s_lshl_b32 s41, s41, 11
    s_lshl_b32 s47, s17, 8
    s_add_u32 s41, s41, s47
    s_add_u32 s41, s41, {WS_E}
    s_cmp_lt_u32 s16, 5
    s_cselect_b32 s41, s41, {OOB}
    v_lshrrev_b32 v{CR+2}, 2, v1
    s_waitcnt lgkmcnt(0)
    """)
    S.vmi("z", f"buffer_store_dword v{LNR+46}, v{CR+2}, s[4:7], s41 offen sc1")
    a("s_mov_b64 exec, 1")
    zero_word(a, S, 56); zero_word(a, S, 40)
    a("s_mov_b64 exec, -1")
    for k, ptr in enumerate((60, 62, 44)):
        srd(a, 12, ptr, 1152)
        S.vmi("lam", f"buffer_load_ushort v{CR+3+k}, v{CR+1}, s[12:15], 0 offen")
    ln_compute(a, S)
    for st in range(NDE, 2):
        for f in sdma_ops(st): f()
    def spf():
        if SPF:
            a(f"""
            s_cmp_lt_u32 s16, 4
            s_cselect_b32 s22, s52, s54
            s_cselect_b32 s23, s53, s55
            """)
            srd(a, 12, 22, 576 * 9216)
            a(f"""
            v_mul_u32_u24 v8, 86, v0
            v_lshrrev_b32 v8, 8, v8
            v_mul_u32_u24 v9, 3, v8
            v_sub_u32 v9, v0, v9
            v_min_u32 v8, 17, v8
            v_mul_u32_u24 v8, 9216, v8
            v_mul_u32_u24 v9, 384, v9
            v_add_u32 v8, v8, v9
            s_lshl_b32 s40, s17, 2
            s_and_b32 s41, s16, 3
            s_add_u32 s40, s40, s41
            s_mul_i32 s40, s40, {18*9216}
            s_mul_i32 s41, s3, 1152
            s_add_u32 s40, s40, s41
            s_mov_b32 m0, {JUNK}
            s_nop 0
            """)
            S.vmi("P", "buffer_load_dword v8, s[12:15], s40 offen offset:128 lds")
            if SPF == 2: S.vmi("P", "buffer_load_dword v8, s[12:15], s40 offen offset:256 lds")
    def between_s():
        if SPE == 1: spf()
        sk = a.newlabel("CTs")
        a(f"s_cmp_lt_u32 s16, 2\ns_cbranch_scc1 {sk}")
        const_table(a, CR)
        a.label(sk)
        for st in range(2, NDS):
            for f in sdma_ops(st): f()
        if SPE == 2: spf()
        S.vmw({("D", 0)})
    ln_handshake(a, S, "s", between_s)
    for st in range(2):
        for f in xload_ops(S, st): f()
    if not SPE: spf()
    NB = 2 * NU
    def srd_(gblk, s):
        if gblk >= 9 * NB: return
        st, blk = divmod(gblk, NB)
        u, comp = divmod(blk, 2)
        slot = st % 6
        buf = SFR + (gblk % 3) * 8 + s * 4
        reg = VA + (slot // 2) * 2 + s
        off = (slot % 2) * 24576 + comp * 12288 + u * 2048
        S.lgi(("F", gblk), f"ds_read_b128 v[{buf}:{buf+3}], v{reg} offset:{off}")
    def sacc(u, comp, j): return SACC + ((u * 2 + comp) * 2 + j) * 4
    stamp(a, 2)
    for g in range(2):
        for s in range(2): srd_(g, s)
    CN = XR
    bar = {0: [1, 2], 2: [3, 4, 5], 5: [6, 7, 8]}
    issue = {0: [("X", 2)] + [("D", t) for t in range(NDS, 4)], 1: [("X", 3)] + [("D", t) for t in range(max(NDS, 4), 6)], 2: [("X", 4)], 3: [("X", 5), ("D", 6), ("D", 7)],
             4: [("X", 6), ("D", 8)], 5: [("X", 7)], 6: [("X", 8)]}
    for st in range(9):
        side = []
        for kind, t in issue.get(st, []):
            side += xload_ops(S, t) if kind == "X" else sdma_ops(t)
        for blk in range(NB):
            g = st * NB + blk
            if blk == 0: S.vmw({("X", st)})
            if blk == NB - 2 and st in bar:
                S.vmw({("D", t) for t in bar[st]})
                if st == 2: S.lg0()
                a("s_barrier")
            S.lgw({("F", g)})
            buf = SFR + (g % 3) * 8
            u, comp = divmod(blk, 2)
            k = 0
            for j in range(2):
                for s in range(2):
                    c = sacc(u, comp, j)
                    src2 = "0" if (st == 0 and s == 0) else f"v[{c}:{c+3}]"
                    x = xreg(j, 2 * st + s)
                    a(f"{MFMA} v[{c}:{c+3}], v[{x}:{x+3}], v[{buf+4*s}:{buf+4*s+3}], {src2}")
                    if k % 2 == 0: srd_(g + 2, k // 2)
                    if k == 1 and blk < 6:
                        for o in spread(side, 6, blk): o()
                    k += 1
            if blk == 7 and st == 6:
                a(f"""
                v_and_b32 v{CN+44}, 15, v0
                v_lshlrev_b32 v{CN+44}, 6, v{CN+44}
                v_add_u32 v{CN+44}, {CT}, v{CN+44}
                v_lshrrev_b32 v{CN+45}, 4, v0
                v_lshl_add_u32 v{CN+45}, v{CN+45}, 3, v{CN+44}
                s_min_u32 s46, s16, 4
                s_lshl_b32 s41, s46, 10
                v_add_u32 v{CN+46}, s41, v{CN+44}
                """)
                for u2 in range(NU):
                    b = CN + 8 * u2
                    S.lgi("C", f"ds_read_b128 v[{b}:{b+3}], v{CN+44} offset:{u2*1024}")
                    S.lgi("C", f"ds_read_b64 v[{b+4}:{b+5}], v{CN+44} offset:{u2*1024+40}")
                    S.lgi("C", f"ds_read_b64 v[{b+6}:{b+7}], v{CN+45} offset:{u2*1024+32}")
                S.lgi("C", f"ds_read_b128 v[{CN+40}:{CN+43}], v{CN+46} offset:16")
                srd(a, 8, 28, BSZ); srd(a, 12, 30, BSZ)
                a(f"""
                s_mul_i32 s40, s19, {81*128}
                v_min_u32 v{CN+47}, 40, v0
                v_lshlrev_b32 v{CN+47}, 7, v{CN+47}
                s_add_u32 s41, s40, {40*128}
                s_mov_b32 m0, {JUNK}
                """)
                asi, asc = allset_ops(S, a, CN + 48, CN + 49)
                asi()
                for c in range(2):
                    for t in range(2):
                        S.vmi("P", f"buffer_load_dword v{CN+47}, s[{8+4*c}:{11+4*c}], s{40+t} offen lds")
    S.lg0()
    asc()
    S_k1 = S
    plan_s = K2Plan([18, 17, 16, 15, 14, 13], {s: -1 for s in range(NP)}, [(-2, -1, 3), (0, 2, 5)])
    def dma_s(S, i):
        st, pn = plan_s.pieces[i]
        comp = st & 1
        a(f"s_add_u32 m0, s35, {plan_s.slot[i]*8192}")
        a(f"s_add_u32 s41, s28, {(st>>1)*128 + pn*64*1152}")
        S.vmi(("W", i), f"buffer_load_dwordx4 v{VD}, s[{8+4*comp}:{11+4*comp}], s41 offen lds")
    def rd_s(S, f, k):
        if k or f >= 4 * plan_s.NPC: return
        i, b = divmod(f, 4); sl = plan_s.slot[i]
        buf = frbuf(f)
        S.lgi(("F2", f), f"ds_read_b128 v[{buf}:{buf+3}], v{VA + sl//7} offset:{(sl%7)*8192 + b*2048}")
    def hload_s(S, st):
        ops = []
        for j in range(2):
            def f(j=j):
                r = hreg(st, j)
                a(f"s_add_u32 s36, s{30+j}, {st*2048}")
                S.vmi(("H", st), f"buffer_load_dwordx4 v[{r}:{r+3}], v1, s[4:7], s36 offen sc1")
            ops.append(f)
        return ops
    S = Stream(a); S.sb_setup(VE, VR, VFA, 46); S.pslow = []; S.aslow = S_k1.aslow
    def after_join():
        a(f"""
        s_mul_i32 s40, s99, 192
        s_lshl_b32 s41, s16, 3
        s_add_u32 s40, s40, s41
        v_lshrrev_b32 v{VD}, 3, v0
        v_add_u32 v{VD}, s40, v{VD}
        v_mul_u32_u24 v{VD}, 1152, v{VD}
        s_and_b32 s41, s16, 1
        s_lshl_b32 s41, s41, 2
        v_lshrrev_b32 v{VT}, 4, v0
        v_add_u32 v{VT}, s41, v{VT}
        v_and_b32 v{VPF}, 7, v0
        v_xor_b32 v{VT}, v{VT}, v{VPF}
        v_lshl_add_u32 v{VD}, v{VT}, 4, v{VD}
        s_cmp_lt_u32 s17, 6
        s_cselect_b32 s28, 0, {OOB}
        """)
        for i in range(6): dma_s(S, i)
    ssm_post4(a, NU, SACC, CN, sacc, 39, after_join)
    k2_scalars(a)
    k2_vregs(a, 8)
    a(f"""
    v_and_b32 v{VPF}, 15, v0
    v_lshrrev_b32 v{VT}, 1, v{VPF}
    v_lshrrev_b32 v{VA+1}, 4, v0
    s_lshl_b32 s40, s42, 2
    v_add_u32 v{VA+1}, s40, v{VA+1}
    v_xor_b32 v{VT}, v{VT}, v{VA+1}
    v_lshlrev_b32 v{VT}, 4, v{VT}
    v_lshl_add_u32 v{VA}, v{VPF}, 7, v{VT}
    v_add_u32 v{VA}, {LB}, v{VA}
    v_add_u32 v{VA+1}, 57344, v{VA}
    v_add_u32 v{VA+2}, 114688, v{VA}
    """)
    S.sb_init(16)
    S.vm0()
    flag_store(S, a, 3)
    stamp(a, 7)
    a("s_cmp_ge_u32 s17, 6\ns_cbranch_scc1 K1_done")
    pi, pc = poll_ops(S, a, 3, 248)
    S.lg0(); a("s_barrier")
    pi()
    for f in range(DF): rd_s(S, f, 0)
    pc()
    stamp(a, 4)
    for st in range(3):
        for f in hload_s(S, st): f()
    k2_main(a, S, plan_s, "ssm", dma_s, rd_s, hload_s, [3], frbuf, {}, {})

    a.label("K2_fin")
    stamp(a, 11)
    B0 = SP; B1 = SP + 8; L0 = 48
    a(f"""
    s_lshl_b32 s41, s97, 2
    s_add_u32 s40, s48, s41
    v_mov_b32 v3, 1
    v_min_u32 v4, 4, v0
    v_lshlrev_b32 v4, 2, v4
    s_mov_b32 s47, 0
    """)
    a(f"""
    v_min_u32 v4, 3, v0
    v_add3_u32 v4, v4, s97, 1
    v_subrev_u32 v12, 5, v4
    v_min_u32 v4, v4, v12
    v_lshlrev_b32 v4, 2, v4
    s_waitcnt vmcnt(0)
    """)
    if not TWF: a("s_barrier")
    stamp(a, 12)
    BL = TVB + 8
    def base_ld():
        a("v_mov_b32 v3, 0xffff0000")
        for x in range(2):
            for n in range(2):
                r = BL + 12 * x + 6 * n
                for k in range(2):
                    d = SP + 8 * x + 4 * n + 2 * k
                    a(f"""
                    v_lshlrev_b32 v7, 16, v{r+k}
                    v_and_b32 v8, v3, v{r+k}
                    v_add_f32 v{d}, v{d}, v7
                    v_add_f32 v{d+1}, v{d+1}, v8
                    v_lshlrev_b32 v7, 16, v{r+2+k}
                    v_and_b32 v8, v3, v{r+2+k}
                    v_lshlrev_b32 v12, 16, v{r+4+k}
                    v_and_b32 v13, v3, v{r+4+k}
                    v_fmac_f32 v{d}, v7, v12
                    v_fmac_f32 v{d+1}, v8, v13
                    """)
    if TWF:
        a(f"""
        s_mov_b64 exec, 1
        buffer_store_dword v3, v1, s[4:7], s40 offen sc1
        s_mov_b64 exec, -1
        """)
        base_ld()
        a(f"buffer_load_dword v5, v4, s[4:7], s48 offen sc1")
        a.label("K2_poll")
        for x, y in ((5, 6), (6, 5)):
            a(f"""
            s_sleep {TPS}
            buffer_load_dword v{y}, v4, s[4:7], s48 offen sc1
            s_waitcnt vmcnt(1)
            v_cmp_ne_u32 vcc, 1, v{x}
            s_cbranch_vccz K2_go
            """)
        a(f"""
        s_add_u32 s47, s47, 1
        s_cmp_lt_u32 s47, 0x20000
        s_cbranch_scc1 K2_poll
        """)
        a.label("K2_go")
    else:
        a(f"""
        s_cmp_lg_u32 s16, 0
        s_cbranch_scc1 K2_w1
        s_mov_b64 exec, 1
        buffer_store_dword v3, v1, s[4:7], s40 offen sc1
        s_mov_b64 exec, -1
        s_branch K2_go
        """)
        a.label("K2_w1")
        a(f"""
        s_cmp_lg_u32 s16, 1
        s_cbranch_scc1 K2_go
        buffer_load_dword v5, v4, s[4:7], s48 offen sc1
        """)
        a.label("K2_poll")
        for x, y in ((5, 6), (6, 5)):
            a(f"""
            s_sleep {TPS}
            buffer_load_dword v{y}, v4, s[4:7], s48 offen sc1
            s_waitcnt vmcnt(1)
            v_cmp_ne_u32 vcc, 1, v{x}
            s_cbranch_vccz K2_go
            """)
        a(f"""
        s_add_u32 s47, s47, 1
        s_cmp_lt_u32 s47, 0x20000
        s_cbranch_scc1 K2_poll
        """)
        a.label("K2_go")
        a("s_barrier")
    stamp(a, 13)
    a("s_mov_b32 s45, s97")
    for k in range(4):
        a(f"""
        s_add_u32 s45, s45, 1
        s_cmp_eq_u32 s45, 5
        s_cselect_b32 s45, 0, s45
        s_mul_i32 s46, s45, {48*48*1024}
        s_add_u32 s47, s46, s62
        s_add_u32 s46, s46, s63
        """)
        for x in range(2):
            r = L0 + (k * 2 + x) * 4
            a(f"buffer_load_dwordx4 v[{r}:{r+3}], v1, s[4:7], s{47-x} offen sc1")
    if not TWF: base_ld()
    for sp in range(4):
        for x, b in ((0, B0), (1, B1)):
            r = L0 + (sp * 2 + x) * 4
            a(f"s_waitcnt vmcnt({7 - (sp*2+x)})")
            for k in range(4):
                a(f"v_lshlrev_b32 v5, 16, v{r+k}")
                a(f"v_and_b32 v6, v3, v{r+k}")
                a(f"v_add_f32 v{b+2*k}, v{b+2*k}, v5")
                a(f"v_add_f32 v{b+2*k+1}, v{b+2*k+1}, v6")
    for x, b in ((0, B0), (1, B1)):
        a(f"buffer_store_dwordx4 v[{b}:{b+3}], v{VO}, s[8:11], s{60+x} offen {OST}")
        a(f"buffer_store_dwordx4 v[{b+4}:{b+7}], v{VO}, s[8:11], s{60+x} offen offset:64 {OST}")
    a.label("K1_done")
    if STAMP: a("s_waitcnt vmcnt(0)")
    stamp(a, 14)
    if DBGT:
        a(f"s_waitcnt lgkmcnt(0)\ns_cmp_lg_u32 s2, {DBGT}\ns_cbranch_scc1 K1_end\ns_cmp_lg_u32 s16, 2\ns_cbranch_scc1 K1_end")
        for i in range(1, 15):
            a(f"s_sub_u32 s40, s{ST0+2*i}, s{ST0}\nv_mov_b32 v2, s40\ns_mov_b64 exec, 1\nbuffer_store_dword v2, v1, s[24:27], 0 offen offset:{4*(i+1)}\ns_mov_b64 exec, -1\ns_nop 1")
    else:
        stamp_out(a, 1, 16)
    a.label("K1_end")
    a("s_endpgm")
    a.label("CODE_END")
    return (KNAME, 256, 512, 163840, a.text(), 256, 102, 256)

SWA = JUNK + 1024
def ssm_post4(a, NU, ACC, CN, sacc, SU, after_join):
    TP = XR + 48
    B0 = LB + 3 * 24576
    EQP = 48
    EQU = 8 * 16 * EQP
    TT = B0 + NU * EQU; TTP = 80; SW = SWA
    P_ = TP; E = TP + 10; t0 = TP + 20
    stamp(a, 3)
    a("s_nop 7")
    def breg(u, comp, i): return sacc(u, comp, i // 4) + (i % 4)
    def cmadd(dr, di, lr, li, xr, xi, br, bi, t):
        a(f"v_fma_f32 v{t}, v{lr}, v{xr}, v{br}")
        a(f"v_fma_f32 v{t+1}, v{lr}, v{xi}, v{bi}")
        a(f"v_fma_f32 v{t+1}, v{li}, v{xr}, v{t+1}")
        a(f"v_fma_f32 v{dr}, -v{li}, v{xi}, v{t}")
        a(f"v_mov_b32 v{di}, v{t+1}")
    def cmadd4(dr, di, lr, li, xr, xi, br, bi, nli=None):
        if dr == br:
            a(f"v_fmac_f32 v{dr}, v{lr}, v{xr}")
            a(f"v_fmac_f32 v{di}, v{lr}, v{xi}")
        else:
            a(f"v_fma_f32 v{dr}, v{lr}, v{xr}, v{br}")
            a(f"v_fma_f32 v{di}, v{lr}, v{xi}, v{bi}")
        if nli is None: a(f"v_fma_f32 v{dr}, -v{li}, v{xi}, v{dr}")
        else: a(f"v_fmac_f32 v{dr}, v{nli}, v{xi}")
        a(f"v_fmac_f32 v{di}, v{li}, v{xr}")
    E2 = t0 + 8
    NL = 248
    for u in range(NU): a(f"v_sub_f32 v{NL+u}, 0, v{CN+8*u+1}")
    for i in range(1, 8):
        for u in range(NU):
            lr, li = CN + 8 * u, CN + 8 * u + 1
            if i == 1: xr, xi = breg(u, 0, 0), breg(u, 1, 0)
            else:
                src = (E if (i - 1) % 2 == 1 else E2) + 2 * u
                xr, xi = src, src + 1
            dst = (E if i % 2 == 1 else E2) + 2 * u
            cmadd4(dst, dst + 1, lr, li, xr, xi, breg(u, 0, i), breg(u, 1, i), NL + u)
    for u in range(NU):
        cr, ci = CN + 8 * u + 2, CN + 8 * u + 3
        br, bi = E + 2 * u, E + 2 * u + 1
        t = E2 + 2 * u
        a(f"v_mul_f32 v{t}, v{ci}, v{bi}")
        a(f"v_mul_f32 v{t+1}, v{ci}, v{br}")
        a(f"v_fma_f32 v{br}, v{cr}, v{br}, -v{t}")
        a(f"v_fma_f32 v{bi}, v{cr}, v{bi}, v{t+1}")
    A0 = t0 + 18; A1 = t0 + 19; A2 = t0 + 20; A3 = t0 + 21
    a(f"""
    v_and_b32 v{A2}, 15, v0
    v_lshrrev_b32 v{A3}, 4, v0
    s_mul_i32 s40, s16, {16*EQP}
    s_add_u32 s40, s40, {B0}
    v_mul_u32_u24 v{A0}, {EQP}, v{A2}
    v_add_u32 v{A0}, s40, v{A0}
    v_lshl_add_u32 v{A1}, v{A3}, 3, v{A0}
    v_cmp_eq_u32 s[50:51], 1, v{A3}
    v_cmp_eq_u32 s[52:53], 2, v{A3}
    v_cmp_eq_u32 s[54:55], 3, v{A3}
    """)
    for u in range(NU):
        a(f"ds_write_b64 v{A1}, v[{E+2*u}:{E+2*u+1}] offset:{u*EQU}")
    Q = t0 + 24
    for u in range(NU):
        a(f"ds_read_b128 v[{Q+8*u}:{Q+8*u+3}], v{A0} offset:{u*EQU}")
        a(f"ds_read_b128 v[{Q+8*u+4}:{Q+8*u+7}], v{A0} offset:{u*EQU + 16}")
    a(f"s_lshl_b32 s40, s16, 3\ns_add_u32 s40, s40, {TT}\nv_mul_u32_u24 v{A1}, {TTP}, v{A2}\nv_add_u32 v{A1}, s40, v{A1}")
    a("s_waitcnt lgkmcnt(0)")
    for step in range(1, 4):
        for u in range(NU):
            q = Q + 8 * u
            lr, li = CN + 8 * u + 4, CN + 8 * u + 5
            cmadd4(q + 2 * step, q + 2 * step + 1, lr, li, q + 2 * step - 2, q + 2 * step - 1, q + 2 * step, q + 2 * step + 1)
    a("s_mov_b64 exec, 0xffff")
    for u in range(NU):
        q = Q + 8 * u
        a(f"ds_write_b64 v{A1}, v[{q+6}:{q+7}] offset:{u*16*TTP}")
    a("s_mov_b64 exec, -1\ns_waitcnt lgkmcnt(0)\ns_barrier")
    stamp(a, 5)
    def sel_p():
        for u in range(NU):
            q = Q + 8 * u
            for c in range(2):
                a(f"v_cndmask_b32 v{P_+2*u+c}, 0, v{q+c}, s[50:51]")
                a(f"v_cndmask_b32 v{P_+2*u+c}, v{P_+2*u+c}, v{q+2+c}, s[52:53]")
                a(f"v_cndmask_b32 v{P_+2*u+c}, v{P_+2*u+c}, v{q+4+c}, s[54:55]")
    def scale_all():
        for u in range(NU):
            cr, ci = CN + 8 * u + 2, CN + 8 * u + 3
            for i in range(8):
                br, bi = breg(u, 0, i), breg(u, 1, i)
                t = E2 + 2 * (i % 4)
                a(f"v_mul_f32 v{t}, v{ci}, v{bi}")
                a(f"v_mul_f32 v{t+1}, v{ci}, v{br}")
                a(f"v_fma_f32 v{br}, v{cr}, v{br}, -v{t}")
                a(f"v_fma_f32 v{bi}, v{cr}, v{bi}, v{t+1}")
    L32r, L32i, L256r, L256i = CN + 40, CN + 41, CN + 42, CN + 43
    TW = 8; G = Q + 16; S_ = t0
    a("s_cmp_ge_u32 s16, 5\ns_cbranch_scc1 K1_pub")
    a(f"""
    s_setprio 3
    s_mul_i32 s40, s16, {16*TTP}
    s_add_u32 s40, s40, {TT}
    v_mul_u32_u24 v{A1}, {TTP}, v{A2}
    v_add_u32 v{A1}, s40, v{A1}
    """)
    for k in range(4):
        a(f"ds_read_b128 v[{TW+4*k}:{TW+4*k+3}], v{A1} offset:{16*k}")
    a(f"""
    s_add_u32 s40, s57, s16
    s_lshl_b32 s40, s40, 11
    s_add_u32 s40, s40, {WS_E}
    v_lshlrev_b32 v{A0}, 4, v{A2}
    v_mov_b32 v25, 1
    v_mov_b32 v27, 1
    s_lshl_b32 s41, s17, 8
    s_add_u32 s41, s41, s40
    s_waitcnt lgkmcnt(0)
    """)
    cur = (TW, TW + 1)
    for w in range(1, 8):
        d = (S_ + 2 * (w % 2), S_ + 2 * (w % 2) + 1) if w < 7 else (24, 26)
        cmadd4(d[0], d[1], L32r, L32i, cur[0], cur[1], TW + 2 * w, TW + 2 * w + 1)
        cur = d
    a(f"""
    s_mov_b64 exec, 0xffff
    buffer_store_dwordx4 v[24:27], v{A0}, s[4:7], s41 offen sc1
    s_mov_b64 exec, -1
    s_setprio 0
    """)
    a.label("K1_pub")
    sel_p()
    scale_all()
    a("s_cmp_ge_u32 s16, 5\ns_cbranch_scc1 K1_join")
    a(f"""
    s_setprio 3
    v_mov_b32 v{S_}, 0
    v_mov_b32 v{S_+1}, 0
    s_mov_b32 s47, 0
    s_cmp_eq_u32 s17, 0
    s_cbranch_scc1 K1_lbdone
    """)
    a.label("K1_lbloop")
    for k in range(7):
        a(f"buffer_load_dwordx4 v[{G+4*k-16}:{G+4*k+3-16}], v{A0}, s[4:7], s40 offen offset:{256*k} sc1")
    G -= 16
    a(f"""
    v_mov_b32 v{S_}, 0
    v_mov_b32 v{S_+1}, 0
    v_mov_b32 v{S_+4}, 1
    s_waitcnt vmcnt(0)
    """)
    for k in range(7):
        a(f"v_and_b32 v{S_+4}, v{S_+4}, v{G+4*k+1}")
        a(f"v_and_b32 v{S_+4}, v{S_+4}, v{G+4*k+3}")
        cmadd(S_, S_ + 1, L256r, L256i, S_, S_ + 1, G + 4 * k, G + 4 * k + 2, S_ + 2)
        if k < 6:
            a(f"s_cmp_eq_u32 s17, {k+1}\ns_cbranch_scc1 K1_lbchk")
    a.label("K1_lbchk")
    a(f"""
    v_cmp_ne_u32 vcc, 1, v{S_+4}
    s_cbranch_vccz K1_lbdone
    s_add_u32 s47, s47, 1
    s_cmp_lt_u32 s47, 0x40000
    s_cbranch_scc1 K1_lbloop
    """)
    a.label("K1_lbdone")
    a(f"""
    s_lshl_b32 s40, s16, 10
    s_add_u32 s40, s40, {SW}
    v_lshl_add_u32 v{A1}, v{A2}, 3, s40
    s_mov_b64 exec, 0xffff
    ds_write_b64 v{A1}, v[{S_}:{S_+1}]
    """)
    cur = (S_, S_ + 1)
    for w in range(7):
        cmadd4(TW + 2 * w, TW + 2 * w + 1, L32r, L32i, cur[0], cur[1], TW + 2 * w, TW + 2 * w + 1)
        cur = (TW + 2 * w, TW + 2 * w + 1)
        a(f"ds_write_b64 v{A1}, v[{cur[0]}:{cur[1]}] offset:{128*(w+1)}")
    a("s_mov_b64 exec, -1\ns_setprio 0")
    a.label("K1_join")
    RP = 80; UB = 32 * RP
    a(f"""
    s_lshl_b32 s40, s16, 7
    s_add_u32 s40, s40, {SW}
    v_lshl_add_u32 v{E2}, v{A2}, 3, s40
    s_mul_i32 s40, s16, {NU*UB}
    s_add_u32 s40, s40, {LB}
    v_mul_u32_u24 v{A0}, {RP}, v{A2}
    v_lshl_add_u32 v{A0}, v{A3}, 4, v{A0}
    v_add_u32 v{A0}, s40, v{A0}
    v_bfe_u32 v{A2}, v0, 2, 2
    v_lshl_add_u32 v{A1}, v{A3}, 3, v{A2}
    v_mul_u32_u24 v{A1}, {RP}, v{A1}
    v_and_b32 v{A2}, 3, v0
    v_lshl_add_u32 v{A1}, v{A2}, 4, v{A1}
    v_add_u32 v{A1}, s40, v{A1}
    v_lshrrev_b32 v{A2}, 5, v0
    v_lshlrev_b32 v{A2}, 11, v{A2}
    v_and_b32 v{A3}, 31, v0
    v_lshl_add_u32 v{A2}, v{A3}, 4, v{A2}
    s_waitcnt lgkmcnt(0)
    s_barrier
    """)
    stamp(a, 6)
    for u in range(NU):
        a(f"ds_read_b64 v[{E+2*u}:{E+2*u+1}], v{E2} offset:{u*1024}")
    after_join()
    a("s_waitcnt lgkmcnt(0)")
    for u in range(NU):
        cmadd4(P_ + 2 * u, P_ + 2 * u + 1, CN + 8 * u + 6, CN + 8 * u + 7, E + 2 * u, E + 2 * u + 1, P_ + 2 * u, P_ + 2 * u + 1)
    def scan(us):
        for i in range(8):
            for u in us:
                lr, li = CN + 8 * u, CN + 8 * u + 1
                if i == 0: xr, xi = P_ + 2 * u, P_ + 2 * u + 1
                else: xr, xi = breg(u, 0, i - 1), breg(u, 1, i - 1)
                cmadd4(breg(u, 0, i), breg(u, 1, i), lr, li, xr, xi, breg(u, 0, i), breg(u, 1, i), NL + u)
    def pack(us):
        for u in us:
            q = Q + 8 * u
            for k in range(4):
                a(f"v_cvt_pk_bf16_f32 v{q+k}, v{breg(u,0,2*k)}, v{breg(u,0,2*k+1)}")
                a(f"v_cvt_pk_bf16_f32 v{q+4+k}, -v{breg(u,1,2*k)}, -v{breg(u,1,2*k+1)}")
            a(f"ds_write_b128 v{A0}, v[{q}:{q+3}] offset:{u*UB}")
            a(f"ds_write_b128 v{A0}, v[{q+4}:{q+7}] offset:{u*UB + 16*RP}")
            for j in range(2):
                o = sacc(u, 0, j)
                for e in range(2):
                    a(f"ds_read_b64_tr_b16 v[{o+2*e}:{o+2*e+1}], v{A1} offset:{u*UB + e*4*RP + j*8}")
    def store(us):
        a("s_waitcnt lgkmcnt(0)")
        for u in us:
            a(f"""
            s_add_u32 s40, s{SU}, {u}
            s_lshr_b32 s41, s40, 2
            s_lshl_b32 s41, s41, 12
            s_and_b32 s42, s40, 3
            s_lshl_b32 s42, s42, 9
            s_add_u32 s41, s41, s42
            s_add_u32 s41, s41, s34
            s_add_u32 s41, s41, {144*1024}
            s_add_u32 s42, s41, 184320
            """)
            for j in range(2):
                o = sacc(u, 0, j)
                a(f"buffer_store_dwordx4 v[{o}:{o+3}], v{A2}, s[4:7], s{41+j} offen {HST}")
    scan([0, 1, 2]); pack([0, 1, 2]); scan([3, 4]); store([0, 1, 2]); pack([3, 4]); store([3, 4])

if __name__ == "__main__":
    out = sys.argv[1] if len(sys.argv) > 1 else "out.s"
    k = gen_main()
    t = build_file([k]).replace(f"@launch kernel={KNAME} ", "@launch ", 1)
    open(out, "w").write(t)
```

```python
import sys, os
from asmlib import *
import gen as G1
from gen import WS_X, WS_H, WS_BASE, WS_CONST, WS_E, WS_PART, WS_SIZE, WS_FLAG, srd, MFMA, P
from gen import stamp, stamp_init, stamp_out, STAMP, ST0, XR, xreg
import gen3
from gen3 import Stream, spread, stampc, LB

HST = "sc1"
LD = P("LD", 5); LX = P("LX", 2)
W2G = P("W2G", 1)
S0 = P("S0", 6); LP = P("LP", 14); LH = P("LH", 4)
POLLSLEEP = P("POLLSLEEP", 2)
SPC = [int(x) for x in os.environ.get("SPC", "4,8,12").split(",")]
NPRE = P("NPRE", 12); HPRE = P("HPRE", 6)
XNOLD = P("XNOLD", 0); XNOSB = P("XNOSB", 0); XNOW = P("XNOW", 0)
GSP = [int(x) for x in os.environ.get("GSP", "-1").split(",")]
OST = os.environ.get("OST", "")
NP = 19; CA = 11
JUNK = LB + NP * 8192
WS_PF = WS_FLAG + 131072
OOB = "0x7ff00000"
KNAME = "parallel_sum__ssm_conv_s5__glu_gated_bilinear__prompt_kernel"
PS0 = P("PS0", 8); PS1 = P("PS1", 4); RSH = P("RSH", 7); WPF = P("WPF", 0); ND0 = P("ND0", 2); SPE = P("SPE", 0); SPF = P("SPF", 2); DBGT = P("DBGT", 0); NLATE = P("NLATE", 1); FLN = P("FLN", 1); DRY = P("DRY", 0); LNF = P("LNF", 1); DMID = P("DMID", 1); CPF0 = P("CPF0", 1); ZPF = P("ZPF", 5); EPF = P("EPF", 0); WPS = P("WPS", 7); NDE = P("NDE", 0); NDS = P("NDS", 5)
WS_EF = WS_FLAG + 65536; TWF = P("TWF", 0); TPS = P("TPS", 3)
WS_RDY = WS_FLAG + 32768
VA = 2; VD = 6; VE = 7; VR = 8; VFA = 9; VO = 10; VC0 = 11; VC1 = 12; VPA = 13; VPF = 14; VT = 15
FR = 16; HF = XR; T = 18 - S0
DF = P("DF", 6)
VA2 = [VA, 240, 244]
PANEL = [208, 48, 80]
SP = XR + (S0 % (18 - S0)) * 8
assert T <= 12

def poll_ops(S, a, need, res):
    def issue():
        S.vmi(("poll", need), f"buffer_load_dword v{res}, v{VPA}, s[4:7], s57 offen sc1")
    def check():
        S.vmw({("poll", need)})
        sl = a.newlabel("PLs"); bk = a.newlabel("PLb")
        a(f"v_cmp_gt_u32 vcc, {need}, v{res}\ns_cbranch_vccnz {sl}")
        a.label(bk)
        S.pslow.append((sl, bk, need, res))
    return issue, check
def allset_ops(S, a, res, vtmp):
    ld = f"buffer_load_dword v{res}, v{vtmp}, s[24:27], 0 offen offset:128 sc1"
    def issue():
        a(f"v_and_b32 v{vtmp}, 7, v0\nv_lshlrev_b32 v{vtmp}, 2, v{vtmp}")
        S.vmi("allset", ld)
    def check():
        S.vmw({"allset"})
        sl = a.newlabel("ASs"); bk = a.newlabel("ASb")
        a(f"v_cmp_ne_u32 vcc, 1, v{res}\ns_cbranch_vccnz {sl}")
        a.label(bk)
        S.aslow.append((sl, bk, ld, res))
    return issue, check
def emit_pslow(S, a):
    for sl, bk, ld, res in getattr(S, "aslow", []):
        lp = a.newlabel("ASl")
        a.label(sl)
        a("s_mov_b32 s47, 0")
        a.label(lp)
        a(f"""
        s_sleep 4
        {ld}
        s_waitcnt vmcnt(0)
        v_cmp_ne_u32 vcc, 1, v{res}
        s_cbranch_vccz {bk}
        s_add_u32 s47, s47, 1
        s_cmp_lt_u32 s47, 0x40000
        s_cbranch_scc1 {lp}
        s_branch {bk}
        """)
    S.aslow = []
    for sl, bk, need, res in S.pslow:
        lp = a.newlabel("PLl")
        a.label(sl)
        a("s_mov_b32 s47, 0")
        a.label(lp)
        a(f"""
        s_sleep 1
        buffer_load_dword v{res}, v{VPA}, s[4:7], s57 offen sc1
        s_waitcnt vmcnt(0)
        v_cmp_gt_u32 vcc, {need}, v{res}
        s_cbranch_vccz {bk}
        s_add_u32 s47, s47, 1
        s_cmp_lt_u32 s47, 0x40000
        s_cbranch_scc1 {lp}
        s_branch {bk}
        """)
    S.pslow.clear()
def flag_store(S, a, val):
    a(f"v_mov_b32 v{VT}, {val}\ns_mov_b64 exec, 1")
    S.vmi("flag", f"buffer_store_dword v{VT}, v1, s[4:7], s56 offen sc1")
    a("s_mov_b64 exec, -1")

class K2Plan:
    def __init__(self, pre, avail, first_sync):
        pc = []
        for st in range(S0): pc += [(st, 0), (st, 1), (st, 2)]
        for st in range(S0, 18): pc += [(st, 0), (st, 1)]
        self.PH2 = PH2 = len(pc)
        for st in range(S0, 18): pc += [(st, 2)]
        self.pieces = pc; self.NPC = NPC = len(pc)
        ev = list(first_sync); cov = ev[-1][2]
        while True:
            c = cov - 1; ar = max(ev[-1][1], c - 2, 0)
            if c > PH2: break
            ncov = cov + 3
            if ncov > PH2 + 1: ncov = PH2 + 4
            ev.append((ar, c, ncov)); cov = ncov
        assert cov == PH2 + 4
        ev.append((PH2, PH2 + 1, PH2 + 5))
        ev.append((PH2 + 2, PH2 + 3, min(NPC - 1, PH2 + 8))); cov = ev[-1][2]
        ev.append((PH2 + 5, PH2 + 7, NPC - 1))
        self.ev = ev
        self.arr = {e[0]: e for e in ev if e[0] >= 0}; self.chk = {e[1]: e for e in ev if e[1] >= 0}
        for x, y in zip(ev, ev[1:]): assert x[1] <= y[0] < y[1] and (y[1] < x[2] or x[2] == NPC - 1), (x, y)
        def safe_after(p):
            for ar, c, _ in ev:
                if ar >= p: return c
            return 10 ** 9
        self.slot = {}; free_at = dict(avail)
        def alloc(i, t, forced=None):
            cands = [s for s in range(NP) if free_at[s] <= t]
            if safe_after(i) > PH2: cands = [s for s in cands if s < CA]
            else:
                cands = sorted(cands, key=lambda s: -s)
                if forced is None and i >= PH2 - 14 and i > t + 9: cands = [s for s in cands if s >= CA]
            if forced is not None: cands = [forced]
            if not cands: return None
            s = cands[0]; self.slot[i] = s; free_at[s] = safe_after(i); return s
        for i, s in enumerate(pre): alloc(i, -1, s)
        nxt = len(pre); self.issue_at = {}
        for t in range(NPC):
            self.issue_at[t] = []
            while nxt < NPC and nxt <= t + LP and len(self.issue_at[t]) < 2:
                if alloc(nxt, t) is None: break
                self.issue_at[t].append(nxt); nxt += 1
        assert nxt == NPC
        for ar, c, cv in ev:
            for i in range(len(pre), cv + 1):
                assert min(t for t in self.issue_at if i in self.issue_at[t]) < ar, (i, ar)

def k2acc(nb, j): return PANEL[nb // 4] + ((nb % 4) * 2 + j) * 4
def hreg(st, j): return HF + (st % T) * 8 + j * 4

def k2_main(a, S, plan, kind, dma, rd, hload_ops, hn, frbuf, extra0, hgate):
    PH2, NPC, pieces = plan.PH2, plan.NPC, plan.pieces
    def piece(S, i, extra):
        st, pn = pieces[i]
        pre, side = [], []
        for o in extra:
            (pre if getattr(o, "pre", False) else side).append(o)
        ld = []
        if hn[0] < 18 and (hn[0] <= st + LH) and i >= hgate.get(hn[0], 0) and i < PH2:
            ld += hload_ops(S, hn[0]); hn[0] += 1
        for x in plan.issue_at[i]: ld.append(lambda x=x: dma(S, x))
        if XNOLD and 12 <= i:
            for o in ld:
                sv = a.lines[:]; o(); a.lines[:] = sv
            S.vd = len(S.vm); ld = []
        side = ld + side
        if XNOSB and 12 <= i < PH2 - 3: pass
        elif i in plan.chk: S.check()
        if XNOSB and 12 <= i < PH2 - 3: pass
        elif i in plan.arr:
            S.vmw({("W", x) for x in range(plan.arr[i][2] + 1)}); S.arrive()
        for o in pre: o()
        assert ("H", st) in S.vm, (i, st)
        S.vmw({("H", st)})
        for b in range(4):
            f = 4 * i + b
            if b == 1 and (i + 1) in plan.chk and not (XNOSB and 12 <= i + 1 < PH2 - 3): S.peek()
            if not (XNOW and b % 2): S.lgw({("F2", f + XNOW)})
            buf = frbuf(f)
            for j in range(2):
                c = k2acc(4 * pn + b, j); h = hreg(st, j)
                src2 = "0" if st == 0 else f"v[{c}:{c+3}]"
                a(f"{MFMA} v[{c}:{c+3}], v[{buf}:{buf+3}], v[{h}:{h+3}], {src2}")
                rd(S, f + DF, j)
                for o in spread(side, 8, 2 * b + j): o()
    for i in range(PH2):
        piece(S, i, extra0.get(i, []))
        if i == 17: stamp(a, 8)
        if kind == "ffn":
            for si, pi_ in zip((6, 7, 15), SPC):
                if i == pi_: stamp(a, si)
    stamp(a, 9)
    a(f"s_cmp_eq_u32 s42, 1\ns_cbranch_scc1 K2_{kind}_h1")
    S_ = S
    B0 = SP; B1 = SP + 8
    for h in range(2):
        S = S_.fork2(); S.pslow = S_.pslow
        if h == 1: a.label(f"K2_{kind}_h1")
        keep = PANEL[h]; send = PANEL[1 - h]
        ex = {}
        nop = [lambda: None]
        wr = [lambda k=k: S.lgi("cw", f"ds_write_b128 v{VC0}, v[{send+4*k}:{send+4*k+3}] offset:{k*1024}") for k in range(8)]
        ex[PH2] = nop * 2 + wr[:4]; ex[PH2 + 1] = wr[4:]
        ex[PH2 + 2] = [lambda r=r: a(f"v_mov_b32 v{SP+2*r}, 0\nv_mov_b32 v{SP+2*r+1}, 0") for r in range(8)]
        ex[PH2 + 3] = [lambda k=k: S.lgi(("cr", k), f"ds_read_b128 v[{send+4*k}:{send+4*k+3}], v{VC1} offset:{k*1024}") for k in range(8)]
        def add2(k, r0):
            S.lgw({("cr", k)})
            for r in (r0, r0 + 1): a(f"v_add_f32 v{keep+4*k+r}, v{keep+4*k+r}, v{send+4*k+r}")
        def unit_ops(un, src0, src1, T_, dst):
            ops = []
            for x, s_ in enumerate((src0, src1)):
                ops.append(lambda x=x, s_=s_: a(f"v_cvt_pk_bf16_f32 v{T_+2*x}, v{s_}, v{s_+1}\nv_cvt_pk_bf16_f32 v{T_+2*x+1}, v{s_+2}, v{s_+3}"))
            def fin():
                nx = a.newlabel("K2_nx")
                a(f"s_cmp_eq_u32 s49, {un % 5}\ns_cselect_b32 s44, {OOB}, s{54 + un//3}")
                S.vmi("U", f"buffer_store_dwordx4 v[{T_}:{T_+3}], v1, s[4:7], s44 offen offset:{(un%3)*1024} sc1")
                a(f"s_cbranch_scc0 {nx}")
                for x, s_ in enumerate((src0, src1)):
                    for r in range(4): a(f"v_add_f32 v{dst+4*x+r}, v{dst+4*x+r}, v{s_+r}")
                a.label(nx)
            ops.append(fin)
            return ops
        for nbp in range(2):
            ops = []
            for k in range(4 * nbp, 4 * nbp + 4):
                ops += [lambda k=k: add2(k, 0), lambda k=k: add2(k, 2)]
            ex[PH2 + 4 + 2 * nbp] = ops
            o2 = []
            for j in range(2):
                o2 += unit_ops(2 * nbp + j, keep + (4*nbp + j) * 4, keep + (4*nbp + 2 + j) * 4, send + (4*nbp + j) * 4, B0)
            ex[PH2 + 5 + 2 * nbp] = o2
        o1, o2_, o3 = tail_setup_ops(a, S)
        ex[PH2 + 3] = ex[PH2 + 3] + [lambda: tail_ptrs(a)]
        ex[PH2 + 6] = ex[PH2 + 6] + o1[:18]; ex[PH2 + 7] = ex[PH2 + 7] + o1[18:]
        ex[PH2 + 8] = o2_ + o3[:6]; ex[PH2 + 9] = o3[6:]
        assert max(t for t in plan.issue_at if plan.issue_at[t]) < PH2 + 3
        for i in range(PH2, NPC):
            piece(S, i, ex.get(i, []))
        stamp(a, 10)
        keep2 = PANEL[2] + 16 * h; send2 = PANEL[2] + 16 * (1 - h)
        a("s_nop 7")
        for k in range(4):
            a(f"ds_write_b128 v{VC0}, v[{send2+4*k}:{send2+4*k+3}] offset:{k*1024}")
        a("s_waitcnt lgkmcnt(0)\ns_barrier")
        for k in range(4):
            a(f"ds_read_b128 v[{send2+4*k}:{send2+4*k+3}], v{VC1} offset:{k*1024}")
        for k in range(4):
            a(f"s_waitcnt lgkmcnt({3-k})")
            for r in range(4): a(f"v_add_f32 v{keep2+4*k+r}, v{keep2+4*k+r}, v{send2+4*k+r}")
        for j in range(2):
            for o in unit_ops(4 + j, keep2 + j * 4, keep2 + 8 + j * 4, send2 + 4 * j, B1): o()
        a("s_branch K2_fin")
    S_.emit_slow(); emit_pslow(S_, a)

def base_load(S, a):
    for x in range(2):
        b = SP + 8 * x
        a(f"s_add_u32 s44, s{60+x}, {WS_BASE}")
        S.vmi("B", f"buffer_load_dwordx4 v[{b}:{b+3}], v{VO}, s[4:7], s44 offen")
        S.vmi("B", f"buffer_load_dwordx4 v[{b+4}:{b+7}], v{VO}, s[4:7], s44 offen offset:64")

TVB = HF + ((S0 + 2) % T) * 8
def tail_ptrs(a):
    a("s_load_dwordx2 s[52:53], s[0:1], 104\ns_load_dwordx2 s[28:29], s[0:1], 0\ns_load_dwordx2 s[30:31], s[0:1], 64")
def tail_setup_ops(a, S):
    TV = TVB; BL = TVB + 8
    t1 = f"""
    v_lshrrev_b32 v{TV}, 1, v{VO}
    v_lshrrev_b32 v{TV+3}, 4, v0
    v_lshlrev_b32 v{TV+1}, 3, v{TV+3}
    v_lshrrev_b32 v{TV+2}, 1, v{TV+3}
    v_lshlrev_b32 v{TV+2}, 8, v{TV+2}
    v_and_b32 v{TV+4}, 15, v0
    v_lshl_add_u32 v{TV+2}, v{TV+4}, 4, v{TV+2}
    v_and_b32 v{TV+4}, 1, v{TV+3}
    v_lshl_add_u32 v{TV+2}, v{TV+4}, 3, v{TV+2}
    s_mul_i32 s32, s99, 6
    s_lshl_b32 s33, s42, 1
    s_add_u32 s34, s32, s33
    s_lshr_b32 s33, s49, 1
    s_add_u32 s34, s34, s33
    s_add_u32 s35, s32, s42
    s_add_u32 s35, s35, 4
    s_lshl_b32 s32, s98, 2
    s_and_b32 s33, s16, 3
    s_add_u32 s32, s32, s33
    s_mul_i32 s32, s32, 36
    s_and_b32 s33, s49, 1
    s_mul_i32 s33, s33, 18
    s_add_u32 s36, s32, s33
    s_add_u32 s36, s36, s34
    s_lshl_b32 s36, s36, 10
    s_cmp_eq_u32 s49, 0~s_cselect_b32 s33, 18, 0
    s_add_u32 s37, s32, s33
    s_add_u32 s37, s37, s35
    s_lshl_b32 s37, s37, 10
    s_lshl_b32 s34, s34, 6
    s_lshl_b32 s35, s35, 6
    s_lshr_b32 s38, s60, 1
    s_lshr_b32 s39, s61, 1
    s_cmp_eq_u32 s49, 4~s_cselect_b32 s36, {OOB}, s36
    s_and_b32 s33, s49, 3~s_cselect_b32 s37, {OOB}, s37
    """
    ops = [(lambda l=l: a(l.replace("~", "\n"))) for l in t1.strip().split("\n")]
    def srds():
        S.lg0()
        srd(a, 8, 52, 2048 * 2304); srd(a, 12, 28, 2048 * 1152); srd(a, 20, 30, 1152)
    lds = []
    for x in range(2):
        for n in range(2):
            r = BL + 12 * x + 6 * n
            lds.append(lambda r=r, x=x, n=n: S.vmi("B", f"buffer_load_dwordx2 v[{r}:{r+1}], v{TV}, s[12:15], s{38+x} offen offset:{32*n}"))
            lds.append(lambda r=r, x=x, n=n: S.vmi("B", f"buffer_load_dwordx2 v[{r+2}:{r+3}], v{TV+2}, s[4:7], s{36+x} offen offset:{512*n} sc1"))
            lds.append(lambda r=r, x=x, n=n: S.vmi("B", f"buffer_load_dwordx2 v[{r+4}:{r+5}], v{TV+1}, s[20:23], s{34+x} offen offset:{32*n}"))
    return ops, [srds], lds

def k2_scalars(a):
    a(f"""
    s_and_b32 s23, s16, 3
    s_lshr_b32 s42, s16, 2
    s_lshl_b32 s30, s98, 2
    s_add_u32 s30, s30, s23
    s_mul_i32 s30, s30, 360
    s_mul_i32 s31, s97, 36
    s_add_u32 s30, s30, s31
    s_add_u32 s30, s30, s42
    s_lshl_b32 s30, s30, 10
    s_add_u32 s30, s30, {WS_H}
    s_add_u32 s31, s30, 184320
    s_lshl_b32 s57, s98, 2
    s_add_u32 s57, s57, s23
    s_mul_i32 s57, s57, 640
    s_lshl_b32 s47, s97, 7
    s_add_u32 s57, s57, s47
    s_add_u32 s57, s57, {WS_PF}
    s_mul_i32 s43, s98, 3
    s_add_u32 s43, s43, s99                  ; tile
    s_add_u32 s49, s97, 10
    s_sub_u32 s49, s49, s16
    s_mul_i32 s47, s49, 52
    s_lshr_b32 s47, s47, 8
    s_mul_i32 s47, s47, 5
    s_sub_u32 s49, s49, s47
    s_lshl_b32 s47, s98, 7
    s_lshl_b32 s50, s23, 5
    s_add_u32 s47, s47, s50
    s_mul_i32 s47, s47, 2304
    s_mul_i32 s50, s99, 768
    s_add_u32 s47, s47, s50
    s_lshl_b32 s50, s42, 8
    s_add_u32 s60, s47, s50
    s_and_b32 s50, s49, 1
    s_mul_i32 s50, s50, {4*2304}
    s_add_u32 s60, s60, s50
    s_lshr_b32 s50, s49, 1
    s_lshl_b32 s50, s50, 7
    s_add_u32 s60, s60, s50
    s_lshl_b32 s50, s42, 7
    s_add_u32 s61, s47, s50
    s_add_u32 s61, s61, 512
    s_cmp_eq_u32 s49, 0
    s_cselect_b32 s50, {4*2304}, 0
    s_add_u32 s61, s61, s50
    s_lshl_b32 s47, s43, 3
    s_add_u32 s47, s47, s16
    s_mul_i32 s47, s47, 6144
    s_add_u32 s47, s47, {WS_PART}
    s_mul_i32 s54, s97, {48*48*1024}
    s_add_u32 s54, s54, s47
    s_add_u32 s55, s54, 3072
    s_lshl_b32 s50, s49, 10
    s_add_u32 s62, s47, s50
    s_cmp_eq_u32 s49, 0
    s_mov_b32 s50, 4096
    s_cselect_b32 s50, 5120, s50
    s_add_u32 s63, s47, s50
    s_cmp_lt_u32 s49, 4
    s_cselect_b32 s60, s60, {OOB}
    s_cselect_b32 s62, s62, {OOB}
    s_and_b32 s50, s49, 3
    s_cmp_eq_u32 s50, 0
    s_cselect_b32 s61, s61, {OOB}
    s_cselect_b32 s63, s63, {OOB}
    s_lshl_b32 s47, s43, 3
    s_add_u32 s47, s47, {"s16" if TWF else "0"}
    s_lshl_b32 s47, s47, 7
    s_add_u32 s48, s47, {WS_EF}
    """)
def k2_vregs(a, npoll):
    a(f"""
    v_bfe_u32 v{VO}, v0, 2, 2
    v_lshlrev_b32 v{VO}, 3, v{VO}
    v_and_b32 v{VT}, 3, v0
    v_add_u32 v{VO}, v{VO}, v{VT}
    v_mul_u32_u24 v{VO}, 2304, v{VO}
    v_lshrrev_b32 v{VT}, 4, v0
    v_lshl_add_u32 v{VO}, v{VT}, 4, v{VO}
    s_lshl_b32 s47, s16, 13
    s_add_u32 s47, s47, {LB + CA*8192}
    v_add_u32 v{VC0}, s47, v1
    s_xor_b32 s50, s16, 4
    s_lshl_b32 s50, s50, 13
    s_add_u32 s50, s50, {LB + CA*8192}
    v_add_u32 v{VC1}, s50, v1
    v_min_u32 v{VPA}, {npoll-1}, v0
    v_lshlrev_b32 v{VPA}, 2, v{VPA}
    """)

STG = LB + 131072
CT = LB + 147456
LNR = 48

def ln_issue(a, S):
    a(f"""
    s_lshl_b32 s40, s3, 2
    s_add_u32 s40, s40, s18                  ; c = 4xcd + k4
    s_lshr_b32 s41, s40, 1
    s_lshl_b32 s44, s17, 4
    s_add_u32 s44, s44, s41                  ; mb
    s_and_b32 s45, s40, 1                    ; half
    s_lshl_b32 s47, s45, 3
    s_add_u32 s47, s47, s16                  ; i
    s_lshr_b32 s50, s44, 1
    s_lshl_b32 s50, s50, 5
    s_and_b32 s51, s44, 1
    s_lshl_b32 s51, s51, 2
    s_add_u32 s50, s50, s51
    s_lshr_b32 s51, s47, 2
    s_lshl_b32 s51, s51, 3
    s_add_u32 s50, s50, s51
    s_and_b32 s51, s47, 3
    s_add_u32 s50, s50, s51                  ; t
    s_mul_i32 s50, s50, 1152
    v_cmp_gt_u32 vcc, 36, v0
    v_mov_b32 v{LNR+40}, 0x7ffffff0
    s_mul_i32 s100, s44, 18432
    s_lshl_b32 s45, s45, 7
    v_cndmask_b32 v{LNR+41}, v{LNR+40}, v1, vcc
    s_add_u32 s100, s100, s45
    s_lshl_b32 s101, s17, 5
    s_add_u32 s101, s101, s40
    s_waitcnt lgkmcnt(0)
    """)
    srd(a, 8, 48, 2048 * 1152)
    S.vmi("x", f"buffer_load_dwordx4 v[{LNR}:{LNR+3}], v{LNR+41}, s[8:11], s50 offen")
    S.vmi("x", f"buffer_load_dwordx4 v[{LNR+4}:{LNR+7}], v{LNR+41}, s[8:11], s50 offen offset:576")

def ln_compute(a, S, hook=None):
    X = LNR + 8; M = LNR + 24; MK = LNR + 42
    a(f"""
    v_mov_b32 v{MK}, 0xffff0000
    v_cmp_gt_u32 vcc, 36, v0
    v_and_b32 v{LNR+58}, 7, v0
    v_xor_b32 v{LNR+56}, s16, v{LNR+58}
    v_lshlrev_b32 v{LNR+56}, 4, v{LNR+56}
    v_lshl_add_u32 v{LNR+56}, v0, 7, v{LNR+56}
    v_add_u32 v{LNR+56}, {STG}, v{LNR+56}
    v_xor_b32 v{LNR+57}, 64, v{LNR+56}
    v_lshrrev_b32 v{MK+3}, 3, v0
    v_xor_b32 v{MK+2}, v{MK+3}, v{LNR+58}
    v_lshlrev_b32 v{MK+2}, 4, v{MK+2}
    v_lshl_add_u32 v{MK+2}, v{MK+3}, 7, v{MK+2}
    s_lshl_b32 s40, s16, 10
    s_add_u32 s40, s40, {STG}
    v_add_u32 v{MK+1}, s40, v{MK+2}
    v_add_u32 v{MK+2}, {STG + 8192}, v{MK+2}
    v_lshlrev_b32 v{MK+3}, 8, v{MK+3}
    v_lshl_add_u32 v{MK+3}, v{LNR+58}, 4, v{MK+3}
    """)
    a(f"v_mov_b32 v{LNR+49}, 0\ns_lshr_b32 s45, s16, 1\ns_lshl_b32 s45, s45, 8")
    if DRY:
        lnl = a.newlabel("LNdry"); lnr = a.newlabel("LNreal")
        a(f"s_mov_b32 s44, 0\ns_branch {lnl}")
        a.label(lnr)
    S.vmw({"x"})
    if STAMP and SPC[0] < 0: stamp(a, 6)
    if not NLATE:
        S.vmi("z", f"buffer_load_dwordx2 v[{LNR+50}:{LNR+51}], v{LNR+49}, s[24:27], s45 offen sc1")
    if hook: hook()
    if DRY:
        a("s_mov_b32 s44, 1")
        a.label(lnl)
    for k in range(8):
        a(f"v_lshlrev_b32 v{X+2*k}, 16, v{LNR+k}\nv_and_b32 v{X+2*k+1}, v{MK}, v{LNR+k}")
    def reduce64(r, t):
        a(f"""
        s_nop 1
        v_add_f32_dpp v{t}, v{r}, v{r} quad_perm:[1,0,3,2] row_mask:0xf bank_mask:0xf
        s_nop 1
        v_add_f32_dpp v{r}, v{t}, v{t} quad_perm:[2,3,0,1] row_mask:0xf bank_mask:0xf
        s_nop 1
        v_add_f32_dpp v{t}, v{r}, v{r} row_half_mirror row_mask:0xf bank_mask:0xf
        s_nop 1
        v_add_f32_dpp v{r}, v{t}, v{t} row_mirror row_mask:0xf bank_mask:0xf
        s_nop 0
        v_mov_b32 v{t}, v{r}
        s_nop 1
        v_permlane16_swap_b32 v{r}, v{t}
        s_nop 1
        v_add_f32 v{r}, v{r}, v{t}
        s_nop 0
        v_mov_b32 v{t}, v{r}
        s_nop 1
        v_permlane32_swap_b32 v{r}, v{t}
        s_nop 1
        v_add_f32 v{r}, v{r}, v{t}
        """)
    for c in range(4): a(f"v_add_f32 v{M+c}, v{X+c}, v{X+4+c}")
    for k in range(2, 4):
        for c in range(4): a(f"v_add_f32 v{M+c}, v{M+c}, v{X+4*k+c}")
    a(f"v_add_f32 v{M}, v{M}, v{M+1}\nv_add_f32 v{M+2}, v{M+2}, v{M+3}\nv_add_f32 v{M}, v{M}, v{M+2}")
    reduce64(M, M + 1)
    a(f"v_mul_f32 v{M}, 0x3ae38e39, v{M}")
    V = M + 4; D = M + 8
    for k in range(4):
        for c in range(4):
            a(f"v_sub_f32 v{D+c}, v{X+4*k+c}, v{M}")
            a(f"v_mul_f32 v{V+c}, v{D+c}, v{D+c}" if k == 0 else f"v_fmac_f32 v{V+c}, v{D+c}, v{D+c}")
    a(f"v_add_f32 v{V}, v{V}, v{V+1}\nv_add_f32 v{V+2}, v{V+2}, v{V+3}\nv_add_f32 v{V}, v{V}, v{V+2}")
    a(f"v_cndmask_b32 v{V}, 0, v{V}, vcc")
    reduce64(V, V + 1)
    a(f"""
    v_mul_f32 v{V}, 0x3ae38e39, v{V}
    v_cvt_pk_bf16_f32 v{M+2}, v{M}, v{V}
    v_lshlrev_b32 v{M}, 16, v{M+2}
    v_and_b32 v{V}, v{MK}, v{M+2}
    v_add_f32 v{V}, 0x3727c5ac, v{V}
    v_cvt_pk_bf16_f32 v{V}, v{V}, v{V}
    v_and_b32 v{V}, v{MK}, v{V}
    v_sqrt_f32 v{V}, v{V}
    s_lshl_b32 s40, s16, 4
    v_cvt_pk_bf16_f32 v{V}, v{V}, v{V}
    v_and_b32 v{V}, v{MK}, v{V}
    v_rcp_f32 v{V}, v{V}
    """)
    for k in range(8):
        a(f"v_sub_f32 v{X+2*k}, v{X+2*k}, v{M}\nv_sub_f32 v{X+2*k+1}, v{X+2*k+1}, v{M}")
    if NLATE:
        S.vmi("z", f"buffer_load_dwordx2 v[{LNR+50}:{LNR+51}], v{LNR+49}, s[24:27], s45 offen sc1")
    PK = LNR + 32
    for k in range(8):
        a(f"v_cvt_pk_bf16_f32 v{PK+k}, v{X+2*k}, v{X+2*k+1}")
    for k in range(8):
        a(f"v_lshlrev_b32 v{X+2*k}, 16, v{PK+k}\nv_and_b32 v{X+2*k+1}, v{MK}, v{PK+k}")
    for k in range(16):
        a(f"v_mul_f32 v{X+k}, v{X+k}, v{V}")
    for k in range(8):
        a(f"v_cvt_pk_bf16_f32 v{PK+k}, v{X+2*k}, v{X+2*k+1}")
    if DRY: a(f"s_cmp_eq_u32 s44, 0\ns_cbranch_scc1 {lnr}")
    a(f"""
    s_mov_b64 exec, 0xfffffffff
    ds_write_b128 v{LNR+56}, v[{PK}:{PK+3}]
    ds_write_b128 v{LNR+57}, v[{PK+4}:{PK+7}] offset:4608
    s_mov_b64 exec, -1
    s_lshl_b32 s40, s16, 11
    s_add_u32 s40, s40, s100
    s_add_u32 s41, s100, 16384
    s_cmp_eq_u32 s16, 0
    s_cselect_b32 s41, s41, {OOB}
    {"s_memrealtime s[78:79]" if STAMP == 1 and SPC[0] < 0 else ""}
    s_waitcnt lgkmcnt(0)
    s_barrier
    {"s_memrealtime s[94:95]" if STAMP == 1 and SPC[0] < 0 else ""}
    ds_read_b128 v[{LNR}:{LNR+3}], v{MK+1}
    ds_read_b128 v[{LNR+4}:{LNR+7}], v{MK+2}
    s_waitcnt lgkmcnt(1)
    """.replace("s_mov_b64 exec, 0xfffffffff", "s_mov_b32 exec_hi, 15"))
    S.vmi("xs", f"buffer_store_dwordx4 v[{LNR}:{LNR+3}], v{MK+3}, s[4:7], s40 offen sc1")
    a("s_waitcnt lgkmcnt(0)")
    S.vmi("xs", f"buffer_store_dwordx4 v[{LNR+4}:{LNR+7}], v{MK+3}, s[4:7], s41 offen sc1")
    S.ld = len(S.lg)

def nonce_get(a):
    sk = a.newlabel("NCs"); lp = a.newlabel("NCl")
    n = LNR + 50
    a(f"""
    s_mov_b32 s47, 0
    """)
    a.label(lp)
    a(f"""
    v_cmp_eq_u32 vcc, 0, v{n+1}
    s_cbranch_vccz {sk}
    buffer_load_dwordx2 v[{n}:{n+1}], v{LNR+49}, s[24:27], 0 offen sc1
    s_waitcnt vmcnt(0)
    s_add_u32 s47, s47, 1
    s_cmp_lt_u32 s47, 0x40000
    s_cbranch_scc1 {lp}
    """)
    a.label(sk)

def ln_handshake(a, S, tag, between, mid=None):
    t = LNR + 52; n = LNR + 50
    go = a.newlabel("LNgo"); lp = a.newlabel("LNp"); ok = a.newlabel("LNok"); w1 = a.newlabel("LNw1"); nn = a.newlabel("LNnn")
    a(f"""
    s_lshl_b32 s41, s101, {RSH}
    s_add_u32 s41, s41, {WS_RDY}
    v_and_b32 v{t}, 31, v0
    v_lshlrev_b32 v{t}, {RSH}, v{t}
    s_lshl_b32 s40, s17, {RSH+5}
    s_add_u32 s40, s40, {WS_RDY}
    """)
    S.vmw({"xs", "z"})
    a(f"s_cmp_ge_u32 s16, 2\ns_cbranch_scc1 {nn}")
    nonce_get(a)
    a.label(nn)
    a("s_barrier")
    stamp(a, 1)
    a(f"""
    s_cmp_lg_u32 s16, 0
    s_cbranch_scc1 {w1}
    v_lshrrev_b32 v{t}, 1, v1
    s_mov_b64 exec, {"0xffff" if FLN else "1"}
    buffer_store_dwordx2 v[{n}:{n+1}], v{t}, s[4:7], s41 offen sc1
    s_mov_b64 exec, -1
    """)
    a.label(w1)
    if mid: mid()
    a(f"""
    s_cmp_lg_u32 s16, 1
    s_cbranch_scc1 {go}
    s_mov_b32 s47, 0
    s_sleep {PS0}
    """)
    NPL = 4
    for k in range(NPL - 1):
        a(f"buffer_load_dwordx2 v[{t+2+2*k}:{t+3+2*k}], v{t}, s[4:7], s40 offen sc1\ns_sleep {PS1}")
    a.label(lp)
    for k in range(NPL):
        kk = (k + NPL - 1) % NPL
        a(f"""
        buffer_load_dwordx2 v[{t+2+2*kk}:{t+3+2*kk}], v{t}, s[4:7], s40 offen sc1
        s_waitcnt vmcnt({NPL-1})
        v_cmp_ne_u64 vcc, v[{n}:{n+1}], v[{t+2+2*k}:{t+3+2*k}]
        s_cbranch_vccz {ok}
        """)
    a(f"""
    s_add_u32 s47, s47, 1
    s_cmp_lt_u32 s47, 0x20000
    s_cbranch_scc1 {lp}
    """)
    a.label(ok)
    if STAMP == 1 and SPC[0] < 0: a("s_memrealtime s[76:77]")
    a(f"""
    s_and_b32 s40, s101, 31
    s_cmp_lg_u32 s40, 0
    s_cbranch_scc1 {go}
    s_lshl_b32 s40, s17, 2
    v_mov_b32 v{t}, 1
    s_mov_b64 exec, 1
    buffer_store_dword v{t}, v1, s[24:27], s40 offen offset:128 sc1
    s_mov_b64 exec, -1
    """)
    a.label(go)
    between()
    S.lg0()
    a("s_barrier")

def zero_word(a, S, sreg):
    S.vmi("z", f"buffer_store_dword v{LNR+46}, v1, s[4:7], s{sreg} offen sc1")

def code_prefetch(a, S):
    a(f"""
    s_getpc_b64 s[60:61]
    CP_pc:
    s_sub_u32 s60, s60, CP_pc-{KNAME}
    s_subb_u32 s61, s61, 0
    s_mov_b32 s62, CODE_END-{KNAME}
    s_mov_b32 s63, 0x20000
    s_lshr_b32 s40, s2, 3
    s_lshl_b32 s40, s40, 3
    s_add_u32 s40, s40, s16
    s_lshl_b32 s40, s40, 8
    s_mul_i32 s41, s40, 3
    s_lshr_b32 s41, s41, 1
    v_lshlrev_b32 v{LNR+47}, 3, v1
    s_mov_b32 m0, {JUNK}
    s_mov_b64 exec, 7
    """)
    S.vmi("P", f"buffer_load_dword v{LNR+47}, s[60:63], s41 offen lds")
    a("s_mov_b64 exec, -1")

def const_table(a, CR):
    lre, lim, ldt = CR + 3, CR + 4, CR + 5
    t = CR + 6; Tb = CR + 16
    a(f"""
    v_lshlrev_b32 v{lre}, 16, v{lre}
    v_lshlrev_b32 v{lim}, 16, v{lim}
    v_lshlrev_b32 v{ldt}, 16, v{ldt}
    v_mul_f32 v{ldt}, 0x3fb8aa3b, v{ldt}
    v_exp_f32 v{ldt}, v{ldt}
    s_nop 0
    v_cvt_pk_bf16_f32 v{ldt}, v{ldt}, v{ldt}
    v_and_b32 v{ldt}, 0xffff0000, v{ldt}
    v_mul_f32 v{t}, v{ldt}, v{lre}
    v_mul_f32 v{t+1}, v{ldt}, v{lim}
    v_mul_f32 v{t}, 0x3fb8aa3b, v{t}
    v_exp_f32 v{t}, v{t}
    v_mul_f32 v{t+1}, 0x3e22f983, v{t+1}
    v_fract_f32 v{t+1}, v{t+1}
    v_cos_f32 v{t+2}, v{t+1}
    v_sin_f32 v{t+3}, v{t+1}
    s_nop 0
    v_mul_f32 v{Tb}, v{t}, v{t+2}
    v_mul_f32 v{Tb+1}, v{t}, v{t+3}
    v_add_f32 v{t}, -1.0, v{Tb}
    v_mul_f32 v{t+1}, v{lre}, v{lre}
    v_fmac_f32 v{t+1}, v{lim}, v{lim}
    v_rcp_f32 v{t+1}, v{t+1}
    v_mul_f32 v{t+2}, v{t}, v{lre}
    v_fmac_f32 v{t+2}, v{Tb+1}, v{lim}
    v_mul_f32 v{t+3}, v{Tb+1}, v{lre}
    v_fma_f32 v{t+3}, -v{t}, v{lim}, v{t+3}
    v_add_f32 v{t+1}, v{t+1}, v{t+1}
    v_mul_f32 v{Tb+2}, v{t+2}, v{t+1}
    v_mul_f32 v{Tb+3}, v{t+3}, v{t+1}
    """)
    def csq(d, s_):
        a(f"""
        v_mul_f32 v{t+4}, v{s_+1}, v{s_+1}
        v_mul_f32 v{t+5}, v{s_}, v{s_+1}
        v_fma_f32 v{d}, v{s_}, v{s_}, -v{t+4}
        v_add_f32 v{d+1}, v{t+5}, v{t+5}
        """)
    csq(t, Tb); csq(t + 2, t); csq(Tb + 10, t + 2); csq(Tb + 12, Tb + 10)
    a(f"""
    v_mul_f32 v{t+4}, v{Tb+13}, v{Tb+11}
    v_fma_f32 v{Tb+14}, v{Tb+12}, v{Tb+10}, -v{t+4}
    v_mul_f32 v{t+4}, v{Tb+12}, v{Tb+11}
    v_fma_f32 v{Tb+15}, v{Tb+13}, v{Tb+10}, v{t+4}
    v_mov_b32 v{Tb+8}, 1.0
    v_mov_b32 v{Tb+9}, 0
    """)
    csq(Tb + 4, Tb + 12); csq(t, Tb + 4); csq(t + 2, t); csq(Tb + 6, t + 2)
    a(f"v_lshlrev_b32 v{CR}, 6, v{CR}\nv_add_u32 v{CR}, {CT}, v{CR}")
    for k in range(4):
        a(f"ds_write_b128 v{CR}, v[{Tb+4*k}:{Tb+4*k+3}] offset:{16*k}")

def gen_main():
    a = Asm()
    stamp_init(a); stamp(a, 0)
    a(f"""
    s_cmp_ge_u32 s2, 256
    s_cbranch_scc1 K1_end
    s_load_dwordx2 s[48:49], s[0:1], 0       ; x
    s_load_dwordx4 s[20:23], s[0:1], 112
    s_load_dwordx4 s[52:55], s[0:1], 80
    s_load_dwordx4 s[28:31], s[0:1], 24
    s_load_dwordx2 s[58:59], s[0:1], 96      ; w_down
    v_lshrrev_b32 v1, 6, v0
    v_and_b32 v0, 63, v0                     ; lane
    v_readfirstlane_b32 s16, v1              ; wave
    s_and_b32 s3, s2, 7                      ; xcd
    s_lshr_b32 s18, s2, 3
    s_and_b32 s17, s18, 7                    ; mt
    s_lshr_b32 s18, s18, 3                   ; k4
    v_lshlrev_b32 v1, 4, v0                  ; lane*16
    """)
    S0_ = Stream(a)
    if CPF0: code_prefetch(a, S0_)
    ln_issue(a, S0_)
    a(f"""
    s_lshl_b32 s19, s17, 3
    s_add_u32 s19, s19, s16                  ; 8mt + w
    s_mul_i32 s32, s19, 36864
    s_add_u32 s33, s32, 18432
    s_mul_i32 s34, s19, 368640
    s_add_u32 s34, s34, {WS_H}
    s_lshl_b32 s35, s16, 10
    s_add_u32 s35, s35, {LB}
    s_mul_i32 s56, s19, 640
    s_add_u32 s56, s56, {WS_PF}
    v_mov_b32 v{LNR+46}, 0
    s_lshl_b32 s46, s16, 8
    """)
    srd(a, 4, 22, WS_SIZE)
    srd(a, 24, 20, 256)
    a(f"""
    s_or_b32 s40, s2, s16
    s_cmp_lg_u32 s40, 0
    s_cbranch_scc1 NONCE_done
    s_memrealtime s[40:41]
    s_waitcnt lgkmcnt(0)
    s_or_b32 s41, s41, 0x80000000
    v_mov_b32 v{LNR+44}, s40
    v_mov_b32 v{LNR+45}, s41
    s_mov_b64 exec, 1
    buffer_store_dwordx2 v[{LNR+44}:{LNR+45}], v1, s[24:27], 0 offen sc1
    s_mov_b64 exec, -1
    """)
    a.label("NONCE_done")
    a(f"""
    s_cmp_eq_u32 s18, 3
    s_cbranch_scc1 Z_ssm
    s_mul_i32 s39, s3, 3
    s_add_u32 s39, s39, s18
    s_lshl_b32 s40, s39, 2
    s_add_u32 s56, s56, s40
    s_lshr_b32 s97, s3, 1
    s_mul_i32 s40, s97, 104
    s_add_u32 s56, s56, s40
    s_and_b32 s98, s3, 1
    s_lshl_b32 s98, s98, 3
    s_add_u32 s98, s98, s17
    s_mov_b32 s99, s18
    s_mov_b32 s41, {OOB}
    s_mov_b32 s8, s52
    s_mov_b32 s9, s53
    s_mov_b32 s12, s54
    s_mov_b32 s13, s55
    s_mov_b32 s10, {576*9216}
    s_mul_i32 s36, s19, 9216
    s_mul_i32 s37, s39, 384
    s_add_u32 s36, s36, s37
    v_mul_u32_u24 v19, {64*9216}, v0
    s_mov_b32 s37, {(1 << ZPF) - 1}
    s_branch Z_go
    """)
    a.label("Z_ssm")
    a(f"""
    s_lshl_b32 s40, s3, 2
    s_add_u32 s56, s56, s40
    s_add_u32 s56, s56, 512
    s_cmp_ge_u32 s17, 3
    s_cselect_b32 s40, 1, 0
    s_lshl_b32 s98, s3, 1
    s_add_u32 s98, s98, s40
    s_mul_i32 s40, s40, 3
    s_sub_u32 s99, s17, s40
    s_mov_b32 s97, 4
    s_mul_i32 s57, s3, 5
    s_add_u32 s41, s57, s16
    s_lshl_b32 s41, s41, 11
    s_lshl_b32 s47, s17, 8
    s_add_u32 s41, s41, s47
    s_add_u32 s41, s41, {WS_E}
    s_cmp_lt_u32 s16, 5
    s_cselect_b32 s41, s41, {OOB}
    s_mov_b32 s8, s28
    s_mov_b32 s9, s29
    s_mov_b32 s12, s30
    s_mov_b32 s13, s31
    s_mov_b32 s10, {576*1152}
    s_min_u32 s36, s57, 31
    s_lshl_b32 s36, s36, 4
    s_add_u32 s36, s36, s19
    s_mul_i32 s36, s36, 1152
    v_lshrrev_b32 v19, 4, v0
    v_mul_u32_u24 v19, {64*1152}, v19
    v_and_b32 v20, 15, v0
    v_lshl_add_u32 v19, v20, 7, v19
    s_mov_b32 s37, {((1 << ZPF) - 1)}
    s_cmp_lt_u32 s19, 32
    s_cselect_b32 s37, {((1 << ZPF) - 1) * 0x10001}, s37
    """)
    a.label("Z_go")
    if ZPF:
        a(f"""
        s_mov_b32 s14, s10
        s_mov_b32 s11, 0x20000
        s_mov_b32 s15, 0x20000
        s_mov_b32 m0, {JUNK}
        s_mov_b32 exec_lo, s37
        s_mov_b32 exec_hi, 0
        """)
        S0_.vmi("P", "buffer_load_dword v19, s[8:11], s36 offen lds")
        S0_.vmi("P", "buffer_load_dword v19, s[12:15], s36 offen lds")
        a("s_mov_b64 exec, -1")
    a(f"""
    s_mul_i32 s40, s98, 3
    s_add_u32 s40, s40, s99
    s_lshl_b32 s40, s40, 10
    s_lshl_b32 s47, s97, 2
    s_add_u32 s40, s40, s47
    s_add_u32 s40, s40, {WS_EF}
    s_cmp_lt_u32 s99, 3
    s_cselect_b32 s40, s40, {OOB}
    s_cmp_eq_u32 s16, 0
    s_cselect_b32 s40, s40, {OOB}
    v_lshrrev_b32 v18, 2, v1
    """)
    S0_.vmi("z", f"buffer_store_dword v{LNR+46}, v18, s[4:7], s41 offen sc1")
    a("s_mov_b64 exec, 1")
    zero_word(a, S0_, 56); zero_word(a, S0_, 40)
    a("s_mov_b64 exec, -1")
    if not CPF0: code_prefetch(a, S0_)
    if LNF: ln_compute(a, S0_)
    a("s_cmp_eq_u32 s18, 3\ns_cbranch_scc1 K1_ssm")

    def xload_ops(S, st):
        ops = []
        for j in range(2):
            for e in range(2):
                r = xreg(j, 2 * st + e)
                def f(j=j, e=e, r=r):
                    if e == 0: a(f"s_add_u32 s{36+j}, s{32+j}, {WS_X + st*2048}")
                    S.vmi(("X", st), f"buffer_load_dwordx4 v[{r}:{r+3}], v1, s[4:7], s{36+j} offen offset:{1024*e} sc1")
                ops.append(f)
        return ops

    WSZ = 576 * 9216
    srd(a, 8, 52, WSZ)
    srd(a, 12, 54, WSZ)
    ACC = 48
    S = S0_.fork(); S.slow = []; S.sb_setup(VE, VR, VFA, 46); S.pslow = []; S.aslow = []
    a(f"""
    s_mul_i32 s39, s39, 3
    s_lshl_b32 s38, s39, 7
    s_lshl_b32 s39, s39, 11
    s_add_u32 s39, s39, s34
    v_lshrrev_b32 v16, 3, v0
    s_lshl_b32 s40, s16, 3
    v_add_u32 v16, s40, v16
    v_mul_u32_u24 v16, 9216, v16
    v_bfe_u32 v17, v0, 4, 1
    s_and_b32 s40, s16, 1
    s_lshl_b32 s40, s40, 1
    v_or_b32 v17, s40, v17
    v_lshlrev_b32 v17, 1, v17
    v_and_b32 v18, 7, v0
    v_xor_b32 v17, v17, v18
    v_lshl_add_u32 v{VD}, v17, 4, v16
    """)
    def dma_ops(gs):
        G, st = divmod(gs, 9)
        ops = []
        for m in range(2):
            def f(m=m):
                a(f"s_add_u32 m0, s35, {st*16384 + m*8192}")
                a(f"s_add_u32 s41, s38, {G*128 + st*589824}")
                S.vmi(("D", gs), f"buffer_load_dwordx4 v{VD}, s[{8+4*m}:{11+4*m}], s41 offen lds")
            ops.append(f)
        return ops
    for st in range((0 if DMID else 2) if LNF else NDE):
        for f in dma_ops(st): f()
    a(f"""
    v_lshrrev_b32 v{VT}, 4, v0
    v_lshlrev_b32 v{VT}, 10, v{VT}
    v_bfe_u32 v17, v0, 2, 2
    v_lshl_add_u32 v{VT}, v17, 7, v{VT}
    v_bfe_u32 v17, v0, 3, 2
    v_lshl_add_u32 v{VT}, v17, 5, v{VT}
    v_and_b32 v17, 3, v0
    v_lshl_add_u32 v{VT}, v17, 3, v{VT}
    v_add_u32 v{VT}, {LB}, v{VT}
    v_lshlrev_b32 v{VPF}, 7, v0
    """)
    for b in range(4):
        a(f"v_xor_b32 v{VA+b}, {b*32}, v{VT}")
    S.sb_init(16)
    def k2_setup(a):
        k2_scalars(a)
        k2_vregs(a, 6)
        a(f"""
        s_mul_i32 s51, s97, {1152*1152}
        s_mul_i32 s50, s99, 384
        s_add_u32 s28, s51, s50
        s_lshl_b32 s50, s18, 3
        s_add_u32 s50, s50, s17
        s_lshl_b32 s50, s50, 3
        s_add_u32 s50, s50, s16
        s_min_u32 s50, s50, 161
        s_lshl_b32 s50, s50, 13
        s_add_u32 s29, s51, s50
        """)
        srd(a, 20, 58, 4608 * 1152)
    if LNF:
        tmp = Asm(); k2_setup(tmp)
        chunks = []
        for l in tmp.lines:
            l = l.split(";")[0].strip()
            if not l: continue
            if chunks and (l.startswith("s_cselect") or chunks[-1].split("\n")[-1].startswith("s_cmp") or (l.startswith("s_mov") and "s_cmp" in chunks[-1] and "cselect" not in chunks[-1])):
                chunks[-1] += "\n" + l
            else: chunks.append(l)
        k2ops = [(lambda c=c: a(c)) for c in chunks]
    else:
        k2_setup(a)
    def wpf(lines=None, reg=VT):
        if lines is None: lines = [2] if WPF == 1 else [1, 2]
        a(f"""
        v_min_u32 v{reg}, 8, v0
        v_mul_u32_u24 v{reg}, 9216, v{reg}
        s_mul_i32 s40, s19, {9*9216}
        s_add_u32 s40, s40, s38
        s_mov_b32 m0, {JUNK}
        s_mov_b64 exec, 0x1ff
        """)
        for ln in lines:
            S.vmi("P", f"buffer_load_dword v{reg}, s[8:11], s40 offen offset:{128*ln} lds")
            S.vmi("P", f"buffer_load_dword v{reg}, s[12:15], s40 offen offset:{128*ln} lds")
        a("s_mov_b64 exec, -1")
    if not LNF:
        ln_compute(a, S, (lambda: wpf(list(range(EPF)))) if EPF else None)
        for st in range(NDE, 2):
            for f in dma_ops(st): f()
    def between():
        for st in range(2, ND0):
            for f in dma_ops(st): f()
        if LNF and EPF: wpf(list(range(EPF)))
        S.vmw({("D", 0)})
    def mid():
        for st in range(2):
            for f in dma_ops(st): f()
    ln_handshake(a, S, "f", between, mid if DMID else None)
    for st in range(LX):
        for f in xload_ops(S, st): f()
    NBLK = 27 * 8
    pre_slots = []; pre_when = []
    g2first = max(2, 9 - LD)
    free = []
    for st in range(0, 9):
        if st >= 2: free += [2 * (st - 2), 2 * (st - 2) + 1]
        if st == 3: free.append(18)
        if st >= g2first:
            n = 0
            while free and n < 3 and len(pre_slots) < NPRE:
                pre_slots.append(free.pop(0)); pre_when.append(st); n += 1
    avail = {s: -1 for s in range(NP)}
    for s in (14, 15): avail[s] = 0
    for s in (16, 17): avail[s] = 2
    plan = K2Plan(pre_slots, avail, [(-2, -1, 3), (0, 2, 6)])
    def line_of(st): return 3 * (st % 6) + st // 6
    def dma2(S, i):
        st, pn = plan.pieces[i]
        a(f"s_add_u32 m0, s35, {plan.slot[i]*8192}")
        a(f"s_add_u32 s41, s28, {line_of(st)*64*1152 + pn*128}")
        S.vmi(("W", i), f"buffer_load_dwordx4 v{VD}, s[20:23], s41 offen lds")
    def frbuf(f): return FR + (f % 8) * 4
    def rd2(S, f, k):
        if f >= 4 * plan.NPC: return
        i, b = divmod(f, 4); sl = plan.slot[i]
        buf = frbuf(f) + 2 * k
        S.lgi(("F2", f), f"ds_read_b64_tr_b16 v[{buf}:{buf+1}], v{VA2[sl//7] + b} offset:{(sl%7)*8192 + k*2048}")
    def hload_ops(S, st):
        ops = []
        for j in range(2):
            def f(j=j):
                r = hreg(st, j)
                a(f"s_add_u32 s36, s{30+j}, {line_of(st)*2048}")
                S.vmi(("H", st), f"buffer_load_dwordx4 v[{r}:{r+3}], v1, s[4:7], s36 offen sc1")
            ops.append(f)
        return ops
    def rd(gblk, k):
        if gblk >= NBLK:
            f = 2 * (gblk - NBLK) + k // 2
            if f < DF: rd2(S, f, k % 2)
            return
        gs, blk = divmod(gblk, 8)
        st = gs % 9
        u, m = divmod(blk, 2)
        s, e = divmod(k, 2)
        buf = FR + (gblk % 4) * 8 + s * 4 + e * 2
        off = (st % 3) * 16384 + m * 8192 + s * 4096 + e * 512
        S.lgi(("F", gblk), f"ds_read_b64_tr_b16 v[{buf}:{buf+1}], v{VA+u} offset:{off}")
        if st % 3 == 2 and m == 1 and k == 3 and gs < 26:
            a(f"v_add_u32 v{VA+u}, 49152, v{VA+u}" if st < 8 else f"v_subrev_u32 v{VA+u}, 98304, v{VA+u}")
    def acc(blk, j): return ACC + (blk * 2 + j) * 4
    def epi_ops(v, G):
        ops = []
        for j in range(2):
            for uu in range(2):
                g = acc(4 * v + 2 * uu, j); u = acc(4 * v + 2 * uu + 1, j)
                for r in range(4):
                    ops.append(lambda g=g, u=u, r=r: a(f"v_mul_f32 v{g+r}, v{g+r}, v{u+r}"))
            T_ = acc(4 * v + 1, j)
            g0 = acc(4 * v, j); g1 = acc(4 * v + 2, j)
            ops.append(lambda T_=T_, g=g0: a(f"v_cvt_pk_bf16_f32 v{T_}, v{g}, v{g+1}"))
            ops.append(lambda T_=T_, g=g0: a(f"v_cvt_pk_bf16_f32 v{T_+1}, v{g+2}, v{g+3}"))
            ops.append(lambda T_=T_, g=g1: a(f"v_cvt_pk_bf16_f32 v{T_+2}, v{g}, v{g+1}"))
            ops.append(lambda T_=T_, g=g1: a(f"v_cvt_pk_bf16_f32 v{T_+3}, v{g+2}, v{g+3}"))
            def st_(T_=T_, j=j):
                a(f"s_add_u32 s45, s39, {j*184320 + G*2048}")
                S.vmi(("S", G), f"buffer_store_dwordx4 v[{T_}:{T_+3}], v1, s[4:7], s45 offen offset:{1024*v} {HST}")
            ops.append(st_)
        return ops
    def publish(G):
        S.vmw({("S", G)}); flag_store(S, a, G + 1)
    def vd2():
        a(f"""
        v_lshrrev_b32 v{VD}, 3, v0
        s_lshl_b32 s40, s16, 3
        v_add_u32 v{VD}, s40, v{VD}
        v_mul_u32_u24 v{VD}, 1152, v{VD}
        v_lshrrev_b32 v{VT}, 4, v0
        v_lshlrev_b32 v{VT}, 1, v{VT}
        v_and_b32 v{VPF}, 7, v0
        v_xor_b32 v{VT}, v{VT}, v{VPF}
        v_lshl_add_u32 v{VD}, v{VT}, 4, v{VD}
        """)
    def va2_base():
        a(f"""
        v_lshrrev_b32 v{VPF}, 2, v0
        v_lshlrev_b32 v{VPF}, 7, v{VPF}
        v_bfe_u32 v{VT}, v0, 3, 2
        v_lshl_add_u32 v{VPF}, v{VT}, 5, v{VPF}
        v_and_b32 v{VT}, 3, v0
        v_lshl_add_u32 v{VPF}, v{VT}, 3, v{VPF}
        s_lshl_b32 s40, s42, 12
        s_add_u32 s40, s40, {LB}
        v_add_u32 v{VPF}, s40, v{VPF}
        """)
    def va2(region):
        for b in range(4):
            if region == 0: a(f"v_xor_b32 v{VA+b}, {b*32}, v{VPF}")
            else: a(f"v_add_u32 v{VA2[region]+b}, {57344*region}, v{VA+b}")
    stamp(a, 2)
    for g in range(3):
        for k in range(4): rd(g, k)
    dnext = ND0
    asi, asc = allset_ops(S, a, VT, VPA)
    p1i, p1c = poll_ops(S, a, 1, VT)
    p2i, p2c = poll_ops(S, a, 2, VT if HPRE > 6 else VPF)
    for gs in range(27):
        G, st = divmod(gs, 9)
        side = {b: [] for b in range(8)}
        if st == 0 and G > 0:
            e = epi_ops(1, G - 1)
            for b in range(3): side[b] += spread(e, 3, b)
        if st == 2 and G > 0: side[7].append(lambda G=G: publish(G - 1))
        if st == 8:
            e = epi_ops(0, G)
            for b in range(3): side[5 + b] += spread(e, 3, b)
        if G == 0 and st + LX <= 8:
            x = xload_ops(S, st + LX)
            side[0] += x[:2]; side[1] += x[2:]
        for pos in (3, 6):
            if dnext <= min(gs + LD, 26):
                if pos == 6 and G == 0 and 1 <= st <= 5 and dnext >= gs + 3: continue
                side[pos] += dma_ops(dnext); dnext += 1
        if G == W2G and st < 8 and st % 2 == 0:
            def pf():
                a(f"s_mov_b32 m0, {JUNK}\ns_mov_b64 exec, 0xffff")
                S.vmi("P", f"buffer_load_dword v{VPF}, s[20:23], s29 offen lds")
                a(f"s_mov_b64 exec, -1\ns_add_u32 s29, s29, 2048")
            side[4].append(pf)
        if LNF and 2 <= gs <= 6:
            part = spread(k2ops, 5, gs - 2)
            for b in range(8): side[b] += spread(part, 8, b)
        if gs == WPS and WPF: side[4].append(wpf)
        if G == 1 and st == 4: side[7].append(asi)
        if G == 1 and st == 6:
            side[7] += [asc, lambda: a(f"v_min_u32 v{VPA}, 5, v0\nv_lshlrev_b32 v{VPA}, 2, v{VPA}")]
        if G == 2:
            if st == 0: side[4].append(p1i)
            if st == 1: side[4].append(p1c)
            if 1 <= st <= 3:
                side[5] += hload_ops(S, 2 * (st - 1)); side[6] += hload_ops(S, 2 * (st - 1) + 1)
            if HPRE > 6:
                if st == 5: side[1].append(p2i)
                if st == 6: side[0].append(p2c)
                hs = {6: [(3, 6), (6, 7), (7, 8)], 7: [(0, 9), (1, 10), (5, 11)]}.get(st, [])
                for b, hh in hs:
                    if hh < HPRE: side[b] += hload_ops(S, hh)
            if st == g2first: side[0].append(vd2)
            k = 0
            for i, w in enumerate(pre_when):
                if w == st:
                    side[(3, 4, 7)[k] if st < 8 else (1, 3, 4)[k]].append(lambda i=i: dma2(S, i)); k += 1
            if st == 6: side[1].append(va2_base)
        for blk in range(8):
            g = gs * 8 + blk
            if blk == 0: S.vmw({("X", gs)})
            if blk == 1:
                S.vmw({("D", gs + 1)} if gs < 26 else {("W", x) for x in range(4)}); S.arrive()
            if blk == 3: S.peek()
            if blk == 5:
                S.check()
                if gs == 26: va2(0)
            S.lgw({("F", g)})
            buf = FR + (g % 4) * 8
            k = 0
            for j in range(2):
                for s in range(2):
                    c = acc(blk, j)
                    src2 = "0" if (st == 0 and s == 0) else f"v[{c}:{c+3}]"
                    x = xreg(j, 2 * st + s)
                    a(f"{MFMA} v[{c}:{c+3}], v[{buf+4*s}:{buf+4*s+3}], v[{x}:{x+3}], {src2}")
                    rd(g + 3, k)
                    for o in spread(side[blk], 4, k): o()
                    k += 1
        if st == 8: stamp(a, 3 + G)
        for si, g_ in zip((6, 7, 15), GSP):
            if gs == g_: stamp(a, si)
    e = epi_ops(1, 2)
    p3i, p3c = poll_ops(S, a, 3, VPF)
    p2c.pre = True; p3c.pre = True
    P3 = P("P3", 19)
    P2 = P("P2", 2); P2C = P("P2C", 5); PUB = P("PUB", 11); PB = P("PB", 8)
    def va12(): va2(1); va2(2)
    va12.pre = True
    extra0 = {0: [va12]}
    for k, v in ((0, spread(e, 2, 0)), (1, spread(e, 2, 1)), (P2, [p2i] if HPRE <= 6 else []), (P2C, [p2c] if HPRE <= 6 else []), (PUB, [lambda: publish(2)]),
              (P3, [p3i]), (P3 + 3, [p3c])):
        extra0.setdefault(k, []).extend(v)
    hgate = {st: P2C for st in range(6, 12)}; hgate.update({st: P3 + 3 for st in range(12, 18)})
    k2_main(a, S, plan, "ffn", dma2, rd2, hload_ops, [HPRE], frbuf, extra0, hgate)

    a.label("K1_ssm")
    NU = 5
    SACC = 32; SFR = 8
    BSZ = 576 * 1152
    S = S0_.fork(); S.slow = []; S.pslow = []; S.aslow = []
    a(f"""
    s_cmp_lt_u32 s16, 4
    s_cselect_b32 s22, s28, s30
    s_cselect_b32 s23, s29, s31
    """)
    srd(a, 8, 22, BSZ)
    a(f"""
    s_load_dwordx4 s[28:31], s[0:1], 40
    s_mul_i32 s39, s3, 5
    s_min_u32 s39, s39, 31                   ; ustart
    s_and_b32 s40, s16, 3
    s_lshl_b32 s41, s40, 3
    s_lshl_b32 s38, s39, 4
    s_add_u32 s41, s41, s38
    v_lshrrev_b32 v8, 3, v0
    v_add_u32 v8, s41, v8
    v_mul_u32_u24 v8, 1152, v8
    s_and_b32 s41, s16, 1
    s_lshl_b32 s41, s41, 2
    v_lshrrev_b32 v9, 4, v0
    v_add_u32 v9, s41, v9
    v_and_b32 v10, 7, v0
    v_xor_b32 v9, v9, v10
    v_and_b32 v10, 15, v0
    v_lshrrev_b32 v11, 1, v10
    v_lshrrev_b32 v12, 4, v0
    v_xor_b32 v11, v11, v12
    v_lshlrev_b32 v11, 4, v11
    v_lshl_add_u32 v{VA}, v10, 7, v11
    v_add_u32 v{VA}, {LB}, v{VA}
    v_xor_b32 v{VA+1}, 64, v{VA}
    v_add_u32 v{VA+2}, 49152, v{VA}
    v_add_u32 v{VA+3}, 49152, v{VA+1}
    v_add_u32 v{VA+4}, 98304, v{VA}
    v_add_u32 v{VA+5}, 98304, v{VA+1}
    v_lshl_add_u32 v255, v9, 4, v8
    s_lshr_b32 s41, s16, 2
    s_mul_i32 s41, s41, 12288
    s_lshl_b32 s43, s40, 10
    s_add_u32 s43, s43, s41
    s_add_u32 s43, s43, {LB}
    """)
    def sdma_ops(st):
        slot = st % 6
        ops = []
        for t in range(3):
            def f(t=t):
                a(f"s_add_u32 m0, s43, {slot*24576 + t*4096}")
                a(f"s_mov_b32 s41, {st*128 + t*36864}")
                S.vmi(("D", st), f"buffer_load_dwordx4 v255, s[8:11], s41 offen lds")
            ops.append(f)
        return ops
    for st in range(NDE):
        for f in sdma_ops(st): f()
    CR = 16
    a(f"""
    s_load_dwordx4 s[60:63], s[0:1], 8
    s_load_dwordx2 s[44:45], s[0:1], 56      ; log_dt
    s_and_b32 s40, s16, 1
    s_lshl_b32 s40, s40, 6
    v_add_u32 v{CR}, s40, v0
    v_min_u32 v{CR}, 79, v{CR}
    v_add_u32 v{CR+1}, s38, v{CR}
    v_lshlrev_b32 v{CR+1}, 1, v{CR+1}
    s_waitcnt lgkmcnt(0)
    """)
    for k, ptr in enumerate((60, 62, 44)):
        srd(a, 12, ptr, 1152)
        S.vmi("lam", f"buffer_load_ushort v{CR+3+k}, v{CR+1}, s[12:15], 0 offen")
    if not LNF: ln_compute(a, S)
    def mid_s():
        for st in range(NDE, 2):
            for f in sdma_ops(st): f()
    if not DMID: mid_s()
    def spf():
        if SPF:
            a(f"""
            s_cmp_lt_u32 s16, 4
            s_cselect_b32 s22, s52, s54
            s_cselect_b32 s23, s53, s55
            """)
            srd(a, 12, 22, 576 * 9216)
            a(f"""
            v_mul_u32_u24 v8, 86, v0
            v_lshrrev_b32 v8, 8, v8
            v_mul_u32_u24 v9, 3, v8
            v_sub_u32 v9, v0, v9
            v_min_u32 v8, 17, v8
            v_mul_u32_u24 v8, 9216, v8
            v_mul_u32_u24 v9, 384, v9
            v_add_u32 v8, v8, v9
            s_lshl_b32 s40, s17, 2
            s_and_b32 s41, s16, 3
            s_add_u32 s40, s40, s41
            s_mul_i32 s40, s40, {18*9216}
            s_mul_i32 s41, s3, 1152
            s_add_u32 s40, s40, s41
            s_mov_b32 m0, {JUNK}
            s_nop 0
            """)
            S.vmi("P", "buffer_load_dword v8, s[12:15], s40 offen offset:128 lds")
            if SPF == 2: S.vmi("P", "buffer_load_dword v8, s[12:15], s40 offen offset:256 lds")
    def between_s():
        if SPE == 1: spf()
        sk = a.newlabel("CTs")
        a(f"s_cmp_lt_u32 s16, 2\ns_cbranch_scc1 {sk}")
        sv = S.vd
        S.vmw({"lam"})
        const_table(a, CR)
        S.vd = sv
        a.label(sk)
        for st in range(2, NDS):
            for f in sdma_ops(st): f()
        if SPE == 2: spf()
        S.vmw({("D", 0)})
    ln_handshake(a, S, "s", between_s, mid_s if DMID else None)
    for st in range(2):
        for f in xload_ops(S, st): f()
    if not SPE: spf()
    NB = 2 * NU
    def srd_(gblk, s):
        if gblk >= 9 * NB: return
        st, blk = divmod(gblk, NB)
        u, comp = divmod(blk, 2)
        slot = st % 6
        buf = SFR + (gblk % 3) * 8 + s * 4
        reg = VA + (slot // 2) * 2 + s
        off = (slot % 2) * 24576 + comp * 12288 + u * 2048
        S.lgi(("F", gblk), f"ds_read_b128 v[{buf}:{buf+3}], v{reg} offset:{off}")
    def sacc(u, comp, j): return SACC + ((u * 2 + comp) * 2 + j) * 4
    stamp(a, 2)
    for g in range(2):
        for s in range(2): srd_(g, s)
    CN = XR
    bar = {0: [1, 2], 2: [3, 4, 5], 5: [6, 7, 8]}
    issue = {0: [("X", 2)] + [("D", t) for t in range(NDS, 4)], 1: [("X", 3)] + [("D", t) for t in range(max(NDS, 4), 6)], 2: [("X", 4)], 3: [("X", 5), ("D", 6), ("D", 7)],
             4: [("X", 6), ("D", 8)], 5: [("X", 7)], 6: [("X", 8)]}
    for st in range(9):
        side = []
        for kind, t in issue.get(st, []):
            side += xload_ops(S, t) if kind == "X" else sdma_ops(t)
        for blk in range(NB):
            g = st * NB + blk
            if blk == 0: S.vmw({("X", st)})
            if blk == NB - 2 and st in bar:
                S.vmw({("D", t) for t in bar[st]})
                if st == 2: S.lg0()
                a("s_barrier")
            S.lgw({("F", g)})
            buf = SFR + (g % 3) * 8
            u, comp = divmod(blk, 2)
            k = 0
            for j in range(2):
                for s in range(2):
                    c = sacc(u, comp, j)
                    src2 = "0" if (st == 0 and s == 0) else f"v[{c}:{c+3}]"
                    x = xreg(j, 2 * st + s)
                    a(f"{MFMA} v[{c}:{c+3}], v[{x}:{x+3}], v[{buf+4*s}:{buf+4*s+3}], {src2}")
                    if k % 2 == 0: srd_(g + 2, k // 2)
                    if k == 1 and blk < 6:
                        for o in spread(side, 6, blk): o()
                    k += 1
            if blk == 7 and st == 6:
                a(f"""
                v_and_b32 v{CN+44}, 15, v0
                v_lshlrev_b32 v{CN+44}, 6, v{CN+44}
                v_add_u32 v{CN+44}, {CT}, v{CN+44}
                v_lshrrev_b32 v{CN+45}, 4, v0
                v_lshl_add_u32 v{CN+45}, v{CN+45}, 3, v{CN+44}
                s_min_u32 s46, s16, 4
                s_lshl_b32 s41, s46, 10
                v_add_u32 v{CN+46}, s41, v{CN+44}
                """)
                for u2 in range(NU):
                    b = CN + 8 * u2
                    S.lgi("C", f"ds_read_b128 v[{b}:{b+3}], v{CN+44} offset:{u2*1024}")
                    S.lgi("C", f"ds_read_b64 v[{b+4}:{b+5}], v{CN+44} offset:{u2*1024+40}")
                    S.lgi("C", f"ds_read_b64 v[{b+6}:{b+7}], v{CN+45} offset:{u2*1024+32}")
                S.lgi("C", f"ds_read_b128 v[{CN+40}:{CN+43}], v{CN+46} offset:16")
                srd(a, 8, 28, BSZ); srd(a, 12, 30, BSZ)
                a(f"""
                s_mul_i32 s40, s19, {81*128}
                v_min_u32 v{CN+47}, 40, v0
                v_lshlrev_b32 v{CN+47}, 7, v{CN+47}
                s_add_u32 s41, s40, {40*128}
                s_mov_b32 m0, {JUNK}
                """)
                asi, asc = allset_ops(S, a, CN + 48, CN + 49)
                asi()
                for c in range(2):
                    for t in range(2):
                        S.vmi("P", f"buffer_load_dword v{CN+47}, s[{8+4*c}:{11+4*c}], s{40+t} offen lds")
    S.lg0()
    asc()
    S_k1 = S
    plan_s = K2Plan([18, 17, 16, 15, 14, 13], {s: -1 for s in range(NP)}, [(-2, -1, 3), (0, 2, 5)])
    def dma_s(S, i):
        st, pn = plan_s.pieces[i]
        comp = st & 1
        a(f"s_add_u32 m0, s35, {plan_s.slot[i]*8192}")
        a(f"s_add_u32 s41, s28, {(st>>1)*128 + pn*64*1152}")
        S.vmi(("W", i), f"buffer_load_dwordx4 v{VD}, s[{8+4*comp}:{11+4*comp}], s41 offen lds")
    def rd_s(S, f, k):
        if k or f >= 4 * plan_s.NPC: return
        i, b = divmod(f, 4); sl = plan_s.slot[i]
        buf = frbuf(f)
        S.lgi(("F2", f), f"ds_read_b128 v[{buf}:{buf+3}], v{VA + sl//7} offset:{(sl%7)*8192 + b*2048}")
    def hload_s(S, st):
        ops = []
        for j in range(2):
            def f(j=j):
                r = hreg(st, j)
                a(f"s_add_u32 s36, s{30+j}, {st*2048}")
                S.vmi(("H", st), f"buffer_load_dwordx4 v[{r}:{r+3}], v1, s[4:7], s36 offen sc1")
            ops.append(f)
        return ops
    S = Stream(a); S.sb_setup(VE, VR, VFA, 46); S.pslow = []; S.aslow = S_k1.aslow
    def after_join():
        a(f"""
        s_mul_i32 s40, s99, 192
        s_lshl_b32 s41, s16, 3
        s_add_u32 s40, s40, s41
        v_lshrrev_b32 v{VD}, 3, v0
        v_add_u32 v{VD}, s40, v{VD}
        v_mul_u32_u24 v{VD}, 1152, v{VD}
        s_and_b32 s41, s16, 1
        s_lshl_b32 s41, s41, 2
        v_lshrrev_b32 v{VT}, 4, v0
        v_add_u32 v{VT}, s41, v{VT}
        v_and_b32 v{VPF}, 7, v0
        v_xor_b32 v{VT}, v{VT}, v{VPF}
        v_lshl_add_u32 v{VD}, v{VT}, 4, v{VD}
        s_cmp_lt_u32 s17, 6
        s_cselect_b32 s28, 0, {OOB}
        """)
        for i in range(6): dma_s(S, i)
    ssm_post4(a, NU, SACC, CN, sacc, 39, after_join)
    k2_scalars(a)
    k2_vregs(a, 8)
    a(f"""
    v_and_b32 v{VPF}, 15, v0
    v_lshrrev_b32 v{VT}, 1, v{VPF}
    v_lshrrev_b32 v{VA+1}, 4, v0
    s_lshl_b32 s40, s42, 2
    v_add_u32 v{VA+1}, s40, v{VA+1}
    v_xor_b32 v{VT}, v{VT}, v{VA+1}
    v_lshlrev_b32 v{VT}, 4, v{VT}
    v_lshl_add_u32 v{VA}, v{VPF}, 7, v{VT}
    v_add_u32 v{VA}, {LB}, v{VA}
    v_add_u32 v{VA+1}, 57344, v{VA}
    v_add_u32 v{VA+2}, 114688, v{VA}
    """)
    S.sb_init(16)
    S.vm0()
    flag_store(S, a, 3)
    stamp(a, 7)
    a("s_cmp_ge_u32 s17, 6\ns_cbranch_scc1 K1_done")
    pi, pc = poll_ops(S, a, 3, 248)
    S.lg0(); a("s_barrier")
    pi()
    for f in range(DF): rd_s(S, f, 0)
    pc()
    stamp(a, 4)
    for st in range(3):
        for f in hload_s(S, st): f()
    k2_main(a, S, plan_s, "ssm", dma_s, rd_s, hload_s, [3], frbuf, {}, {})

    a.label("K2_fin")
    stamp(a, 11)
    B0 = SP; B1 = SP + 8; L0 = 48
    a(f"""
    s_lshl_b32 s41, s97, 2
    s_add_u32 s40, s48, s41
    v_mov_b32 v3, 1
    v_min_u32 v4, 4, v0
    v_lshlrev_b32 v4, 2, v4
    s_mov_b32 s47, 0
    """)
    a(f"""
    v_min_u32 v4, 3, v0
    v_add3_u32 v4, v4, s97, 1
    v_subrev_u32 v12, 5, v4
    v_min_u32 v4, v4, v12
    v_lshlrev_b32 v4, 2, v4
    s_waitcnt vmcnt(0)
    """)
    if not TWF: a("s_barrier")
    stamp(a, 12)
    BL = TVB + 8
    def base_ld():
        a("v_mov_b32 v3, 0xffff0000")
        for x in range(2):
            for n in range(2):
                r = BL + 12 * x + 6 * n
                for k in range(2):
                    d = SP + 8 * x + 4 * n + 2 * k
                    a(f"""
                    v_lshlrev_b32 v7, 16, v{r+k}
                    v_and_b32 v8, v3, v{r+k}
                    v_add_f32 v{d}, v{d}, v7
                    v_add_f32 v{d+1}, v{d+1}, v8
                    v_lshlrev_b32 v7, 16, v{r+2+k}
                    v_and_b32 v8, v3, v{r+2+k}
                    v_lshlrev_b32 v12, 16, v{r+4+k}
                    v_and_b32 v13, v3, v{r+4+k}
                    v_fmac_f32 v{d}, v7, v12
                    v_fmac_f32 v{d+1}, v8, v13
                    """)
    if TWF:
        a(f"""
        s_mov_b64 exec, 1
        buffer_store_dword v3, v1, s[4:7], s40 offen sc1
        s_mov_b64 exec, -1
        """)
        base_ld()
        a(f"buffer_load_dword v5, v4, s[4:7], s48 offen sc1")
        a.label("K2_poll")
        for x, y in ((5, 6), (6, 5)):
            a(f"""
            s_sleep {TPS}
            buffer_load_dword v{y}, v4, s[4:7], s48 offen sc1
            s_waitcnt vmcnt(1)
            v_cmp_ne_u32 vcc, 1, v{x}
            s_cbranch_vccz K2_go
            """)
        a(f"""
        s_add_u32 s47, s47, 1
        s_cmp_lt_u32 s47, 0x20000
        s_cbranch_scc1 K2_poll
        """)
        a.label("K2_go")
    else:
        a(f"""
        s_cmp_lg_u32 s16, 0
        s_cbranch_scc1 K2_w1
        s_mov_b64 exec, 1
        buffer_store_dword v3, v1, s[4:7], s40 offen sc1
        s_mov_b64 exec, -1
        s_branch K2_go
        """)
        a.label("K2_w1")
        a(f"""
        s_cmp_lg_u32 s16, 1
        s_cbranch_scc1 K2_go
        buffer_load_dword v5, v4, s[4:7], s48 offen sc1
        """)
        a.label("K2_poll")
        for x, y in ((5, 6), (6, 5)):
            a(f"""
            s_sleep {TPS}
            buffer_load_dword v{y}, v4, s[4:7], s48 offen sc1
            s_waitcnt vmcnt(1)
            v_cmp_ne_u32 vcc, 1, v{x}
            s_cbranch_vccz K2_go
            """)
        a(f"""
        s_add_u32 s47, s47, 1
        s_cmp_lt_u32 s47, 0x20000
        s_cbranch_scc1 K2_poll
        """)
        a.label("K2_go")
        a("s_barrier")
    stamp(a, 13)
    a("s_mov_b32 s45, s97")
    for k in range(4):
        a(f"""
        s_add_u32 s45, s45, 1
        s_cmp_eq_u32 s45, 5
        s_cselect_b32 s45, 0, s45
        s_mul_i32 s46, s45, {48*48*1024}
        s_add_u32 s47, s46, s62
        s_add_u32 s46, s46, s63
        """)
        for x in range(2):
            r = L0 + (k * 2 + x) * 4
            a(f"buffer_load_dwordx4 v[{r}:{r+3}], v1, s[4:7], s{47-x} offen sc1")
    if not TWF: base_ld()
    for sp in range(4):
        for x, b in ((0, B0), (1, B1)):
            r = L0 + (sp * 2 + x) * 4
            a(f"s_waitcnt vmcnt({7 - (sp*2+x)})")
            for k in range(4):
                a(f"v_lshlrev_b32 v5, 16, v{r+k}")
                a(f"v_and_b32 v6, v3, v{r+k}")
                a(f"v_add_f32 v{b+2*k}, v{b+2*k}, v5")
                a(f"v_add_f32 v{b+2*k+1}, v{b+2*k+1}, v6")
    for x, b in ((0, B0), (1, B1)):
        a(f"buffer_store_dwordx4 v[{b}:{b+3}], v{VO}, s[8:11], s{60+x} offen {OST}")
        a(f"buffer_store_dwordx4 v[{b+4}:{b+7}], v{VO}, s[8:11], s{60+x} offen offset:64 {OST}")
    a.label("K1_done")
    if STAMP: a("s_waitcnt vmcnt(0)")
    stamp(a, 14)
    if DBGT:
        a(f"s_waitcnt lgkmcnt(0)\ns_cmp_lg_u32 s2, {DBGT}\ns_cbranch_scc1 K1_end\ns_cmp_lg_u32 s16, 2\ns_cbranch_scc1 K1_end")
        for i in range(1, 15):
            a(f"s_sub_u32 s40, s{ST0+2*i}, s{ST0}\nv_mov_b32 v2, s40\ns_mov_b64 exec, 1\nbuffer_store_dword v2, v1, s[24:27], 0 offen offset:{4*(i+1)}\ns_mov_b64 exec, -1\ns_nop 1")
    else:
        stamp_out(a, 1, 16)
    a.label("K1_end")
    a("s_endpgm")
    a.label("CODE_END")
    return (KNAME, 256, 512, 163840, a.text(), 256, 102, 256)

SWA = JUNK + 1024
def ssm_post4(a, NU, ACC, CN, sacc, SU, after_join):
    TP = XR + 48
    B0 = LB + 3 * 24576
    EQP = 48
    EQU = 8 * 16 * EQP
    TT = B0 + NU * EQU; TTP = 80; SW = SWA
    P_ = TP; E = TP + 10; t0 = TP + 20
    stamp(a, 3)
    a("s_nop 7")
    def breg(u, comp, i): return sacc(u, comp, i // 4) + (i % 4)
    def cmadd(dr, di, lr, li, xr, xi, br, bi, t):
        a(f"v_fma_f32 v{t}, v{lr}, v{xr}, v{br}")
        a(f"v_fma_f32 v{t+1}, v{lr}, v{xi}, v{bi}")
        a(f"v_fma_f32 v{t+1}, v{li}, v{xr}, v{t+1}")
        a(f"v_fma_f32 v{dr}, -v{li}, v{xi}, v{t}")
        a(f"v_mov_b32 v{di}, v{t+1}")
    def cmadd4(dr, di, lr, li, xr, xi, br, bi, nli=None):
        if dr == br:
            a(f"v_fmac_f32 v{dr}, v{lr}, v{xr}")
            a(f"v_fmac_f32 v{di}, v{lr}, v{xi}")
        else:
            a(f"v_fma_f32 v{dr}, v{lr}, v{xr}, v{br}")
            a(f"v_fma_f32 v{di}, v{lr}, v{xi}, v{bi}")
        if nli is None: a(f"v_fma_f32 v{dr}, -v{li}, v{xi}, v{dr}")
        else: a(f"v_fmac_f32 v{dr}, v{nli}, v{xi}")
        a(f"v_fmac_f32 v{di}, v{li}, v{xr}")
    E2 = t0 + 8
    NL = 248
    for u in range(NU): a(f"v_sub_f32 v{NL+u}, 0, v{CN+8*u+1}")
    for i in range(1, 8):
        for u in range(NU):
            lr, li = CN + 8 * u, CN + 8 * u + 1
            if i == 1: xr, xi = breg(u, 0, 0), breg(u, 1, 0)
            else:
                src = (E if (i - 1) % 2 == 1 else E2) + 2 * u
                xr, xi = src, src + 1
            dst = (E if i % 2 == 1 else E2) + 2 * u
            cmadd4(dst, dst + 1, lr, li, xr, xi, breg(u, 0, i), breg(u, 1, i), NL + u)
    for u in range(NU):
        cr, ci = CN + 8 * u + 2, CN + 8 * u + 3
        br, bi = E + 2 * u, E + 2 * u + 1
        t = E2 + 2 * u
        a(f"v_mul_f32 v{t}, v{ci}, v{bi}")
        a(f"v_mul_f32 v{t+1}, v{ci}, v{br}")
        a(f"v_fma_f32 v{br}, v{cr}, v{br}, -v{t}")
        a(f"v_fma_f32 v{bi}, v{cr}, v{bi}, v{t+1}")
    A0 = t0 + 18; A1 = t0 + 19; A2 = t0 + 20; A3 = t0 + 21
    a(f"""
    v_and_b32 v{A2}, 15, v0
    v_lshrrev_b32 v{A3}, 4, v0
    s_mul_i32 s40, s16, {16*EQP}
    s_add_u32 s40, s40, {B0}
    v_mul_u32_u24 v{A0}, {EQP}, v{A2}
    v_add_u32 v{A0}, s40, v{A0}
    v_lshl_add_u32 v{A1}, v{A3}, 3, v{A0}
    v_cmp_eq_u32 s[50:51], 1, v{A3}
    v_cmp_eq_u32 s[52:53], 2, v{A3}
    v_cmp_eq_u32 s[54:55], 3, v{A3}
    """)
    for u in range(NU):
        a(f"ds_write_b64 v{A1}, v[{E+2*u}:{E+2*u+1}] offset:{u*EQU}")
    Q = t0 + 24
    for u in range(NU):
        a(f"ds_read_b128 v[{Q+8*u}:{Q+8*u+3}], v{A0} offset:{u*EQU}")
        a(f"ds_read_b128 v[{Q+8*u+4}:{Q+8*u+7}], v{A0} offset:{u*EQU + 16}")
    a(f"s_lshl_b32 s40, s16, 3\ns_add_u32 s40, s40, {TT}\nv_mul_u32_u24 v{A1}, {TTP}, v{A2}\nv_add_u32 v{A1}, s40, v{A1}")
    a("s_waitcnt lgkmcnt(0)")
    for step in range(1, 4):
        for u in range(NU):
            q = Q + 8 * u
            lr, li = CN + 8 * u + 4, CN + 8 * u + 5
            cmadd4(q + 2 * step, q + 2 * step + 1, lr, li, q + 2 * step - 2, q + 2 * step - 1, q + 2 * step, q + 2 * step + 1)
    a("s_mov_b64 exec, 0xffff")
    for u in range(NU):
        q = Q + 8 * u
        a(f"ds_write_b64 v{A1}, v[{q+6}:{q+7}] offset:{u*16*TTP}")
    a("s_mov_b64 exec, -1\ns_waitcnt lgkmcnt(0)\ns_barrier")
    stamp(a, 5)
    def sel_p():
        for u in range(NU):
            q = Q + 8 * u
            for c in range(2):
                a(f"v_cndmask_b32 v{P_+2*u+c}, 0, v{q+c}, s[50:51]")
                a(f"v_cndmask_b32 v{P_+2*u+c}, v{P_+2*u+c}, v{q+2+c}, s[52:53]")
                a(f"v_cndmask_b32 v{P_+2*u+c}, v{P_+2*u+c}, v{q+4+c}, s[54:55]")
    def scale_all():
        for u in range(NU):
            cr, ci = CN + 8 * u + 2, CN + 8 * u + 3
            for i in range(8):
                br, bi = breg(u, 0, i), breg(u, 1, i)
                t = E2 + 2 * (i % 4)
                a(f"v_mul_f32 v{t}, v{ci}, v{bi}")
                a(f"v_mul_f32 v{t+1}, v{ci}, v{br}")
                a(f"v_fma_f32 v{br}, v{cr}, v{br}, -v{t}")
                a(f"v_fma_f32 v{bi}, v{cr}, v{bi}, v{t+1}")
    L32r, L32i, L256r, L256i = CN + 40, CN + 41, CN + 42, CN + 43
    TW = 8; G = Q + 16; S_ = t0
    a("s_cmp_ge_u32 s16, 5\ns_cbranch_scc1 K1_pub")
    a(f"""
    s_setprio 3
    s_mul_i32 s40, s16, {16*TTP}
    s_add_u32 s40, s40, {TT}
    v_mul_u32_u24 v{A1}, {TTP}, v{A2}
    v_add_u32 v{A1}, s40, v{A1}
    """)
    for k in range(4):
        a(f"ds_read_b128 v[{TW+4*k}:{TW+4*k+3}], v{A1} offset:{16*k}")
    a(f"""
    s_add_u32 s40, s57, s16
    s_lshl_b32 s40, s40, 11
    s_add_u32 s40, s40, {WS_E}
    v_lshlrev_b32 v{A0}, 4, v{A2}
    v_mov_b32 v25, 1
    v_mov_b32 v27, 1
    s_lshl_b32 s41, s17, 8
    s_add_u32 s41, s41, s40
    s_waitcnt lgkmcnt(0)
    """)
    cur = (TW, TW + 1)
    for w in range(1, 8):
        d = (S_ + 2 * (w % 2), S_ + 2 * (w % 2) + 1) if w < 7 else (24, 26)
        cmadd4(d[0], d[1], L32r, L32i, cur[0], cur[1], TW + 2 * w, TW + 2 * w + 1)
        cur = d
    a(f"""
    s_mov_b64 exec, 0xffff
    buffer_store_dwordx4 v[24:27], v{A0}, s[4:7], s41 offen sc1
    s_mov_b64 exec, -1
    s_setprio 0
    """)
    a.label("K1_pub")
    sel_p()
    scale_all()
    a("s_cmp_ge_u32 s16, 5\ns_cbranch_scc1 K1_join")
    a(f"""
    s_setprio 3
    v_mov_b32 v{S_}, 0
    v_mov_b32 v{S_+1}, 0
    s_mov_b32 s47, 0
    s_cmp_eq_u32 s17, 0
    s_cbranch_scc1 K1_lbdone
    """)
    a.label("K1_lbloop")
    for k in range(7):
        a(f"buffer_load_dwordx4 v[{G+4*k-16}:{G+4*k+3-16}], v{A0}, s[4:7], s40 offen offset:{256*k} sc1")
    G -= 16
    a(f"""
    v_mov_b32 v{S_}, 0
    v_mov_b32 v{S_+1}, 0
    v_mov_b32 v{S_+4}, 1
    s_waitcnt vmcnt(0)
    """)
    for k in range(7):
        a(f"v_and_b32 v{S_+4}, v{S_+4}, v{G+4*k+1}")
        a(f"v_and_b32 v{S_+4}, v{S_+4}, v{G+4*k+3}")
        cmadd(S_, S_ + 1, L256r, L256i, S_, S_ + 1, G + 4 * k, G + 4 * k + 2, S_ + 2)
        if k < 6:
            a(f"s_cmp_eq_u32 s17, {k+1}\ns_cbranch_scc1 K1_lbchk")
    a.label("K1_lbchk")
    a(f"""
    v_cmp_ne_u32 vcc, 1, v{S_+4}
    s_cbranch_vccz K1_lbdone
    s_add_u32 s47, s47, 1
    s_cmp_lt_u32 s47, 0x40000
    s_cbranch_scc1 K1_lbloop
    """)
    a.label("K1_lbdone")
    a(f"""
    s_lshl_b32 s40, s16, 10
    s_add_u32 s40, s40, {SW}
    v_lshl_add_u32 v{A1}, v{A2}, 3, s40
    s_mov_b64 exec, 0xffff
    ds_write_b64 v{A1}, v[{S_}:{S_+1}]
    """)
    cur = (S_, S_ + 1)
    for w in range(7):
        cmadd4(TW + 2 * w, TW + 2 * w + 1, L32r, L32i, cur[0], cur[1], TW + 2 * w, TW + 2 * w + 1)
        cur = (TW + 2 * w, TW + 2 * w + 1)
        a(f"ds_write_b64 v{A1}, v[{cur[0]}:{cur[1]}] offset:{128*(w+1)}")
    a("s_mov_b64 exec, -1\ns_setprio 0")
    a.label("K1_join")
    RP = 80; UB = 32 * RP
    a(f"""
    s_lshl_b32 s40, s16, 7
    s_add_u32 s40, s40, {SW}
    v_lshl_add_u32 v{E2}, v{A2}, 3, s40
    s_mul_i32 s40, s16, {NU*UB}
    s_add_u32 s40, s40, {LB}
    v_mul_u32_u24 v{A0}, {RP}, v{A2}
    v_lshl_add_u32 v{A0}, v{A3}, 4, v{A0}
    v_add_u32 v{A0}, s40, v{A0}
    v_bfe_u32 v{A2}, v0, 2, 2
    v_lshl_add_u32 v{A1}, v{A3}, 3, v{A2}
    v_mul_u32_u24 v{A1}, {RP}, v{A1}
    v_and_b32 v{A2}, 3, v0
    v_lshl_add_u32 v{A1}, v{A2}, 4, v{A1}
    v_add_u32 v{A1}, s40, v{A1}
    v_lshrrev_b32 v{A2}, 5, v0
    v_lshlrev_b32 v{A2}, 11, v{A2}
    v_and_b32 v{A3}, 31, v0
    v_lshl_add_u32 v{A2}, v{A3}, 4, v{A2}
    s_waitcnt lgkmcnt(0)
    s_barrier
    """)
    stamp(a, 6)
    for u in range(NU):
        a(f"ds_read_b64 v[{E+2*u}:{E+2*u+1}], v{E2} offset:{u*1024}")
    after_join()
    a("s_waitcnt lgkmcnt(0)")
    for u in range(NU):
        cmadd4(P_ + 2 * u, P_ + 2 * u + 1, CN + 8 * u + 6, CN + 8 * u + 7, E + 2 * u, E + 2 * u + 1, P_ + 2 * u, P_ + 2 * u + 1)
    def scan(us):
        for i in range(8):
            for u in us:
                lr, li = CN + 8 * u, CN + 8 * u + 1
                if i == 0: xr, xi = P_ + 2 * u, P_ + 2 * u + 1
                else: xr, xi = breg(u, 0, i - 1), breg(u, 1, i - 1)
                cmadd4(breg(u, 0, i), breg(u, 1, i), lr, li, xr, xi, breg(u, 0, i), breg(u, 1, i), NL + u)
    def pack(us):
        for u in us:
            q = Q + 8 * u
            for k in range(4):
                a(f"v_cvt_pk_bf16_f32 v{q+k}, v{breg(u,0,2*k)}, v{breg(u,0,2*k+1)}")
                a(f"v_cvt_pk_bf16_f32 v{q+4+k}, -v{breg(u,1,2*k)}, -v{breg(u,1,2*k+1)}")
            a(f"ds_write_b128 v{A0}, v[{q}:{q+3}] offset:{u*UB}")
            a(f"ds_write_b128 v{A0}, v[{q+4}:{q+7}] offset:{u*UB + 16*RP}")
            for j in range(2):
                o = sacc(u, 0, j)
                for e in range(2):
                    a(f"ds_read_b64_tr_b16 v[{o+2*e}:{o+2*e+1}], v{A1} offset:{u*UB + e*4*RP + j*8}")
    def store(us):
        a("s_waitcnt lgkmcnt(0)")
        for u in us:
            a(f"""
            s_add_u32 s40, s{SU}, {u}
            s_lshr_b32 s41, s40, 2
            s_lshl_b32 s41, s41, 12
            s_and_b32 s42, s40, 3
            s_lshl_b32 s42, s42, 9
            s_add_u32 s41, s41, s42
            s_add_u32 s41, s41, s34
            s_add_u32 s41, s41, {144*1024}
            s_add_u32 s42, s41, 184320
            """)
            for j in range(2):
                o = sacc(u, 0, j)
                a(f"buffer_store_dwordx4 v[{o}:{o+3}], v{A2}, s[4:7], s{41+j} offen {HST}")
    scan([0, 1, 2]); pack([0, 1, 2]); scan([3, 4]); store([0, 1, 2]); pack([3, 4]); store([3, 4])

if __name__ == "__main__":
    out = sys.argv[1] if len(sys.argv) > 1 else "out.s"
    k = gen_main()
    t = build_file([k]).replace(f"@launch kernel={KNAME} ", "@launch ", 1)
    open(out, "w").write(t)
```
